```python
import torch

def _softmax(x, axis=-1):
    return torch.softmax(x, dim=axis)
def _gelu(x):
    return torch.nn.functional.gelu(x, approximate="tanh")
def _silu(x):
    return torch.nn.functional.silu(x)
def _sigmoid(x):
    return torch.sigmoid(x)
def _layernorm(x, axis=-1, eps=1e-5):
    m = x.mean(dim=axis, keepdim=True)
    v = x.var(dim=axis, keepdim=True, unbiased=False)
    return (x - m) / torch.sqrt(v + eps)
def _scatter_add(tgt, idx, src, axis=0):
    return tgt.clone().index_add_(axis, idx, src)
def _segment_sum(src, seg, n):
    out = torch.zeros((n,) + src.shape[1:], dtype=src.dtype)
    return out.index_add_(0, seg, src)
def _pad(x, pw):
    flat = tuple(v for pair in reversed(pw) for v in pair)
    return torch.nn.functional.pad(x, flat)

kernel_name = 'sequential_preLN__linear_kernel_hedgehog__glu_gated_bilinear__prompt'

def setup_inputs():

    _w = (lambda a: (lambda t: t.to(torch.bfloat16) if t.is_floating_point() else t)(torch.as_tensor(a)))
    def _A_setup():
        B, S, D, H = 1, 2048, 576, 32
        Dh = D // H
        return {
            "x": _w((lambda *s: torch.randn(*s, dtype=torch.bfloat16) * 0.05)(B, S, D)),
            "wqkv": _w((lambda *s: torch.randn(*s, dtype=torch.bfloat16) * 0.2)(D, 3 * D)),
            "w_phi": _w((lambda *s: torch.randn(*s, dtype=torch.bfloat16) * 0.2)(H, Dh, Dh) * (Dh ** -0.5)),
            "wo": _w((lambda *s: torch.randn(*s, dtype=torch.bfloat16) * 0.05)(D, D)),
        }
    _A_in = _A_setup()

    def _B_setup():
        B, S, D, F = 1, 2048, 576, 4608
        return {
            "x": _w((lambda *s: torch.randn(*s, dtype=torch.bfloat16) * 0.05)(B, S, D)),
            "w_gate": _w((lambda *s: torch.randn(*s, dtype=torch.bfloat16) * 0.4)(D, F) * (D ** -0.5)),
            "w_up": _w((lambda *s: torch.randn(*s, dtype=torch.bfloat16) * 0.4)(D, F) * (D ** -0.5)),
            "w_down": _w((lambda *s: torch.randn(*s, dtype=torch.bfloat16) * 0.4)(F, D) * (F ** -0.5)),
        }
    _B_in = _B_setup()

    return {
        "A_x": _A_in["x"],
        "A_wqkv": _A_in["wqkv"],
        "A_w_phi": _A_in["w_phi"],
        "A_wo": _A_in["wo"],
        "B_x": _B_in["x"],
        "B_w_gate": _B_in["w_gate"],
        "B_w_up": _B_in["w_up"],
        "B_w_down": _B_in["w_down"],
    }

def reference(A_x, A_wqkv, A_w_phi, A_wo, B_x, B_w_gate, B_w_up, B_w_down):
    def _A_ref(x, wqkv, w_phi, wo):
        B, S, D = x.shape
        H = 32; Dh = D // H
        qkv = (lambda x, *d: x.permute(*d))((x @ wqkv).reshape(B, S, 3, H, Dh), 2, 0, 3, 1, 4)
        q, k, v = qkv[0], qkv[1], qkv[2]
        pq = torch.einsum("bhsd,hdf->bhsf", q, w_phi)
        pk = torch.einsum("bhsd,hdf->bhsf", k, w_phi)
        phi_q = torch.concatenate([_softmax(pq, axis=-1), _softmax(-pq, axis=-1)], axis=-1)
        phi_k = torch.concatenate([_softmax(pk, axis=-1), _softmax(-pk, axis=-1)], axis=-1)
        kv = torch.einsum("bhsf,bhsd->bhfd", phi_k, v)
        z  = torch.einsum("bhsf->bhf", phi_k)
        num = torch.einsum("bhqf,bhfd->bhqd", phi_q, kv)
        den = torch.einsum("bhqf,bhf->bhq", phi_q, z)[..., None] + 1e-6
        o = num / den
        return (lambda x, *d: x.permute(*d))(o, 0, 2, 1, 3).reshape(B, S, D) @ wo

    def _B_ref(x, w_gate, w_up, w_down):
        g = torch.einsum("bsd,df->bsf", x, w_gate)
        u = torch.einsum("bsd,df->bsf", x, w_up)
        h = g * u
        return torch.einsum("bsf,fd->bsd", h, w_down)

    x = A_x
    h = x + _A_ref(_layernorm(x, axis=-1), A_wqkv, A_w_phi, A_wo)
    h2 = h + _B_ref(_layernorm(h, axis=-1), B_w_gate, B_w_up, B_w_down)
    return h2
```

```python
import re

TRANS = ("v_exp_f32", "v_log_f32", "v_rcp_f32", "v_rsq_f32", "v_sqrt_f32", "v_sin_f32", "v_cos_f32", "v_rcp_iflag_f32")
REG_RE = re.compile(r"\b([vas])(?:(\d+)|\[(\d+):(\d+)\])")

def regs_of(tok):
    tok = tok.strip()
    out = set()
    for m in REG_RE.finditer(tok):
        k = m.group(1)
        if m.group(2) is not None:
            out.add((k, int(m.group(2))))
        else:
            for i in range(int(m.group(3)), int(m.group(4)) + 1):
                out.add((k, i))
    if re.search(r"\bvcc(_lo|_hi)?\b", tok): out.add(("x", "vcc"))
    if re.search(r"\bexec(_lo|_hi)?\b", tok): out.add(("x", "exec"))
    if re.search(r"\bm0\b", tok): out.add(("x", "m0"))
    return out

def split_ops(s):
    ops, depth, cur = [], 0, ""
    for ch in s:
        if ch in "[(": depth += 1
        if ch in "])": depth -= 1
        if ch == "," and depth == 0:
            ops.append(cur.strip()); cur = ""
        else:
            cur += ch
    if cur.strip(): ops.append(cur.strip())
    return ops

class Ins:
    __slots__ = ("text", "op", "cls", "w", "r", "ops", "srcc", "srcab", "passes", "states", "dpp", "sdwa", "lds_dma", "widestore", "data")
    def __init__(self, text):
        self.text = text
        t = text.split(";")[0].strip()
        parts = t.split(None, 1)
        self.op = op = parts[0]
        rest = parts[1] if len(parts) > 1 else ""
        ops = split_ops(rest)
        self.ops = ops
        self.w, self.r = set(), set()
        self.srcc, self.srcab, self.passes = set(), set(), 0
        self.states = 1
        self.dpp = "_dpp" in op or "row_" in rest or "quad_perm" in rest
        self.sdwa = "_sdwa" in op and "dst_sel:DWORD" not in rest
        self.lds_dma = False; self.widestore = False; self.data = set()
        R = [regs_of(o) for o in ops]
        allr = lambda i: set().union(*R[i:]) if len(R) > i else set()
        if op.startswith("v_mfma"):
            self.cls = "mfma"
            self.w = R[0]; self.srcab = R[1] | R[2]; self.srcc = R[3]; self.r = self.srcab | self.srcc
            self.passes = 8 if "32x32" in op else 4
        elif op.startswith("v_cmpx"):
            raise Exception("v_cmpx not supported by linter")
        elif op.startswith("v_cmp"):
            self.cls = "valu"; self.w = R[0]; self.r = allr(1)
        elif op.startswith("v_readfirstlane") or op.startswith("v_readlane"):
            self.cls = "valu"; self.w = R[0]; self.r = allr(1)
        elif op.startswith("v_permlane") and "swap" in op:
            self.cls = "valu"; self.w = R[0] | R[1]; self.r = R[0] | R[1]
        elif op.startswith("v_add_co") or op.startswith("v_addc_co") or op.startswith("v_sub_co") or op.startswith("v_subb_co") or op.startswith("v_div_scale") or op.startswith("v_mad_u64"):
            self.cls = "valu"; self.w = R[0] | R[1]; self.r = allr(2)
        elif op.startswith("v_nop"):
            self.cls = "valu"
        elif op.startswith("v_"):
            self.cls = "valu"; self.w = R[0]; self.r = allr(1)
            if op.startswith(("v_fmac", "v_dot2c", "v_pk_fmac", "v_writelane")) or self.dpp or self.sdwa or "d16" in op:
                self.r |= R[0]
            if op.startswith("v_div_fmas"): self.r.add(("x", "vcc"))
        elif op.startswith("ds_"):
            self.cls = "ds"
            if op.startswith(("ds_read", "ds_bpermute", "ds_permute", "ds_swizzle")) or "_rtn" in op:
                self.w = R[0]; self.r = allr(1)
                if "d16" in op: self.r |= R[0]
            else:
                self.r = allr(0)
        elif op.startswith(("buffer_", "global_")):
            self.cls = "vmem"
            if op in ("buffer_wbl2", "buffer_inv"):
                pass
            elif re.search(r"\blds\b", rest) or "load_lds" in op:
                self.lds_dma = True; self.r = allr(0) | {("x", "m0")}
            elif "_load" in op:
                self.w = R[0]; self.r = allr(1)
                if "d16" in op: self.r |= R[0]
            elif "atomic" in op:
                if op.startswith("buffer_"):
                    self.r = allr(0)
                    if re.search(r"\bsc0\b", rest): self.w = R[0]
                else:
                    if re.search(r"\bsc0\b", rest): self.w = R[0]; self.r = allr(1)
                    else: self.r = allr(0)
            else:
                self.r = allr(0)
                self.data = R[0] if op.startswith("buffer_") else R[1]
                if "x3" in op or "x4" in op: self.widestore = True
        elif op.startswith(("s_load", "s_buffer_load", "s_memtime", "s_memrealtime", "s_atomic")):
            self.cls = "smem"; self.w = R[0]; self.r = allr(1)
        elif op == "s_nop":
            self.cls = "nop"; self.states = int(ops[0], 0) + 1
        elif op.startswith(("s_waitcnt", "s_barrier", "s_endpgm", "s_setprio", "s_sleep", "s_branch", "s_cbranch")):
            self.cls = "ctl"
            if "vcc" in op: self.r = {("x", "vcc")}
            if "exec" in op: self.r = {("x", "exec")}
        elif op.startswith("s_cmp") or op.startswith("s_bitcmp"):
            self.cls = "salu"; self.r = allr(0)
        elif op.startswith("s_"):
            self.cls = "salu"; self.w = R[0] if R else set(); self.r = allr(1)
            if "saveexec" in op: self.w = self.w | {("x", "exec")}; self.r = self.r | {("x", "exec")}
            if op.startswith(("s_addk", "s_mulk", "s_cmov")): self.r |= R[0]
        else:
            raise Exception("unknown instruction: " + text)

def is_vec(rs): return {r for r in rs if r[0] in "va"}
def is_sc(rs): return {r for r in rs if r[0] == "s" or r == ("x", "vcc")}

def need(p, c):
    n = 0
    if p.cls == "valu":
        wv, ws = is_vec(p.w), is_sc(p.w)
        if wv:
            if c.cls == "mfma" and wv & c.r: n = max(n, 2)
            if c.cls == "valu":
                if c.op.startswith(("v_readlane", "v_readfirstlane")) and wv & c.r: n = max(n, 1)
                if c.dpp and wv & c.r: n = max(n, 2)
                if c.op.startswith("v_permlane") and wv & c.r: n = max(n, 2)
                if p.op.startswith(TRANS) and wv & c.r: n = max(n, 1)
                if p.sdwa and wv & (c.r | c.w): n = max(n, 1)
            if p.op.startswith("v_dot"):
                if wv & (c.r | c.w):
                    same_c = c.op == p.op and not (wv & (regs_of(c.ops[1]) | regs_of(c.ops[2])))
                    if not same_c: n = max(n, 3)
        if ws:
            if c.cls == "valu" and ws & c.r:
                n = max(n, 4 if c.op.startswith(("v_readlane", "v_writelane", "v_div_fmas")) else 2)
            if c.cls == "mfma" and ws & c.r: n = max(n, 2)
            if c.cls == "vmem" and ws & c.r: n = max(n, 5)
            if c.cls in ("salu", "smem") and ws & c.r: n = max(n, 3)
            if c.cls == "ctl" and ws & c.r: n = max(n, 3)
    if p.cls == "mfma":
        d = p.w
        big = p.passes == 8
        if c.cls == "mfma":
            if d & c.srcab: n = max(n, 12 if big else 8)
            if d & c.srcc:
                if not (c.srcc == d and c.passes == p.passes): n = max(n, 10 if big else 6)
            elif d & c.w:
                n = max(n, 10 if big else 6)
        elif c.cls in ("valu", "vmem", "ds"):
            if d & (c.r | c.w): n = max(n, 12 if big else 8)
        if c.cls == "valu" and p.srcc & c.w: n = max(n, 7 if big else 3)
    if p.cls == "vmem" and p.widestore:
        if p.data & c.w: n = max(n, 2 if c.cls in ("valu", "mfma") else 1)
    if p.cls == "salu" and ("x", "m0") in p.w:
        if c.lds_dma or "addtid" in c.op or c.op.startswith("s_movrel"): n = max(n, 1)
    return n

MAXD = 13

class Asm:
    def __init__(self):
        self.items = []
    def __call__(self, s):
        for line in s.split("\n"):
            t = line.strip()
            if not t: continue
            if t.startswith((";", ".")) or re.match(r"^[\w.$]+:$", t):
                self.items.append(t)
            else:
                self.items.append(Ins(t))
    def raw(self, s): self.items.append(s)
    def pad(self):
        changed = True
        total = 0
        while changed:
            changed = False
            items = self.items
            labels = {it[:-1]: i for i, it in enumerate(items) if isinstance(it, str) and it.endswith(":") and not it.startswith(";")}
            brs = {}
            for i, it in enumerate(items):
                if isinstance(it, Ins) and it.op.startswith(("s_branch", "s_cbranch")):
                    brs.setdefault(it.ops[0], []).append(i)
            def back(i, dist, c, acc):
                j = i - 1
                while j >= 0 and dist < MAXD:
                    it = items[j]
                    if isinstance(it, str):
                        if it.endswith(":") and it[:-1] in brs:
                            for b in brs[it[:-1]]:
                                back(b, dist + 1, c, acc)
                        j -= 1; continue
                    if it.op in ("s_branch", "s_endpgm"): return
                    nd = need(it, c)
                    if nd > dist: acc[0] = max(acc[0], nd - dist)
                    dist += it.states
                    j -= 1
            out = []
            for i, it in enumerate(items):
                if isinstance(it, Ins) and it.cls not in ("nop",):
                    acc = [0]
                    back(i, 0, it, acc)
                    if acc[0] > 0:
                        items.insert(i, Ins(f"s_nop {acc[0]-1}"))
                        total += acc[0]
                        changed = True
                        break
        return total
    def pad_fast(self):
        total = 0
        for _ in range(50):
            items = self.items
            brs = {}
            for i, it in enumerate(items):
                if isinstance(it, Ins) and it.op.startswith(("s_branch", "s_cbranch")):
                    brs.setdefault(it.ops[0], []).append(i)
            extra = {}
            def back(i, dist, c, acc):
                j = i - 1
                while j >= 0 and dist < MAXD:
                    it = items[j]
                    if isinstance(it, str):
                        if it.endswith(":") and it[:-1] in brs:
                            for b in brs[it[:-1]]:
                                back(b, dist + 1 + extra.get(b, 0), c, acc)
                        j -= 1; continue
                    if it.op in ("s_branch", "s_endpgm"): return
                    nd = need(it, c)
                    if nd > dist: acc[0] = max(acc[0], nd - dist)
                    dist += it.states + extra.get(j, 0)
                    j -= 1
            for i, it in enumerate(items):
                if isinstance(it, Ins) and it.cls != "nop":
                    acc = [0]
                    back(i, 0, it, acc)
                    if acc[0] > 0: extra[i] = acc[0]
            if not extra: return total
            new = []
            for i, it in enumerate(items):
                if i in extra:
                    new.append(Ins(f"s_nop {extra[i]-1}")); total += extra[i]
                new.append(it)
            self.items = new
        raise Exception("pad did not converge")
    def verify_waits(self, name=""):
        items = self.items
        labels = {it[:-1]: i for i, it in enumerate(items) if isinstance(it, str) and it.endswith(":") and not it.startswith(";")}
        vm, lg = [], []
        taken = set()
        i = 0; errs = []
        while i < len(items):
            it = items[i]
            if isinstance(it, str): i += 1; continue
            if it.op == "s_endpgm":
                vm, lg = [], []; i += 1; continue
            if it.op == "s_waitcnt":
                t = it.text
                m = re.search(r"vmcnt\((\d+)\)", t)
                if m:
                    n = int(m.group(1)); assert n <= 63, t
                    while len(vm) > n: vm.pop(0)
                m = re.search(r"lgkmcnt\((\d+)\)", t)
                if m:
                    n = int(m.group(1)); assert n <= 15, t
                    if any(k == "smem" for _, _, k in lg):
                        if n == 0: lg = []
                    else:
                        while len(lg) > n: lg.pop(0)
                i += 1; continue
            touched = it.r | it.w
            for q in (vm, lg):
                for d, t, k in q:
                    if d & touched:
                        if not (d & it.r) and ((q is vm and it.cls == "vmem") or (q is lg and it.cls == "ds" and k == "ds")): continue
                        errs.append(f"{name}: '{it.text}' touches result of un-waited '{t}'")
            if it.cls == "vmem": vm.append((it.w, it.text, "vm"))
            elif it.cls == "ds": lg.append((it.w, it.text, "ds"))
            elif it.cls == "smem": lg.append((it.w, it.text, "smem"))
            if it.op.startswith(("s_branch", "s_cbranch")):
                tgt = labels[it.ops[0]]
                if tgt < i and i not in taken:
                    taken.add(i); i = tgt; continue
                if it.op == "s_branch" and tgt > i:
                    i = tgt; continue
            i += 1
        return errs
    def text(self):
        out = []
        for it in self.items:
            out.append(it if isinstance(it, str) else "  " + it.text)
        return "\n".join(out) + "\n"
    def maxregs(self):
        mv = ma = ms = -1
        for it in self.items:
            if isinstance(it, Ins):
                for k, n in it.r | it.w:
                    if k == "v": mv = max(mv, n)
                    if k == "a": ma = max(ma, n)
                    if k == "s": ms = max(ms, n)
        return mv + 1, ma + 1, ms + 1

def kernel_text(name, a, force_vgpr=None):
    npad = a.pad_fast()
    errs = a.verify_waits(name)
    if errs:
        for e in errs[:20]: print("WAIT ERROR", e)
        raise Exception("waitcnt verification failed")
    nv, na, ns = a.maxregs()
    acc_off = max(4, (nv + 3) // 4 * 4)
    nfv = acc_off + na if na else max(nv, 1)
    if force_vgpr: nfv = max(nfv, force_vgpr)
    assert nv <= 256 and na <= 256 and ns <= 102, (nv, na, ns)
    code = f".globl {name}\n.p2align 8\n.type {name},@function\n{name}:\n" + a.text()
    desc = f""".p2align 6
.amdhsa_kernel {name}
  .amdhsa_next_free_vgpr {nfv}
  .amdhsa_next_free_sgpr {max(ns, 8)}
  .amdhsa_accum_offset {acc_off}
  .amdhsa_group_segment_fixed_size 0
  .amdhsa_kernarg_size 88
  .amdhsa_user_sgpr_count 2
  .amdhsa_user_sgpr_kernarg_segment_ptr 1
  .amdhsa_system_sgpr_workgroup_id_x 1
  .amdhsa_float_denorm_mode_32 3
.end_amdhsa_kernel
"""
    ninst = sum(isinstance(it, Ins) for it in a.items)
    print(f"  {name}: {ninst} instr, v{nv} a{na} s{ns}, nop states inserted {npad}")
    return code, desc

def file_text(header_launches, kernels):
    out = ""
    for n, g, b, lds in header_launches:
        out += f"; @launch kernel={n} grid=({g},1,1) block=({b},1,1) lds={lds}\n"
    out += '.amdgcn_target "amdgcn-amd-amdhsa--gfx950"\n.text\n'
    for c, d in kernels: out += c
    out += '.section .rodata,"a"\n'
    for c, d in kernels: out += d
    return out
```

```python
import sys
from asmlib import *
MB = 1 << 20
WS = dict(XN=0, QKV=16*MB, PQ=32*MB, PK=48*MB, KV=64*MB, O=80*MB, H=96*MB, HN=112*MB, HH=128*MB)
ARG = dict(x=0, wqkv=8, wphi=16, wo=24, wg=40, wu=48, wd=56, out=64, dbg=72, ws=80)
SZ = dict(x=2359296, wqkv=576*1728*2, wphi=32*18*18*2, wo=576*576*2, wg=576*4608*2, wu=576*4608*2, wd=576*4608*2, out=2359296)

def srd(a, s, buf, tmp, size=None):
    if buf in WS:
        a(f"s_load_dwordx2 s[{tmp}:{tmp+1}], s[0:1], {ARG['ws']}\ns_waitcnt lgkmcnt(0)")
        a(f"s_add_u32 s{s}, s{tmp}, {WS[buf]}\ns_addc_u32 s{s+1}, s{tmp+1}, 0\ns_and_b32 s{s+1}, s{s+1}, 0xffff")
        a(f"s_mov_b32 s{s+2}, {size or 32*MB}\ns_mov_b32 s{s+3}, 0x20000")
    else:
        a(f"s_load_dwordx2 s[{tmp}:{tmp+1}], s[0:1], {ARG[buf]}\ns_waitcnt lgkmcnt(0)")
        a(f"s_mov_b32 s{s}, s{tmp}\ns_and_b32 s{s+1}, s{tmp+1}, 0xffff\ns_mov_b32 s{s+2}, {SZ[buf]}\ns_mov_b32 s{s+3}, 0x20000")

def k_ln(name, src, dst):
    a = Asm()
    a(f"s_cmp_ge_u32 s2, 2048\ns_cbranch_scc1 {name}_end")
    srd(a, 8, src, 4); srd(a, 12, dst, 4)
    a("s_mul_i32 s3, s2, 1152\nv_lshlrev_b32 v1, 2, v0")
    for i in range(5): a(f"buffer_load_dword v{2+i}, v1, s[8:11], s3 offen offset:{256*i}")
    a("s_waitcnt vmcnt(0)\nv_cmp_gt_u32 vcc, 32, v0\nv_cndmask_b32 v6, 0, v6, vcc")
    for i in range(5):
        a(f"v_lshlrev_b32 v{10+2*i}, 16, v{2+i}\nv_and_b32 v{11+2*i}, 0xffff0000, v{2+i}")
    def allsum(r):
        for m in (1, 2, 4, 8, 16, 32):
            a(f"v_xor_b32 v30, {m}, v0\nv_lshlrev_b32 v30, 2, v30\nds_bpermute_b32 v31, v30, v{r}\ns_waitcnt lgkmcnt(0)\nv_add_f32 v{r}, v{r}, v31")
    a("v_mov_b32 v20, v10")
    for i in range(1, 10): a(f"v_add_f32 v20, v20, v{10+i}")
    allsum(20)
    a(f"v_mul_f32 v20, {1/576!r}, v20".replace("0.001736111111111111", "0x3ae38e39"))
    for i in range(10): a(f"v_sub_f32 v{10+i}, v{10+i}, v20")
    a("v_cndmask_b32 v18, 0, v18, vcc\nv_cndmask_b32 v19, 0, v19, vcc\nv_mul_f32 v21, v10, v10")
    for i in range(1, 10): a(f"v_fmac_f32 v21, v{10+i}, v{10+i}")
    allsum(21)
    a("v_mul_f32 v21, 0x3ae38e39, v21\nv_add_f32 v21, 0x3727c5ac, v21\nv_rsq_f32 v21, v21")
    for i in range(10): a(f"v_mul_f32 v{10+i}, v{10+i}, v21")
    for i in range(5): a(f"v_cvt_pk_bf16_f32 v{2+i}, v{10+2*i}, v{11+2*i}")
    for i in range(4): a(f"buffer_store_dword v{2+i}, v1, s[12:15], s3 offen offset:{256*i}")
    a("s_and_saveexec_b64 s[20:21], vcc\nbuffer_store_dword v6, v1, s[12:15], s3 offen offset:1024")
    a(f"{name}_end:\ns_endpgm")
    return (name, 2048, 64, 0), kernel_text(name, a)

def k_gemm(name, act, K, w, N, dst, w2=None, res=None):
    nb = N // 16
    grid = 32 * nb
    a = Asm()
    a(f"s_cmp_ge_u32 s2, {grid}\ns_cbranch_scc1 {name}_end")
    srd(a, 8, act, 4); srd(a, 12, w, 4); srd(a, 16, dst, 4)
    if w2: srd(a, 20, w2, 4)
    if res: srd(a, 24, res, 4)
    a("s_and_b32 s28, s2, 31\ns_lshr_b32 s29, s2, 5")
    a(f"v_and_b32 v1, 15, v0\nv_lshrrev_b32 v2, 4, v0")
    a(f"s_lshl_b32 s30, s28, 6\nv_add_u32 v3, s30, v1\ns_mov_b32 s31, {K*2}\nv_mul_lo_u32 v4, v3, s31\nv_lshl_add_u32 v4, v2, 4, v4")
    for t in range(1, 4): a(f"v_add_u32 v{4+t}, {16*t*K*2}, v4")
    a(f"v_lshrrev_b32 v8, 1, v0\ns_mov_b32 s31, {N*2}\nv_mul_lo_u32 v8, v8, s31\nv_and_b32 v9, 1, v0\nv_lshl_add_u32 v8, v9, 4, v8\ns_lshl_b32 s32, s29, 5\nv_add_u32 v8, s32, v8")
    a("v_lshlrev_b32 v9, 4, v0")
    a("v_lshrrev_b32 v10, 2, v1\nv_lshl_add_u32 v10, v2, 3, v10\nv_lshlrev_b32 v10, 5, v10\nv_and_b32 v11, 3, v1\nv_lshl_add_u32 v10, v11, 3, v10")
    for i in range(32): a(f"v_mov_b32 v{64+i}, 0")
    a("s_mov_b32 s33, 0\ns_mov_b32 s34, 0")
    a(f"{name}_loop:")
    for t in range(4): a(f"buffer_load_dwordx4 v[{16+4*t}:{19+4*t}], v{4+t}, s[8:11], s33 offen")
    a("buffer_load_dwordx4 v[32:35], v8, s[12:15], s34 offen")
    if w2: a("buffer_load_dwordx4 v[36:39], v8, s[20:23], s34 offen")
    a("s_waitcnt vmcnt(0)\nds_write_b128 v9, v[32:35]")
    if w2: a("ds_write_b128 v9, v[36:39] offset:1024")
    a("s_waitcnt lgkmcnt(0)\nds_read_b64_tr_b16 v[40:41], v10\nds_read_b64_tr_b16 v[42:43], v10 offset:128")
    if w2: a("ds_read_b64_tr_b16 v[44:45], v10 offset:1024\nds_read_b64_tr_b16 v[46:47], v10 offset:1152")
    a("s_waitcnt lgkmcnt(0)")
    for t in range(4):
        a(f"v_mfma_f32_16x16x32_bf16 v[{64+4*t}:{67+4*t}], v[40:43], v[{16+4*t}:{19+4*t}], v[{64+4*t}:{67+4*t}]")
        if w2: a(f"v_mfma_f32_16x16x32_bf16 v[{80+4*t}:{83+4*t}], v[44:47], v[{16+4*t}:{19+4*t}], v[{80+4*t}:{83+4*t}]")
    a(f"s_add_u32 s33, s33, 64\ns_add_u32 s34, s34, {32*N*2}\ns_cmp_lt_u32 s33, {K*2}\ns_cbranch_scc1 {name}_loop")
    a(f"s_mov_b32 s31, {N*2}\nv_mul_lo_u32 v4, v3, s31\nv_lshl_add_u32 v4, v2, 3, v4\nv_add_u32 v4, s32, v4")
    for t in range(1, 4): a(f"v_add_u32 v{4+t}, {16*t*N*2}, v4")
    if res:
        for t in range(4): a(f"buffer_load_dwordx2 v[{16+2*t}:{17+2*t}], v{4+t}, s[24:27], 0 offen")
        a("s_waitcnt vmcnt(0)")
    for t in range(4):
        b = 64 + 4 * t
        if w2:
            for i in range(4): a(f"v_mul_f32 v{b+i}, v{b+i}, v{b+16+i}")
        if res:
            for i in range(2):
                a(f"v_lshlrev_b32 v30, 16, v{16+2*t+i}\nv_add_f32 v{b+2*i}, v{b+2*i}, v30\nv_and_b32 v30, 0xffff0000, v{16+2*t+i}\nv_add_f32 v{b+2*i+1}, v{b+2*i+1}, v30")
        a(f"v_cvt_pk_bf16_f32 v{b}, v{b}, v{b+1}\nv_cvt_pk_bf16_f32 v{b+1}, v{b+2}, v{b+3}")
        a(f"buffer_store_dwordx2 v[{b}:{b+1}], v{4+t}, s[16:19], 0 offen")
    a(f"{name}_end:\ns_endpgm")
    return (name, grid, 64, 2048), kernel_text(name, a)

def k_phi(name):
    a = Asm()
    a(f"s_cmp_ge_u32 s2, 2048\ns_cbranch_scc1 {name}_end")
    srd(a, 8, "QKV", 4); srd(a, 12, "wphi", 4); srd(a, 16, "PQ", 4, size=32*MB)
    a("s_and_b32 s28, s2, 31\ns_lshr_b32 s29, s2, 5\ns_and_b32 s30, s29, 31\ns_lshr_b32 s31, s29, 5")
    a("s_lshl_b32 s32, s28, 6\nv_add_u32 v1, s32, v0\ns_mov_b32 s33, 3456\nv_mul_lo_u32 v2, v1, s33\ns_mul_i32 s34, s29, 36")
    for i in range(9): a(f"buffer_load_dword v{10+i}, v2, s[8:11], s34 offen offset:{4*i}")
    a("s_waitcnt vmcnt(0)")
    for i in range(9): a(f"v_lshlrev_b32 v{20+2*i}, 16, v{10+i}\nv_and_b32 v{21+2*i}, 0xffff0000, v{10+i}")
    for i in range(18): a(f"v_mov_b32 v{40+i}, 0")
    a("s_mul_i32 s35, s30, 648\nv_mov_b32 v3, 0")
    for d in range(18):
        for i in range(9): a(f"buffer_load_dword v{10+i}, v3, s[12:15], s35 offen offset:{36*d+4*i}")
        a("s_waitcnt vmcnt(0)")
        for i in range(9):
            a(f"v_lshlrev_b32 v4, 16, v{10+i}\nv_fmac_f32 v{40+2*i}, v{20+d}, v4\nv_and_b32 v4, 0xffff0000, v{10+i}\nv_fmac_f32 v{41+2*i}, v{20+d}, v4")
    a("s_mov_b32 s33, 4608\nv_mul_lo_u32 v2, v1, s33\ns_mul_i32 s34, s30, 144\ns_lshl_b32 s36, s31, 24\ns_add_u32 s34, s34, s36")
    for sg in range(2):
        if sg:
            for i in range(18): a(f"v_sub_f32 v{40+i}, 0, v{40+i}")
        a("v_mov_b32 v5, v40")
        for i in range(1, 18): a(f"v_max_f32 v5, v5, v{40+i}")
        a("v_mov_b32 v6, 0")
        for i in range(18):
            a(f"v_sub_f32 v{60+i}, v{40+i}, v5\nv_mul_f32 v{60+i}, 0x3fb8aa3b, v{60+i}\nv_exp_f32 v{60+i}, v{60+i}\nv_add_f32 v6, v6, v{60+i}")
        a("v_rcp_f32 v6, v6")
        for i in range(18):
            a(f"v_mul_f32 v{60+i}, v{60+i}, v6\nbuffer_store_dword v{60+i}, v2, s[16:19], s34 offen offset:{72*sg+4*i}")
        a("s_waitcnt vmcnt(0)")
    a(f"{name}_end:\ns_endpgm")
    return (name, 2048, 64, 0), kernel_text(name, a)

def k_kv(name):
    a = Asm()
    a(f"s_cmp_ge_u32 s2, 1152\ns_cbranch_scc1 {name}_end")
    srd(a, 8, "QKV", 4); srd(a, 12, "PK", 4); srd(a, 16, "KV", 4)
    a("s_and_b32 s28, s2, 31\ns_lshr_b32 s29, s2, 5")
    a("s_mov_b32 s33, 3456\nv_mul_lo_u32 v2, v0, s33\ns_mov_b32 s33, 4608\nv_mul_lo_u32 v3, v0, s33")
    a("s_mul_i32 s34, s28, 36\ns_add_u32 s34, s34, 2304\ns_mul_i32 s35, s28, 144\ns_lshl_b32 s36, s29, 2\ns_add_u32 s35, s35, s36")
    for i in range(19): a(f"v_mov_b32 v{40+i}, 0")
    a(f"s_mov_b32 s37, 0\n{name}_loop:")
    for i in range(9): a(f"buffer_load_dword v{10+i}, v2, s[8:11], s34 offen offset:{4*i}")
    a("buffer_load_dword v4, v3, s[12:15], s35 offen\ns_waitcnt vmcnt(0)")
    for i in range(9):
        a(f"v_lshlrev_b32 v5, 16, v{10+i}\nv_fmac_f32 v{40+2*i}, v4, v5\nv_and_b32 v5, 0xffff0000, v{10+i}\nv_fmac_f32 v{41+2*i}, v4, v5")
    a("v_add_f32 v58, v58, v4")
    a(f"s_add_u32 s34, s34, {64*3456}\ns_add_u32 s35, s35, {64*4608}\ns_add_u32 s37, s37, 1\ns_cmp_lt_u32 s37, 32\ns_cbranch_scc1 {name}_loop")
    for m in (1, 2, 4, 8, 16, 32):
        a(f"v_xor_b32 v30, {m}, v0\nv_lshlrev_b32 v30, 2, v30")
        for i in range(19):
            a(f"ds_bpermute_b32 v31, v30, v{40+i}\ns_waitcnt lgkmcnt(0)\nv_add_f32 v{40+i}, v{40+i}, v31")
    a("s_mul_i32 s34, s28, 36\ns_add_u32 s34, s34, s29\ns_mul_i32 s34, s34, 80\nv_mov_b32 v2, 0")
    for i in range(19): a(f"buffer_store_dword v{40+i}, v2, s[16:19], s34 offen offset:{4*i}")
    a(f"{name}_end:\ns_endpgm")
    return (name, 1152, 64, 0), kernel_text(name, a)

def k_o(name):
    a = Asm()
    a(f"s_cmp_ge_u32 s2, 1024\ns_cbranch_scc1 {name}_end")
    srd(a, 8, "PQ", 4); srd(a, 12, "KV", 4); srd(a, 16, "O", 4)
    a("s_and_b32 s28, s2, 31\ns_lshr_b32 s29, s2, 5")
    a("s_lshl_b32 s32, s28, 6\nv_add_u32 v1, s32, v0\ns_mov_b32 s33, 4608\nv_mul_lo_u32 v2, v1, s33\ns_mul_i32 s34, s29, 144\ns_mul_i32 s35, s29, 2880\nv_mov_b32 v3, 0")
    for i in range(19): a(f"v_mov_b32 v{40+i}, 0")
    a(f"s_mov_b32 s37, 0\n{name}_loop:")
    a("buffer_load_dword v4, v2, s[8:11], s34 offen")
    for i in range(19): a(f"buffer_load_dword v{10+i}, v3, s[12:15], s35 offen offset:{4*i}")
    a("s_waitcnt vmcnt(0)")
    for i in range(19): a(f"v_fmac_f32 v{40+i}, v4, v{10+i}")
    a(f"s_add_u32 s34, s34, 4\ns_add_u32 s35, s35, 80\ns_add_u32 s37, s37, 1\ns_cmp_lt_u32 s37, 36\ns_cbranch_scc1 {name}_loop")
    a("v_add_f32 v58, 0x358637bd, v58\nv_rcp_f32 v58, v58")
    for i in range(18): a(f"v_mul_f32 v{40+i}, v{40+i}, v58")
    a("s_mov_b32 s33, 1152\nv_mul_lo_u32 v2, v1, s33\ns_mul_i32 s34, s29, 36")
    for i in range(9):
        a(f"v_cvt_pk_bf16_f32 v{10+i}, v{40+2*i}, v{41+2*i}\nbuffer_store_dword v{10+i}, v2, s[16:19], s34 offen offset:{4*i}")
    a(f"{name}_end:\ns_endpgm")
    return (name, 1024, 64, 0), kernel_text(name, a)

def k_empty(name):
    a = Asm()
    a("s_endpgm")
    return (name, 256, 256, 0), kernel_text(name, a)

def build(nempty=0):
    ks = [k_ln("ln1_kernel", "x", "XN"),
          k_gemm("qkv_kernel", "XN", 576, "wqkv", 1728, "QKV"),
          k_phi("phi_kernel"), k_kv("kv_kernel"), k_o("o_kernel"),
          k_gemm("wo_kernel", "O", 576, "wo", 576, "H", res="x"),
          k_ln("ln2_kernel", "H", "HN"),
          k_gemm("gu_kernel", "HN", 576, "wg", 4608, "HH", w2="wu"),
          k_gemm("dn_kernel", "HH", 4608, "wd", 576, "out", res="H")]
    launches = [k[0] for k in ks]
    if nempty:
        e = k_empty("empty_kernel"); ks.append(e)
        launches = launches + [e[0]] * nempty
    return file_text(launches, [k[1] for k in ks])

if __name__ == "__main__":
    open("naive0.s", "w").write(build(0))
    open("naive20.s", "w").write(build(20))
    open("naive40.s", "w").write(build(40))
```

```python
import naive
from naive import srd
from asmlib import *
AMP = 20
def spin(a, name):
    a("s_waitcnt lgkmcnt(0)\ns_sub_u32 s44, s42, s40\ns_min_u32 s44, s44, 5000")
    a(f"s_mul_i32 s44, s44, {AMP}")
    a(f"{name}_spin:\ns_memrealtime s[46:47]\ns_waitcnt lgkmcnt(0)\ns_sub_u32 s45, s46, s42\ns_cmp_lt_u32 s45, s44\ns_cbranch_scc1 {name}_spin")

def k_probe_read(name, bufs, per_wg_kb, amp=True):
    a = Asm()
    a(f"s_cmp_ge_u32 s2, 256\ns_cbranch_scc1 {name}_end")
    for i, b in enumerate(bufs): srd(a, 8 + 4 * i, b, 4)
    a(f"s_mul_i32 s3, s2, {per_wg_kb*1024}\nv_lshlrev_b32 v1, 4, v0")
    a("s_barrier\ns_memrealtime s[40:41]\ns_waitcnt lgkmcnt(0)")
    r = 4
    for i, b in enumerate(bufs):
        for j in range((per_wg_kb + 3) // 4):
            a(f"s_add_u32 s6, s3, {j*4096}\nbuffer_load_dwordx4 v[{r}:{r+3}], v1, s[{8+4*i}:{11+4*i}], s6 offen")
            r += 4
    a("s_waitcnt vmcnt(0)\ns_barrier\ns_memrealtime s[42:43]")
    if amp: spin(a, name)
    a(f"{name}_end:\ns_endpgm")
    return (name, 256, 256, 0), kernel_text(name, a)

def k_probe_code(name, kb):
    a = Asm()
    a(f"s_cmp_ge_u32 s2, 256\ns_cbranch_scc1 {name}_end")
    a("s_memrealtime s[40:41]\ns_waitcnt lgkmcnt(0)")
    for i in range(kb * 128): a("v_add3_u32 v1, v2, v3, v4")
    a("s_memrealtime s[42:43]")
    spin(a, name)
    a(f"{name}_end:\ns_endpgm")
    return (name, 256, 256, 0), kernel_text(name, a)

def build(front):
    ks = [naive.k_ln("ln1_kernel", "x", "XN"),
          naive.k_gemm("qkv_kernel", "XN", 576, "wqkv", 1728, "QKV"),
          naive.k_phi("phi_kernel"), naive.k_kv("kv_kernel"), naive.k_o("o_kernel"),
          naive.k_gemm("wo_kernel", "O", 576, "wo", 576, "H", res="x"),
          naive.k_ln("ln2_kernel", "H", "HN"),
          naive.k_gemm("gu_kernel", "HN", 576, "wg", 4608, "HH", w2="wu"),
          naive.k_gemm("dn_kernel", "HH", 4608, "wd", 576, "out", res="H")]
    launches = [k[0] for k in front] + [k[0] for k in ks]
    seen = set(); allk = []
    for k in front + ks:
        if k[0][0] not in seen: seen.add(k[0][0]); allk.append(k[1])
    return file_text(launches, allk)
if __name__ == "__main__":
    open("p1.s", "w").write(build([k_probe_read("pa_kernel", ["wg", "wu", "wd"], 20)]))
    open("p2.s", "w").write(build([k_probe_read("pb_kernel", ["wg", "wu", "wd"], 20, amp=False), k_probe_read("pa_kernel", ["wg", "wu", "wd"], 20)]))
    open("p3.s", "w").write(build([k_probe_read("pa_kernel", ["x"], 8)]))
    open("p4.s", "w").write(build([k_probe_read("pa_kernel", ["HH"], 60)]))
    open("p5.s", "w").write(build([k_probe_code("pc_kernel", 32)]))
    c = k_probe_code("pc_kernel", 32)
    open("p6.s", "w").write(build([c, c]))
```

```python
from probe import *
def k_code2(name, kb, mode, fill="v_add3_u32 v1, v2, v3, v4", per=128):
    a = Asm()
    a(f"s_cmp_ge_u32 s2, 256\ns_cbranch_scc1 {name}_end")
    if mode == 2: a("s_memrealtime s[40:41]\ns_waitcnt lgkmcnt(0)")
    if mode:
        a("s_getpc_b64 s[4:5]\nv_lshlrev_b32 v6, 6, v0")
        for j in range(kb // 16):
            a(f"global_load_dword v{10+j}, v6, s[4:5]\nv_add_u32 v6, 16384, v6")
    if mode == 1: a("s_waitcnt vmcnt(0)\ns_barrier")
    if mode != 2: a("s_memrealtime s[40:41]\ns_waitcnt lgkmcnt(0)")
    for i in range(kb * per): a(fill)
    a("s_memrealtime s[42:43]")
    spin(a, name)
    a(f"{name}_end:\ns_endpgm")
    return (name, 256, 256, 0), kernel_text(name, a)
open("q1.s", "w").write(build([k_code2("pc_kernel", 32, 1)]))
open("q2.s", "w").write(build([k_code2("pc_kernel", 32, 2)]))
mf = "v_mfma_f32_16x16x32_bf16 v[20:23], v[24:27], v[28:31], v[20:23]\nv_add3_u32 v1, v2, v3, v4"
open("q3.s", "w").write(build([k_code2("pc_kernel", 16, 0, mf, 64)]))
open("q4.s", "w").write(build([k_code2("pc_kernel", 16, 1, mf, 64)]))
open("q5.s", "w").write(build([k_code2("pc_kernel", 16, 2, mf, 64)]))
```

```python
import re

TRANS = ("v_exp_f32", "v_log_f32", "v_rcp_f32", "v_rsq_f32", "v_sqrt_f32", "v_sin_f32", "v_cos_f32", "v_rcp_iflag_f32")
REG_RE = re.compile(r"\b([vas])(?:(\d+)|\[(\d+):(\d+)\])")

def regs_of(tok):
    tok = tok.strip()
    out = set()
    for m in REG_RE.finditer(tok):
        k = m.group(1)
        if m.group(2) is not None:
            out.add((k, int(m.group(2))))
        else:
            for i in range(int(m.group(3)), int(m.group(4)) + 1):
                out.add((k, i))
    if re.search(r"\bvcc(_lo|_hi)?\b", tok): out.add(("x", "vcc"))
    if re.search(r"\bexec(_lo|_hi)?\b", tok): out.add(("x", "exec"))
    if re.search(r"\bm0\b", tok): out.add(("x", "m0"))
    return out

def split_ops(s):
    ops, depth, cur = [], 0, ""
    for ch in s:
        if ch in "[(": depth += 1
        if ch in "])": depth -= 1
        if ch == "," and depth == 0:
            ops.append(cur.strip()); cur = ""
        else:
            cur += ch
    if cur.strip(): ops.append(cur.strip())
    return ops

class Ins:
    __slots__ = ("text", "op", "cls", "w", "r", "ops", "srcc", "srcab", "passes", "states", "dpp", "sdwa", "lds_dma", "widestore", "data")
    def __init__(self, text):
        self.text = text
        t = text.split(";")[0].strip()
        parts = t.split(None, 1)
        self.op = op = parts[0]
        rest = parts[1] if len(parts) > 1 else ""
        ops = split_ops(rest)
        self.ops = ops
        self.w, self.r = set(), set()
        self.srcc, self.srcab, self.passes = set(), set(), 0
        self.states = 1
        self.dpp = "_dpp" in op or "row_" in rest or "quad_perm" in rest
        self.sdwa = "_sdwa" in op and "dst_sel:DWORD" not in rest
        self.lds_dma = False; self.widestore = False; self.data = set()
        R = [regs_of(o) for o in ops]
        allr = lambda i: set().union(*R[i:]) if len(R) > i else set()
        if op.startswith("v_mfma"):
            self.cls = "mfma"
            self.w = R[0]; self.srcab = R[1] | R[2]; self.srcc = R[3]; self.r = self.srcab | self.srcc
            self.passes = 8 if "32x32" in op else 4
        elif op.startswith("v_cmpx"):
            raise Exception("v_cmpx not supported by linter")
        elif op.startswith("v_cmp"):
            self.cls = "valu"; self.w = R[0]; self.r = allr(1)
        elif op.startswith("v_readfirstlane") or op.startswith("v_readlane"):
            self.cls = "valu"; self.w = R[0]; self.r = allr(1)
        elif op.startswith("v_permlane") and "swap" in op:
            self.cls = "valu"; self.w = R[0] | R[1]; self.r = R[0] | R[1]
        elif op.startswith("v_add_co") or op.startswith("v_addc_co") or op.startswith("v_sub_co") or op.startswith("v_subb_co") or op.startswith("v_div_scale") or op.startswith("v_mad_u64"):
            self.cls = "valu"; self.w = R[0] | R[1]; self.r = allr(2)
        elif op.startswith("v_nop"):
            self.cls = "valu"
        elif op.startswith("v_"):
            self.cls = "valu"; self.w = R[0]; self.r = allr(1)
            if op.startswith(("v_fmac", "v_dot2c", "v_pk_fmac", "v_writelane")) or self.dpp or self.sdwa or "d16" in op:
                self.r |= R[0]
            if op.startswith("v_div_fmas"): self.r.add(("x", "vcc"))
        elif op.startswith("ds_"):
            self.cls = "ds"
            if op.startswith(("ds_read", "ds_bpermute", "ds_permute", "ds_swizzle")) or "_rtn" in op:
                self.w = R[0]; self.r = allr(1)
                if "d16" in op: self.r |= R[0]
            else:
                self.r = allr(0)
        elif op.startswith(("buffer_", "global_")):
            self.cls = "vmem"
            if op in ("buffer_wbl2", "buffer_inv"):
                pass
            elif re.search(r"\blds\b", rest) or "load_lds" in op:
                self.lds_dma = True; self.r = allr(0) | {("x", "m0")}
            elif "_load" in op:
                self.w = R[0]; self.r = allr(1)
                if "d16" in op: self.r |= R[0]
            elif "atomic" in op:
                if op.startswith("buffer_"):
                    self.r = allr(0)
                    if re.search(r"\bsc0\b", rest): self.w = R[0]
                else:
                    if re.search(r"\bsc0\b", rest): self.w = R[0]; self.r = allr(1)
                    else: self.r = allr(0)
            else:
                self.r = allr(0)
                self.data = R[0] if op.startswith("buffer_") else R[1]
                if "x3" in op or "x4" in op: self.widestore = True
        elif op.startswith(("s_load", "s_buffer_load", "s_memtime", "s_memrealtime", "s_atomic")):
            self.cls = "smem"; self.w = R[0]; self.r = allr(1)
        elif op == "s_nop":
            self.cls = "nop"; self.states = int(ops[0], 0) + 1
        elif op.startswith(("s_waitcnt", "s_barrier", "s_endpgm", "s_setprio", "s_sleep", "s_branch", "s_cbranch")):
            self.cls = "ctl"
            if "vcc" in op: self.r = {("x", "vcc")}
            if "exec" in op: self.r = {("x", "exec")}
        elif op.startswith("s_cmp") or op.startswith("s_bitcmp"):
            self.cls = "salu"; self.r = allr(0)
        elif op.startswith("s_"):
            self.cls = "salu"; self.w = R[0] if R else set(); self.r = allr(1)
            if "saveexec" in op: self.w = self.w | {("x", "exec")}; self.r = self.r | {("x", "exec")}
            if op.startswith(("s_addk", "s_mulk", "s_cmov")): self.r |= R[0]
        else:
            raise Exception("unknown instruction: " + text)

def is_vec(rs): return {r for r in rs if r[0] in "va"}
def is_sc(rs): return {r for r in rs if r[0] == "s" or r == ("x", "vcc")}

def need(p, c):
    n = 0
    if p.cls == "valu":
        wv, ws = is_vec(p.w), is_sc(p.w)
        if wv:
            if c.cls == "mfma" and wv & c.r: n = max(n, 2)
            if c.cls == "valu":
                if c.op.startswith(("v_readlane", "v_readfirstlane")) and wv & c.r: n = max(n, 1)
                if c.dpp and wv & c.r: n = max(n, 2)
                if c.op.startswith("v_permlane") and wv & c.r: n = max(n, 2)
                if p.op.startswith(TRANS) and wv & c.r: n = max(n, 1)
                if p.sdwa and wv & (c.r | c.w): n = max(n, 1)
            if p.op.startswith("v_dot"):
                if wv & (c.r | c.w):
                    same_c = c.op == p.op and not (wv & (regs_of(c.ops[1]) | regs_of(c.ops[2])))
                    if not same_c: n = max(n, 3)
        if ws:
            if c.cls == "valu" and ws & c.r:
                n = max(n, 4 if c.op.startswith(("v_readlane", "v_writelane", "v_div_fmas")) else 2)
            if c.cls == "mfma" and ws & c.r: n = max(n, 2)
            if c.cls == "vmem" and ws & c.r: n = max(n, 5)
            if c.cls in ("salu", "smem") and ws & c.r: n = max(n, 3)
            if c.cls == "ctl" and ws & c.r: n = max(n, 3)
    if p.cls == "mfma":
        d = p.w
        big = p.passes == 8
        if c.cls == "mfma":
            if d & c.srcab: n = max(n, 12 if big else 8)
            if d & c.srcc:
                if not (c.srcc == d and c.passes == p.passes): n = max(n, 10 if big else 6)
            elif d & c.w:
                n = max(n, 10 if big else 6)
        elif c.cls in ("valu", "vmem", "ds"):
            if d & (c.r | c.w): n = max(n, 12 if big else 8)
        if c.cls == "valu" and p.srcc & c.w: n = max(n, 7 if big else 3)
    if p.cls == "vmem" and p.widestore:
        if p.data & c.w: n = max(n, 2 if c.cls in ("valu", "mfma") else 1)
    if p.cls == "salu" and ("x", "m0") in p.w:
        if c.lds_dma or "addtid" in c.op or c.op.startswith("s_movrel"): n = max(n, 1)
    return n

MAXD = 13

class Asm:
    def __init__(self):
        self.items = []
    def resolve_waits(self):
        out = []; vml = []; lgl = []
        total = {}
        for it in self.items:
            if isinstance(it, Ins):
                for tg in re.findall(r"@(\S+)", it.text): total[tg] = total.get(tg, 0) + 1
        vmdone = lgdone = 0
        for it in self.items:
            if isinstance(it, str) and it.startswith(("WAITVM", "WAITLG")):
                toks = it.split()
                parts = {}
                i = 0
                while i < len(toks):
                    kind, tag = toks[i], toks[i+1]; i += 2
                    q = vml if kind == "WAITVM" else lgl
                    idx = [n for n, t in enumerate(q) if tag in t]
                    assert idx, "no op tagged " + tag
                    assert len(idx) == total[tag], f"wait on {tag} placed before all its ops were issued"
                    last = idx[-1] + 1
                    done = vmdone if kind == "WAITVM" else lgdone
                    if last <= done: continue
                    n = len(q) - last
                    mx = 63 if kind == "WAITVM" else 15
                    n = min(n, mx)
                    if kind == "WAITVM": vmdone = len(q) - n; parts["vmcnt"] = n
                    else: lgdone = len(q) - n; parts["lgkmcnt"] = n
                if parts: out.append(Ins("s_waitcnt " + " ".join(f"{k}({v})" for k, v in parts.items())))
                continue
            if isinstance(it, Ins):
                tags = re.findall(r"@(\S+)", it.text)
                if it.cls == "vmem": vml.append(tags)
                elif it.cls in ("ds", "smem"): lgl.append(tags)
                elif it.op == "s_waitcnt":
                    m = re.search(r"vmcnt\((\d+)\)", it.text)
                    if m: vmdone = max(vmdone, len(vml) - int(m.group(1)))
                    m = re.search(r"lgkmcnt\((\d+)\)", it.text)
                    if m: lgdone = max(lgdone, len(lgl) - int(m.group(1)))
            out.append(it)
        self.items = out
    def __call__(self, s):
        for line in s.split("\n"):
            t = line.strip()
            if not t: continue
            if t.startswith((";", ".", "WAITVM", "WAITLG")) or re.match(r"^[\w.$]+:$", t):
                self.items.append(t)
            else:
                self.items.append(Ins(t))
    def raw(self, s): self.items.append(s)
    def pad(self):
        changed = True
        total = 0
        while changed:
            changed = False
            items = self.items
            labels = {it[:-1]: i for i, it in enumerate(items) if isinstance(it, str) and it.endswith(":") and not it.startswith(";")}
            brs = {}
            for i, it in enumerate(items):
                if isinstance(it, Ins) and it.op.startswith(("s_branch", "s_cbranch")):
                    brs.setdefault(it.ops[0], []).append(i)
            def back(i, dist, c, acc):
                j = i - 1
                while j >= 0 and dist < MAXD:
                    it = items[j]
                    if isinstance(it, str):
                        if it.endswith(":") and it[:-1] in brs:
                            for b in brs[it[:-1]]:
                                back(b, dist + 1, c, acc)
                        j -= 1; continue
                    if it.op in ("s_branch", "s_endpgm"): return
                    nd = need(it, c)
                    if nd > dist: acc[0] = max(acc[0], nd - dist)
                    dist += it.states
                    j -= 1
            out = []
            for i, it in enumerate(items):
                if isinstance(it, Ins) and it.cls not in ("nop",):
                    acc = [0]
                    back(i, 0, it, acc)
                    if acc[0] > 0:
                        items.insert(i, Ins(f"s_nop {acc[0]-1}"))
                        total += acc[0]
                        changed = True
                        break
        return total
    def pad_fast(self):
        total = 0
        for _ in range(50):
            items = self.items
            brs = {}
            for i, it in enumerate(items):
                if isinstance(it, Ins) and it.op.startswith(("s_branch", "s_cbranch")):
                    brs.setdefault(it.ops[0], []).append(i)
            extra = {}
            def back(i, dist, c, acc):
                j = i - 1
                while j >= 0 and dist < MAXD:
                    it = items[j]
                    if isinstance(it, str):
                        if it.endswith(":") and it[:-1] in brs:
                            for b in brs[it[:-1]]:
                                back(b, dist + 1 + extra.get(b, 0), c, acc)
                        j -= 1; continue
                    if it.op in ("s_branch", "s_endpgm"): return
                    nd = need(it, c)
                    if nd > dist: acc[0] = max(acc[0], nd - dist)
                    dist += it.states + extra.get(j, 0)
                    j -= 1
            for i, it in enumerate(items):
                if isinstance(it, Ins) and it.cls != "nop":
                    acc = [0]
                    back(i, 0, it, acc)
                    if acc[0] > 0: extra[i] = acc[0]
            if not extra: return total
            new = []
            for i, it in enumerate(items):
                if i in extra:
                    new.append(Ins(f"s_nop {extra[i]-1}")); total += extra[i]
                new.append(it)
            self.items = new
        raise Exception("pad did not converge")
    def verify_waits(self, name=""):
        items = self.items
        labels = {it[:-1]: i for i, it in enumerate(items) if isinstance(it, str) and it.endswith(":") and not it.startswith(";")}
        vm, lg = [], []
        taken = set()
        i = 0; errs = []
        while i < len(items):
            it = items[i]
            if isinstance(it, str): i += 1; continue
            if it.op == "s_endpgm":
                vm, lg = [], []; i += 1; continue
            if it.op == "s_waitcnt":
                t = it.text
                m = re.search(r"vmcnt\((\d+)\)", t)
                if m:
                    n = int(m.group(1)); assert n <= 63, t
                    while len(vm) > n: vm.pop(0)
                m = re.search(r"lgkmcnt\((\d+)\)", t)
                if m:
                    n = int(m.group(1)); assert n <= 15, t
                    if any(k == "smem" for _, _, k in lg):
                        if n == 0: lg = []
                    else:
                        while len(lg) > n: lg.pop(0)
                i += 1; continue
            touched = it.r | it.w
            for q in (vm, lg):
                for d, t, k in q:
                    if d & touched:
                        if not (d & it.r) and ((q is vm and it.cls == "vmem") or (q is lg and it.cls == "ds" and k == "ds")): continue
                        errs.append(f"{name}: '{it.text}' touches result of un-waited '{t}'")
            if it.cls == "vmem": vm.append((it.w, it.text, "vm"))
            elif it.cls == "ds": lg.append((it.w, it.text, "ds"))
            elif it.cls == "smem": lg.append((it.w, it.text, "smem"))
            if it.op.startswith(("s_branch", "s_cbranch")):
                tgt = labels[it.ops[0]]
                if tgt < i and i not in taken:
                    taken.add(i); i = tgt; continue
                if it.op == "s_branch" and tgt > i:
                    i = tgt; continue
            i += 1
        return errs
    def text(self):
        out = []
        for it in self.items:
            out.append(it if isinstance(it, str) else "  " + it.text.split(";")[0].rstrip())
        return "\n".join(out) + "\n"
    def maxregs(self):
        mv = ma = ms = -1
        for it in self.items:
            if isinstance(it, Ins):
                for k, n in it.r | it.w:
                    if k == "v": mv = max(mv, n)
                    if k == "a": ma = max(ma, n)
                    if k == "s": ms = max(ms, n)
        return mv + 1, ma + 1, ms + 1

def kernel_text(name, a, force_vgpr=None):
    a.resolve_waits()
    npad = a.pad_fast()
    errs = a.verify_waits(name)
    if errs:
        for e in errs[:20]: print("WAIT ERROR", e)
        raise Exception("waitcnt verification failed")
    nv, na, ns = a.maxregs()
    acc_off = max(4, (nv + 3) // 4 * 4)
    nfv = acc_off + na if na else max(nv, 1)
    if force_vgpr: nfv = max(nfv, force_vgpr)
    assert nv <= 256 and na <= 256 and ns <= 102, (nv, na, ns)
    code = f".globl {name}\n.p2align 8\n.type {name},@function\n{name}:\n" + a.text()
    desc = f""".p2align 6
.amdhsa_kernel {name}
  .amdhsa_next_free_vgpr {nfv}
  .amdhsa_next_free_sgpr {max(ns, 8)}
  .amdhsa_accum_offset {acc_off}
  .amdhsa_group_segment_fixed_size 0
  .amdhsa_kernarg_size 88
  .amdhsa_user_sgpr_count 2
  .amdhsa_user_sgpr_kernarg_segment_ptr 1
  .amdhsa_system_sgpr_workgroup_id_x 1
  .amdhsa_float_denorm_mode_32 3
.end_amdhsa_kernel
"""
    ninst = sum(isinstance(it, Ins) for it in a.items)
    print(f"  {name}: {ninst} instr, v{nv} a{na} s{ns}, nop states inserted {npad}")
    return code, desc

def file_text(header_launches, kernels):
    out = ""
    for n, g, b, lds in header_launches:
        out += f"; @launch kernel={n} grid=({g},1,1) block=({b},1,1) lds={lds}\n"
    out += '.amdgcn_target "amdgcn-amd-amdhsa--gfx950"\n.text\n'
    for c, d in kernels: out += c
    out += '.section .rodata,"a"\n'
    for c, d in kernels: out += d
    return out


class Sched:
    def __init__(self, cap=2):
        self.mf = []; self.cap = cap
        self.streams = {}
        self.fixed = {}
        self.order = []
    def n(self): return len(self.mf)
    def mfma(self, t): self.mf.append(t); return len(self.mf) - 1
    def fix(self, slot, t): self.fixed.setdefault(slot, []).append(t)
    def add(self, stream, earliest, deadline, t, cost=1):
        if stream not in self.streams: self.streams[stream] = []; self.order.append(stream)
        self.streams[stream].append([earliest, deadline, t, cost])
    def emit(self, a, prio=None):
        prio = prio or self.order
        for s in self.order:
            assert s in prio, s
        pos = {s: 0 for s in self.order}
        late = 0
        N = len(self.mf)
        for slot in range(N + 1):
            fx = self.fixed.get(slot, [])
            used = sum(len(t.strip().split("\n")) for t in fx)
            for s in prio:
                q = self.streams.get(s, [])
                k = pos[s]; lastforced = -1
                for j in range(pos[s], len(q)):
                    if q[j][1] is not None and q[j][1] <= slot: lastforced = j
                    if j > pos[s] + 400: break
                while pos[s] <= lastforced or (slot == N and pos[s] < len(q)):
                    e = q[pos[s]]
                    assert e[0] <= slot or slot == N, ("deadline before earliest", s, e, slot)
                    a(e[2]); used += e[3]; pos[s] += 1
                    if used > self.cap and slot < N: late += 1
            progress = True
            while progress and used < self.cap and slot < N:
                progress = False
                for s in prio:
                    q = self.streams.get(s, [])
                    if pos[s] < len(q) and q[pos[s]][0] <= slot and (used + q[pos[s]][3] <= self.cap or used == 0):
                        e = q[pos[s]]; a(e[2]); used += e[3]; pos[s] += 1; progress = True
                        break
            for t in fx: a(t)
            if slot < N: a(self.mf[slot])
        return late
```

```python
from common import *
MF16 = "v_mfma_f32_16x16x16_bf16"
OOB = 0x40000000
NLEAD = 6

WKV, XR, PHI, ZERO = 0, 92160, 157696, 160576
FK, VI = 0, 20480
WO, WO8, KVI, WBL = 0, 73728, 86016, 90112
XRES, XRES8 = 14336, 2560
QOFF = (4096, 6656, 9216, 11776, 0)

def a_regs():
    r = R()
    r.SX, r.SQ, r.SP, r.SO, r.SW, r.SDB = 12, 16, 20, 24, 28, 32
    r.sWv = 3
    r.sHP, r.sTB, r.sRot, r.sC, r.sXb, r.sWb, r.sXm, r.sWm = 36, 37, 38, 39, 40, 41, 42, 43
    r.sT = 44
    r.sF1, r.sKVP, r.sWS = 52, 53, 54
    r.sB, r.sTT, r.sBT = 67, 72, 68
    r.L = 1; r.J = 2; r.C = 3
    r.XD = 4
    r.WD = 6
    r.XRD = 9
    r.TW = 11
    r.AT = 15; r.FL = 16; r.ONE = 17; r.T = 18
    r.ONES = 24
    r.WF = 28
    r.AK = 108
    r.AS = 168
    r.RS = 184; r.NM = 186
    r.PK = 188
    r.FQ = 208
    r.aX = 0; r.aPH = 144; r.aP = 176; r.aSEL = 240
    return r

def xa(r, p, t): return vr(r.aX + 8 * p + 4 * t, 4, "a")

def phase_a(a, r, st, slow, light_first=True):
    T, V = r.sT, r.T; w = r.sWv
    a(f"""s_load_dwordx8 s[4:11], s[0:1], 0
    s_load_dwordx4 s[68:71], s[0:1], {ARG['dbg']}
    v_and_b32 v{r.L}, 63, v0
    v_lshrrev_b32 v{V}, 6, v0
    v_and_b32 v{r.J}, 15, v0
    v_readfirstlane_b32 s{w}, v{V}
    v_bfe_u32 v{r.C}, v0, 4, 2
    s_and_b32 s{T}, s2, 7
    s_lshl_b32 s{T}, s{T}, 1
    s_bfe_u32 s{T+1}, s2, 0x10003
    s_add_u32 s{r.sHP}, s{T}, s{T+1}
    s_lshr_b32 s{r.sTB}, s2, 4
    s_lshl_b32 s{T}, s{r.sHP}, 2
    s_add_u32 s{T}, s{T}, s{r.sTB}
    s_mul_i32 s{T+1}, s{T}, 57
    s_lshr_b32 s{T+1}, s{T+1}, 9
    s_mul_i32 s{T+1}, s{T+1}, 9
    s_sub_u32 s{r.sRot}, s{T}, s{T+1}
    s_mov_b32 s{r.sC}, s{r.sRot}""")
    a(f"""v_lshrrev_b32 v{V}, 3, v{r.L}
    v_and_b32 v{V+1}, 7, v{r.L}
    v_xor_b32 v{V+1}, v{V+1}, v{r.C}
    v_mul_u32_u24 v{V+2}, 1152, v{V}
    v_lshl_add_u32 v{r.XD}, v{V+1}, 4, v{V+2}
    v_xor_b32 v{V+1}, 4, v{V+1}
    v_lshl_add_u32 v{r.XD+1}, v{V+1}, 4, v{V+2}
    v_add_u32 v{r.XD+1}, {8*1152-1024}, v{r.XD+1}""")
    def wd(mstride):
        for p in range(3):
            a(f"""v_add_u32 v{V}, {64*p}, v{r.L}
            v_mul_u32_u24 v{V+1}, 205, v{V}
            v_lshrrev_b32 v{V+1}, 10, v{V+1}
            v_mul_u32_u24 v{V+2}, 5, v{V+1}
            v_sub_u32 v{V}, v{V}, v{V+2}
            v_lshlrev_b32 v{V}, 4, v{V}
            v_and_b32 v{V+2}, 1, v{V+1}
            v_mul_u32_u24 v{V+2}, {mstride}, v{V+2}
            v_add_u32 v{V}, v{V}, v{V+2}
            v_bfe_u32 v{V+2}, v{V+1}, 1, 2
            v_and_b32 v{V+1}, 0x38, v{V+1}
            v_add_u32 v{V+1}, v{V+1}, v{V+2}
            v_mul_u32_u24 v{V+1}, 3456, v{V+1}
            v_add_u32 v{r.WD+p}, v{V}, v{V+1}""")
            if p: a(f"v_subrev_u32 v{r.WD+p}, {1024*p}, v{r.WD+p}")
    wd(1152)
    a(f"""s_lshl_b32 s{T}, s{r.sTB}, 2
    s_add_u32 s{T}, s{T}, s{w}
    s_mul_i32 s{r.sXb}, s{T}, {32*1152}
    s_lshr_b32 s{T}, s{w}, 1
    s_mul_i32 s{T}, s{T}, {32*3456}
    s_and_b32 s{T+1}, s{w}, 1
    s_mul_i32 s{T+1}, s{T+1}, {4*3456}
    s_add_u32 s{T}, s{T}, s{T+1}
    s_mul_i32 s{T+1}, s{r.sHP}, 72
    s_add_u32 s{T}, s{T}, s{T+1}
    s_add_u32 s{r.sWb}, s{T}, 1152
    s_lshl_b32 s{r.sXm}, s{w}, 14
    s_add_u32 s{r.sXm}, s{r.sXm}, {XR}
    s_mul_i32 s{r.sWm}, s{w}, 2560
    v_cmp_eq_u32 vcc, 0, v{r.L}
    v_mov_b32 v{V}, {OOB}
    v_mov_b32 v{r.ONE}, 1
    v_cndmask_b32 v{r.AT}, v{V}, 0, vcc
    s_waitcnt lgkmcnt(0)""")
    mk_srd(a, r.SX, 4, SZ['x']); mk_srd(a, r.SQ, 6, SZ['wqkv']); mk_srd(a, r.SW, 70, 64 * MB)
    def chunk_dma(n):
        o = [f"s_lshl_b32 s{T}, s{r.sC}, 7\ns_add_u32 s{T}, s{T}, s{r.sXb}", f"s_add_u32 s{T+1}, s{T}, {16*1152-2048}\ns_add_u32 m0, s{r.sXm}, {4096*(n%4)}"]
        for i in range(4):
            o.append(f"buffer_load_dwordx4 v{r.XD+i%2}, {srd(r.SX)}, s{T+i//2} offen offset:{1024*i} lds ; @c{n}")
        o.append(f"s_mul_i32 s{T}, s{r.sC}, {64*3456}\ns_add_u32 s{T}, s{T}, s{r.sWb}")
        o.append(f"s_add_u32 m0, s{r.sWm}, {WKV + 10240*n}\ns_add_u32 s{r.sC}, s{r.sC}, 1")
        for p in range(2):
            o.append(f"buffer_load_dwordx4 v{r.WD+p}, {srd(r.SQ)}, s{T} offen offset:{1024*p} lds ; @c{n}")
        o.append(f"s_mov_b32 exec_hi, 0\nbuffer_load_dwordx4 v{r.WD+2}, {srd(r.SQ)}, s{T} offen offset:2048 lds ; @c{n}\ns_mov_b32 exec_hi, -1")
        o.append(f"s_cmp_eq_u32 s{r.sC}, 9\ns_cselect_b32 s{r.sC}, 0, s{r.sC}")
        return o
    for t in chunk_dma(0): a(t)
    mk_srd(a, r.SP, 8, SZ['wphi']); mk_srd(a, r.SO, 10, SZ['wo']); mk_srd(a, r.SDB, 68, 256)
    WB = r.WF
    a(f"""s_lshl_b32 s{T}, s2, 15
    s_add_u32 s{T}, s{T}, {WS['FLAG'][0]}
    s_cmp_lt_u32 s2, {NLEAD}
    s_cselect_b32 s{T}, s{T}, {OOB}
    s_cselect_b32 s{T+7}, 0, {OOB}
    v_lshlrev_b32 v{V}, 7, v0
    v_mov_b32 v{V+1}, 0
    buffer_store_dword v{V+1}, v{V}, {srd(r.SW)}, s{T} offen sc1 ; @clr
    v_lshlrev_b32 v{V}, 2, v0
    s_mul_i32 s{T}, s{r.sHP}, 1296
    buffer_load_dword v{WB+36}, v{V}, {srd(r.SP)}, s{T} offen ; @phi
    buffer_load_dword v{WB+37}, v{V}, {srd(r.SP)}, s{T} offen offset:1024 ; @phi""")
    a(f"""s_lshr_b32 s{T}, s{r.sHP}, 3
    s_xor_b32 s{T}, s{T}, s{r.sHP}
    s_and_b32 s{T}, s{T}, 1
    s_or_b32 s{T}, s{T}, s{w}
    s_lshl_b32 s{T+1}, s{r.sTB}, 3
    s_lshr_b32 s{T+2}, s{r.sHP}, 1
    s_add_u32 s{T+1}, s{T+1}, s{T+2}
    s_cmp_lg_u32 s{T}, 0
    s_cselect_b32 s{T+1}, 72, s{T+1}
    s_lshr_b32 s{T+2}, s{T+1}, 2
    s_and_b32 s{T+3}, s{T+1}, 3
    s_mul_i32 s{T+4}, s{T+2}, 36
    s_lshr_b32 s{T+5}, s{T+3}, 1
    s_mul_i32 s{T+5}, s{T+5}, 18
    s_add_u32 s{T+4}, s{T+4}, s{T+5}
    s_and_b32 s{T+5}, s{T+3}, 1
    s_lshl_b32 s{T+5}, s{T+5}, 2
    s_add_u32 s{T+4}, s{T+4}, s{T+5}
    s_sub_u32 s{T+5}, s{T+1}, 64
    s_mul_i32 s{T+5}, s{T+5}, 72
    s_add_u32 s{T+5}, s{T+5}, 16
    v_lshrrev_b32 v{V}, 3, v{r.L}
    v_and_b32 v{V+1}, 4, v{V}
    v_add_u32 v{V+1}, v{V+1}, v{V}
    v_lshrrev_b32 v{V+2}, 1, v{V}
    v_mul_u32_u24 v{V+2}, 18, v{V+2}
    v_and_b32 v{V+3}, 1, v{V}
    v_add_u32 v{V+2}, v{V+2}, v{V+3}
    s_cmp_lt_u32 s{T+1}, 64
    s_cselect_b32 s{T+4}, s{T+4}, s{T+5}
    s_cselect_b64 vcc, -1, 0
    s_mul_i32 s{T+4}, s{T+4}, 1152
    v_cndmask_b32 v{V+1}, v{V+2}, v{V+1}, vcc
    s_lshl_b32 s{T+6}, s{T+1}, 4
    s_add_u32 s{T+6}, s{T+6}, {WS['WBAR'][0]}
    s_cmp_lt_u32 s{T+1}, 72
    s_cselect_b32 s{T+4}, s{T+4}, {OOB}
    s_cselect_b32 s{T+6}, s{T+6}, {OOB}
    s_cselect_b32 s{r.sWS}, 128, {OOB}
    v_mul_u32_u24 v{V+1}, 1152, v{V+1}
    v_and_b32 v{V+2}, 7, v{r.L}
    v_lshl_add_u32 v{V+1}, v{V+2}, 4, v{V+1}""")
    for i in range(9):
        a(f"buffer_load_dwordx4 {vr(WB+4*i)}, v{V+1}, {srd(r.SO)}, s{T+4} offen offset:{128*i} ; @wb")
    for n in (1, 2, 3):
        for t in chunk_dma(n): a(t)
    a(f"""v_bfe_u32 v{V}, v{r.J}, 1, 3
    v_xor_b32 v{V}, v{V}, v{r.C}
    v_lshlrev_b32 v{V+1}, 7, v{r.J}
    v_add_u32 v{V+1}, s{r.sXm}, v{V+1}
    v_lshl_add_u32 v{r.XRD}, v{V}, 4, v{V+1}
    v_xor_b32 v{r.XRD+1}, 64, v{r.XRD}
    v_lshrrev_b32 v{V}, 2, v{r.L}
    v_mul_u32_u24 v{V}, 160, v{V}
    v_and_b32 v{V+1}, 3, v{r.L}
    v_lshl_add_u32 v{r.TW}, v{V+1}, 3, v{V}
    v_and_b32 v{V+1}, 1, v{r.L}
    v_mul_u32_u24 v{V+1}, 48, v{V+1}
    v_add3_u32 v{r.TW+1}, v{V}, v{V+1}, 64
    v_add_u32 v{r.TW+2}, 51200, v{r.TW}
    v_add_u32 v{r.TW+3}, 51200, v{r.TW+1}""")
    for i in range(4): a(f"v_mov_b32 v{r.ONES+i}, 0x3f803f80")
    a(f"""v_mov_b32 v{r.AS}, 0
    v_mov_b32 v{r.AS+1}, 0
    v_mov_b32 v{r.AS+2}, 0
    v_mov_b32 v{r.AS+3}, 0
    v_lshlrev_b32 v{V}, 4, v0
    v_add_u32 v{V}, {PHI}, v{V}
    ds_write_b128 v{V}, {vr(r.AS)}
    s_waitcnt lgkmcnt(0)
    s_barrier""")
    a("WAITVM phi")
    for i in range(2):
        a(f"""v_add_u32 v{V}, {256*i}, v0
        v_mul_u32_u24 v{V+1}, 7282, v{V}
        v_lshrrev_b32 v{V+1}, 16, v{V+1}
        v_add_u32 v{V+1}, v{V+1}, v{V}
        v_lshlrev_b32 v{V+1}, 2, v{V+1}
        v_add_u32 v{V+1}, {PHI}, v{V+1}
        v_xor_b32 v{V+2}, 0x80008000, v{WB+36+i}""")
        if i: a(f"v_cmp_gt_u32 vcc, 324, v{V}\nv_mov_b32 v{V+3}, {ZERO + 832}\nv_cndmask_b32 v{V+1}, v{V+3}, v{V+1}, vcc")
        a(f"ds_write_b32 v{V+1}, v{WB+36+i}\nds_write_b32 v{V+1}, v{V+2} offset:1440")
    a(f"buffer_atomic_add v{r.ONE}, v{r.AT}, {srd(r.SDB)}, s{T+7} offen sc1")
    a(f"WAITVM wb\nv_mov_b32 v{V}, 0\nv_mov_b32 v{V+1}, 0")
    for i in range(36): a(f"v_dot2_f32_bf16 v{V+i%2}, v{WB+i}, v{r.ONES}, v{V+i%2}")
    a(f"""v_add_f32 v{V}, v{V}, v{V+1}
    v_add_f32_dpp v{V}, v{V}, v{V} quad_perm:[1,0,3,2] row_mask:0xf bank_mask:0xf
    v_add_f32_dpp v{V}, v{V}, v{V} quad_perm:[2,3,0,1] row_mask:0xf bank_mask:0xf
    v_add_f32_dpp v{V}, v{V}, v{V} row_half_mirror row_mask:0xf bank_mask:0xf
    v_mul_f32 v{V}, 0x3ae38e39, v{V}
    v_cvt_pk_bf16_f32 v{V}, v{V}, v{V}
    v_and_b32 v{V+1}, 7, v{r.L}
    v_cmp_eq_u32 vcc, 0, v{V+1}
    v_lshrrev_b32 v{V+1}, 2, v{r.L}
    v_mov_b32 v{V+2}, {OOB}
    v_cndmask_b32 v{V+1}, v{V+2}, v{V+1}, vcc
    buffer_store_short v{V}, v{V+1}, {srd(r.SW)}, s{T+6} offen sc1 ; @wbs""")
    a(st.text("pre"))
    TB = (0, 32, 80, 120)
    def wf(n, ks, T_): return r.WF + 40 * (n % 2) + 20 * ks + 4 * T_
    def ak(T_, t): return r.AK + 12 * T_ + 4 * t
    def reads_kv(n):
        o = []
        for ks in range(2):
            for t in range(2):
                o.append(f"ds_read_b128 {xa(r, 2*n+ks, t)}, v{r.XRD+ks} offset:{4096*(n%4) + 2048*t} ; @r{n}")
            for T_ in range(5):
                for h in range(2):
                    off = WKV + 10240 * n + 5120 * ks + 2560 * h; pg = int(off >= 51200); off -= 51200 * pg
                    ad = r.TW + 2 * pg + (T_ == 4)
                    o.append(f"ds_read_b64_tr_b16 {vr(wf(n,ks,T_)+2*h,2)}, v{ad} offset:{off + (TB[T_] if T_ < 4 else 0)} ; @r{n}")
        return o
    def mf_kv(n):
        o = []
        for T_ in range(5):
            for t in range(3):
                for ks in range(2):
                    acc = vr(ak(T_, t)); b = xa(r, 2*n+ks, t) if t < 2 else vr(r.ONES)
                    o.append(f"{MF} {acc}, {vr(wf(n,ks,T_))}, {b}, {'0' if n+ks == 0 else acc}")
        for t in range(2):
            for g in range(2):
                for ks in range(2):
                    acc = vr(r.AS + 8 * g + 4 * t); x = xa(r, 2*n+ks, t)
                    o.append(f"{MF} {acc}, {x if g else vr(r.ONES)}, {x}, {'0' if n+ks == 0 else acc}")
        return o
    def q_dma(i):
        o = []
        if i < 4: o.append(f"s_lshr_b32 s{T}, s{w}, 1\ns_add_u32 s{T}, s{T}, s{r.sRot}\ns_add_u32 s{T}, s{T}, {2*i}")
        else: o.append(f"s_add_u32 s{T}, s{r.sRot}, 8")
        o.append(f"s_sub_u32 s{T+1}, s{T}, 9\ns_cmp_ge_u32 s{T}, 9\ns_cselect_b32 s{T}, s{T+1}, s{T}")
        o.append(f"s_mul_i32 s{T}, s{T}, {64*3456}\ns_add_u32 s{T}, s{T}, s{r.sWb}\ns_add_u32 m0, s{r.sXm}, {QOFF[i]}")
        for p in range(2):
            o.append(f"buffer_load_dwordx4 v{r.WD+p}, {srd(r.SQ)}, s{T} offen offset:{1024*p} lds ; @wq")
        o.append(f"s_mov_b32 exec_hi, 0\nbuffer_load_dwordx4 v{r.WD+2}, {srd(r.SQ)}, s{T} offen offset:2048 lds ; @wq\ns_mov_b32 exec_hi, -1")
        return o
    def weave(mf, fill, per=1):
        fill = list(fill)
        for m in mf:
            a(m)
            for _ in range(per):
                if fill: a(fill.pop(0))
        for f in fill: a(f)
    for n in range(10):
        fill = []
        if n < 9:
            a(f"WAITVM c{n}\ns_waitcnt lgkmcnt(0)\ns_barrier")
        else:
            a("s_waitcnt lgkmcnt(0)")
        if 1 <= n <= 5: fill += chunk_dma(n + 3)
        if n == 5: fill.append(f"WAITVM wbs\nbuffer_atomic_add v{r.ONE}, v{r.AT}, {srd(r.SDB)}, s{r.sWS} offen sc1")
        if n == 6:
            wd(4 * 3456)
            a(f"s_and_b32 s{T}, s{w}, 1\ns_mul_i32 s{T}, s{T}, {32*3456}\ns_mul_i32 s{T+1}, s{r.sHP}, 72\ns_add_u32 s{r.sWb}, s{T}, s{T+1}")
            fill += q_dma(0)
        if n == 7: fill += q_dma(1) + q_dma(2)
        if n == 8: fill += q_dma(3)
        if n == 9: fill += q_dma(4)
        rd = reads_kv(n) if n < 9 else []
        if n == 0:
            for hh, base in enumerate((0, 16, 32)):
                a(f"""v_lshrrev_b32 v{V}, 2, v{r.L}
                v_add_u32 v{V}, {base}, v{V}
                v_mul_u32_u24 v{V+1}, 40, v{V}
                v_and_b32 v{V+2}, 1, v{r.L}
                v_mul_u32_u24 v{V+2}, 1440, v{V+2}
                v_add_u32 v{V+1}, v{V+1}, v{V+2}
                v_add_u32 v{V+1}, {PHI}, v{V+1}
                v_bfe_u32 v{V+2}, v{r.L}, 1, 1
                v_mul_u32_u24 v{V+2}, 18, v{V+2}
                v_sub_u32 v{V}, v{V}, v{V+2}
                v_cmp_gt_u32 vcc, 18, v{V}
                v_mov_b32 v{V+2}, {ZERO}
                v_cndmask_b32 v{V+1}, v{V+2}, v{V+1}, vcc""")
                for T2 in range(5):
                    a(f"ds_read_b64_tr_b16 {vr(r.aPH + 6*T2 + 2*hh, 2, 'a')}, v{V+1} offset:{8*T2} ; @ph")
            a("s_waitcnt lgkmcnt(0)")
        weave(mf_kv(n - 1) if n else [], rd + fill)
    a(st.text("kvg"))
    a(f"buffer_load_dword v{r.FL}, off, {srd(r.SDB)}, 0 sc1 ; @fclr")
    a(f"""v_and_b32 v{V}, 3, v{r.J}
    v_cmp_eq_u32 s[{T}:{T+1}], 1, v{V}
    v_cmp_eq_u32 s[{T+2}:{T+3}], 2, v{V}
    v_cmp_eq_u32 s[{T+4}:{T+5}], 3, v{V}
    v_lshrrev_b32 v{V}, 2, v{r.J}
    v_lshl_add_u32 v{V}, v{V}, 4, v{r.J}
    v_lshlrev_b32 v{V}, 2, v{V}""")
    for t in range(2):
        g = r.AS + 8 + 4 * t
        for e in range(1, 4): a(f"v_cndmask_b32 v{g}, v{g}, v{g+e}, s[{T+2*e-2}:{T+2*e-1}]")
        a(f"ds_bpermute_b32 v{g}, v{V}, v{g}")
    a(f"""s_lshl_b32 s{T}, s{r.sTB}, 2
    s_add_u32 s{T}, s{T}, s{w}
    s_lshl_b32 s{T}, s{T}, 7
    s_add_u32 s{T}, s{T}, {WS['MUX'][0]}
    s_cmp_eq_u32 s{r.sHP}, 0
    s_cselect_b32 s{T}, s{T}, {OOB}
    v_lshlrev_b32 v{V+1}, 2, v{r.J}
    s_waitcnt lgkmcnt(0)
    s_barrier""")
    for t in range(2):
        s_, g = r.AS + 4 * t, r.AS + 8 + 4 * t
        a(f"""v_mul_f32 v{s_}, 0x3ae38e39, v{s_}
        v_mov_b32 v{V}, 0x3727c5ac
        v_fmac_f32 v{V}, 0x3ae38e39, v{g}
        v_fma_f32 v{V}, -v{s_}, v{s_}, v{V}
        v_max_f32 v{V}, 0x3727c5ac, v{V}
        v_rsq_f32 v{r.RS+t}, v{V}
        buffer_store_dword v{s_}, v{V+1}, {srd(r.SW)}, s{T} offen offset:{64*t} sc1 ; @mux
        v_mul_f32 v{r.NM+t}, v{s_}, v{r.RS+t}
        v_sub_f32 v{r.NM+t}, 0, v{r.NM+t}""")
    def pk(t, T_): return r.PK + 10 * t + 2 * T_
    def normalize(tiles, accf):
        for T_, dst in tiles:
            for t in range(2):
                g, cs = accf(T_, t), accf(T_, 2)
                for e in range(4):
                    a(f"v_mul_f32 v{g+e}, v{g+e}, v{r.RS+t}\nv_fmac_f32 v{g+e}, v{cs+e}, v{r.NM+t}")
                a(f"v_cvt_pk_bf16_f32 v{pk(t,dst)}, v{g}, v{g+1}\nv_cvt_pk_bf16_f32 v{pk(t,dst)+1}, v{g+2}, v{g+3}")
    P = r.WF
    def stage2():
        for t in range(2):
            for T2 in range(5):
                a(f"{MF} {vr(P+20*t+4*T2)}, {vr(r.aPH+6*T2,4,'a')}, {vr(pk(t,0))}, 0")
        for t in range(2):
            for T2 in range(5):
                a(f"{MF16} {vr(P+20*t+4*T2)}, {vr(r.aPH+6*T2+4,2,'a')}, {vr(pk(t,2),2)}, {vr(P+20*t+4*T2)}")
    def softmax(t):
        p = P + 20 * t; m = V; f = r.FQ + 10 * t
        a(f"v_max3_f32 v{m}, v{p}, v{p+1}, v{p+2}\nv_max3_f32 v{m+1}, v{p+3}, v{p+4}, v{p+5}")
        for i in range(3): a(f"v_max3_f32 v{m}, v{m}, v{p+6+4*i}, v{p+7+4*i}\nv_max3_f32 v{m+1}, v{m+1}, v{p+8+4*i}, v{p+9+4*i}")
        a(f"v_max_f32 v{m}, v{m}, v{m+1}\nv_mul_f32 v{m}, 0xbfb8aa3b, v{m}\nv_mov_b32 v{m+2}, 0x3fb8aa3b")
        for i in range(9): a(f"v_pk_fma_f32 {vr(p+2*i,2)}, {vr(p+2*i,2)}, {vr(m+2,2)}, {vr(m,2)} op_sel_hi:[1,0,0]")
        for i in range(18): a(f"v_exp_f32 v{p+i}, v{p+i}")
        a(f"v_pk_add_f32 {vr(m,2)}, {vr(p,2)}, {vr(p+2,2)}\nv_pk_add_f32 {vr(m+2,2)}, {vr(p+4,2)}, {vr(p+6,2)}")
        for i in range(4, 9): a(f"v_pk_add_f32 {vr(m+2*(i%2),2)}, {vr(m+2*(i%2),2)}, {vr(p+2*i,2)}")
        a(f"v_pk_add_f32 {vr(m,2)}, {vr(m,2)}, {vr(m+2,2)}\nv_add_f32 v{m}, v{m}, v{m+1}\nv_rcp_f32 v{m}, v{m}\nv_mov_b32 v{f+9}, 0")
        for i in range(9):
            a(f"v_pk_mul_f32 {vr(p+2*i,2)}, {vr(p+2*i,2)}, {vr(m,2)} op_sel_hi:[1,0]")
        for i in range(9): a(f"v_cvt_pk_bf16_f32 v{f+i}, v{p+2*i}, v{p+2*i+1}")
    normalize([(0, 0), (1, 1), (4, 2)], ak)
    stage2()
    normalize([(2, 3), (3, 4)], ak)
    AV, AM, AF = r.XD, r.XD + 1, r.XRD
    a(f"""s_lshl_b32 s{T}, s{w}, 5
    v_add_u32 v{V}, s{T}, v{r.J}
    v_mul_u32_u24 v{AV}, 96, v{V}
    v_add_u32 v{V+1}, 3, v{r.C}
    v_and_b32 v{V+1}, 3, v{V+1}
    v_lshl_add_u32 v{AM}, v{V+1}, 3, v{AV}
    v_lshl_add_u32 v{AV}, v{r.C}, 3, v{AV}
    v_mul_u32_u24 v{AF}, 160, v{V}
    v_mul_u32_u24 v{V+1}, 40, v{r.C}
    v_add_u32 v{AF}, v{AF}, v{V+1}
    v_cmp_eq_u32 vcc, 2, v{r.C}
    v_mov_b32 v{V+1}, 0x3f80
    v_cndmask_b32 v{V+1}, 0, v{V+1}, vcc
    v_cmp_eq_u32 vcc, 1, v{r.C}""")
    for t in range(2):
        a(f"""ds_write_b64 v{AV}, {vr(pk(t,3),2)} offset:{VI + 16*96*t}
        ds_write_b64 v{AV}, {vr(pk(t,4),2)} offset:{VI + 16*96*t + 32}
        v_cndmask_b32 v{V+2+2*t}, v{V+1}, v{pk(t,2)}, vcc
        v_cndmask_b32 v{V+3+2*t}, 0, v{pk(t,2)+1}, vcc
        ds_write_b64 v{AM}, {vr(V+2+2*t,2)} offset:{VI + 16*96*t + 64}""")
    a("s_waitcnt lgkmcnt(0)")
    for t in range(2):
        softmax(t)
        for i in range(5): a(f"ds_write_b64 v{AF}, {vr(r.FQ+10*t+2*i,2)} offset:{FK + 16*160*t + 8*i}")
    a(f"""v_lshrrev_b32 v{V}, 2, v{r.L}
    v_and_b32 v{V+1}, 3, v{r.L}
    v_mul_u32_u24 v{AV}, 96, v{V}
    v_lshl_add_u32 v{AV}, v{V+1}, 3, v{AV}
    s_min_u32 s{T}, s{w}, 2
    s_lshl_b32 s{T}, s{T}, 5
    v_add_u32 v{AV}, s{T}, v{AV}
    s_and_b32 s{T+1}, s{w}, 1
    s_lshl_b32 s{T}, s{T+1}, 6
    v_add_u32 v{AF}, s{T}, v{r.TW}
    s_waitcnt lgkmcnt(0)
    s_barrier""")
    F3 = r.WF; A3 = r.AK
    for ks in range(4):
        for h in range(2):
            a(f"ds_read_b64_tr_b16 {vr(F3+16*ks+2*h,2)}, v{AV} offset:{VI + (32*ks+16*h)*96} ; @s3{ks}")
        for i in range(3):
            for h in range(2):
                a(f"ds_read_b64_tr_b16 {vr(F3+16*ks+4+4*i+2*h,2)}, v{AF} offset:{FK + (32*ks+16*h)*160 + 32*i} ; @s3{ks}")
        if ks == 1:
            a(f"""s_mul_i32 s{T+2}, s{T+1}, 1280
            v_mul_u32_u24 v{V}, 160, v{r.C}
            v_add_u32 v{V}, s{T+2}, v{V}
            s_lshl_b32 s{T+2}, s{T+1}, 1
            v_add_u32 v{V+1}, s{T+2}, v{r.J}
            v_subrev_u32 v{V+2}, s{T+2}, v{r.J}
            s_lshl_b32 s{T+3}, s{T+1}, 4
            s_xor_b32 s{T+3}, s{T+3}, 16
            v_cmp_gt_u32 vcc, 2, v{V+2}
            v_add_u32 v{V+2}, s{T+3}, v{V+2}
            v_mov_b32 v{V+3}, {OOB >> 3}
            v_cndmask_b32 v{V+2}, v{V+3}, v{V+2}, vcc
            v_subrev_u32 v{V+3}, 4, v{r.J}
            v_cmp_gt_u32 vcc, 2, v{V+3}
            v_add_u32 v{V+3}, 18, v{V+3}
            v_cndmask_b32 v{V+2}, v{V+2}, v{V+3}, vcc
            s_cmp_lt_u32 s{w}, 2
            s_cselect_b64 vcc, -1, 0
            v_cndmask_b32 v{V+1}, v{V+2}, v{V+1}, vcc
            v_lshl_add_u32 v{V}, v{V+1}, 3, v{V}
            v_lshrrev_b32 v{V+1}, 1, v{r.C}
            v_mov_b32 v{V+3}, {OOB}
            v_cmp_le_u32 vcc, s{T+1}, v{V+1}
            v_cndmask_b32 v{V+4}, v{V+3}, v{V}, vcc
            v_cmp_ge_u32 vcc, s{T+1}, v{V+1}
            v_cndmask_b32 v{V+5}, v{V+3}, v{V}, vcc
            s_lshl_b32 s{T+2}, s{r.sHP}, 16
            s_add_u32 s{r.sKVP}, s{T+2}, {WS['KVP'][0]}
            s_lshl_b32 s{T+2}, s{r.sTB}, 12
            s_add_u32 s{T+2}, s{T+2}, s{r.sKVP}
            s_lshl_b32 s{r.sF1}, s{r.sHP}, 7
            s_add_u32 s{r.sF1}, s{r.sF1}, {WS['FLAG'][0] + F_E1*128}""")
    for ks in range(4):
        a(f"WAITLG s3{ks}")
        for i in range(3):
            acc = vr(A3 + 4 * i)
            a(f"{MF} {acc}, {vr(F3+16*ks+4+4*i)}, {vr(F3+16*ks)}, {'0' if ks == 0 else acc}")
    for c in poll_check(r.FL, r.SDB, T + 6, "0", 4 * NLEAD, "fclr", slow): a(c)
    for i in range(3):
        g = A3 + 4 * i
        a(f"v_cvt_pk_bf16_f32 v{g}, v{g}, v{g+1}\nv_cvt_pk_bf16_f32 v{g+1}, v{g+2}, v{g+3}")
        a(f"buffer_store_dwordx2 {vr(g,2)}, v{(V+4, V, V+5)[i]}, {srd(r.SW)}, s{T+2} offen offset:{640*i} sc1 ; @kvp")
    a(st.text("kvp"))
    return dict(normalize=normalize, stage2=stage2, softmax=softmax, weave=weave, pk=pk)

def phase_a2(a, r, st, slow, h, wo_ops=()):
    T, V = r.sT, r.T; w = r.sWv
    TQ, TQM = r.TW + 2, r.TW + 3
    a(f"""v_add_u32 v{TQ}, {XR}, v{r.TW}
    v_lshrrev_b32 v{V}, 2, v{r.L}
    v_mul_u32_u24 v{V}, 160, v{V}
    v_add_u32 v{TQM}, {XR + 64}, v{V}""")
    a(f"v_and_b32 v{V}, 1, v{r.J}\nv_lshlrev_b32 v{V}, 4, v{V}\nv_mov_b32 v{V+1}, 0x3f80\nv_lshlrev_b32 v{V}, v{V}, v{V+1}\nv_bfe_u32 v{V+1}, v{r.J}, 1, 2")
    for e in range(4):
        a(f"v_cmp_eq_u32 vcc, {e}, v{V+1}\nv_cndmask_b32 v{V+2}, 0, v{V}, vcc\nv_accvgpr_write_b32 a{r.aSEL+e}, v{V+2}")
    def qf(n, ks, T_): return r.WF + 24 * (n % 2) + 12 * ks + 4 * T_
    def aq(T_, t): return r.AK + 12 * (T_ + 1) + 4 * t
    def reads_q(n):
        o = []
        for ks in range(2):
            p = 2 * n + ks
            base = 16384 * (p % 4) + QOFF[p // 4]
            for T_ in range(3):
                for hh in range(2):
                    o.append(f"ds_read_b64_tr_b16 {vr(qf(n,ks,T_)+2*hh,2)}, v{TQ if T_ < 2 else TQM} offset:{base + 80*hh + (32*T_ if T_ < 2 else 0)} ; @q{n}")
        return o
    def mf_q(n):
        o = []
        for T_ in range(3):
            for t in range(3):
                for ks in range(2):
                    acc = vr(aq(T_, t)); b = xa(r, 2*n+ks, t) if t < 2 else vr(r.ONES)
                    o.append(f"{MF} {acc}, {vr(qf(n,ks,T_))}, {b}, {'0' if n+ks == 0 else acc}")
        return o
    a("WAITVM wq\ns_barrier")
    for t in reads_q(0): a(t)
    wo_ops = list(wo_ops); has_b = bool(wo_ops)
    PL = r.XD
    sigat, pollat = 3, 6
    for n in range(9):
        a(f"WAITLG q{n}")
        fill = reads_q(n + 1) if n < 8 else []
        if n == sigat:
            a(f"WAITVM kvp\ns_barrier\ns_cmp_eq_u32 s{w}, 0\ns_cselect_b32 s{T+5}, s{r.sF1}, {OOB}")
            fill = [f"buffer_atomic_add v{r.ONE}, v{r.AT}, {srd(r.SW)}, s{T+5} offen sc1"] + fill
        k = (len(wo_ops) + (7 - n) - 1) // (7 - n) if n < 7 else len(wo_ops)
        fill += wo_ops[:k]; wo_ops = wo_ops[k:]
        if n == 8: fill.append(f"buffer_load_dword v{r.FL}, off, {srd(r.SW)}, s{r.sF1} sc1 ; @f1")
        h["weave"](mf_q(n), fill)
    a(f"""v_lshlrev_b32 v{PL}, 12, v{r.C}
    v_lshl_add_u32 v{PL}, v{r.J}, 4, v{PL}
    s_lshl_b32 s{T}, s{w}, 8
    s_add_u32 s{T}, s{T}, s{r.sKVP}""")
    h["normalize"]([(0, 0), (1, 1), (2, 2)], aq)
    h["stage2"]()
    for c in poll_check(r.FL, r.SW, T + 6, f"s{r.sF1}", 16, "f1", slow): a(c)
    a(st.text("e1"))
    for m in range(4):
        for i in range(4):
            if i == 3: a(f"s_cmp_eq_u32 s{w}, 0\ns_cselect_b32 s{T+1}, s{T}, {OOB}")
            a(f"buffer_load_dwordx4 {vr(r.aP+16*i+4*m,4,'a')}, v{PL}, {srd(r.SW)}, s{T + (i == 3)} offen offset:{1024*i} sc1 ; @pp{m}")
        if m < 3: a(f"s_add_u32 s{T}, s{T}, 16384")
    h["softmax"](0); h["softmax"](1)
    A4 = r.AK
    for m in range(4):
        a(f"WAITVM pp{m}")
        for i in range(4):
            acc = vr(A4 + 4 * i)
            a(f"{MF} {acc}, {vr(r.aSEL,4,'a')}, {vr(r.aP+16*i+4*m,4,'a')}, {'0' if m == 0 else acc}")
    a(f"""v_and_b32 v{V}, 1, v{r.C}
    v_lshlrev_b32 v{V}, 3, v{V}
    v_lshl_add_u32 v{V}, v{r.J}, 4, v{V}
    s_lshl_b32 s{T}, s{w}, 8
    s_add_u32 s{T}, s{T}, {KVI}
    v_add_u32 v{V}, s{T}, v{V}
    v_mul_u32_u24 v{V+1}, 800, v{r.C}
    v_add_u32 v{V+1}, {KVI}, v{V+1}
    v_and_b32 v{V+2}, 7, v{r.J}
    v_lshl_add_u32 v{V+2}, v{V+2}, 3, v{V+1}
    v_and_b32 v{V+3}, 3, v{r.J}
    v_lshl_add_u32 v{V+3}, v{V+3}, 3, v{V+1}
    v_lshrrev_b32 v{V+1}, 3, v{r.J}
    v_lshrrev_b32 v{V+4}, 1, v{r.C}
    v_cmp_eq_u32 vcc, v{V+1}, v{V+4}
    v_mov_b32 v{V+1}, {ZERO}
    v_cndmask_b32 v{V+2}, v{V+1}, v{V+2}, vcc
    v_cndmask_b32 v{V+3}, v{V+1}, v{V+3}, vcc""")
    for i in range(4):
        g = A4 + 4 * i
        a(f"v_cvt_pk_bf16_f32 v{g}, v{g}, v{g+1}\nv_cvt_pk_bf16_f32 v{g+1}, v{g+2}, v{g+3}\nds_write_b64 v{V}, {vr(g,2)} offset:{1024*i}")
    a(("WAITVM wo\n" if has_b else "") + "s_waitcnt lgkmcnt(0)\ns_barrier")
    K4 = r.WF; O4 = r.WF + 32
    for T_ in range(3):
        for gg in range(5):
            a(f"ds_read_b64 {vr(K4+10*T_+2*gg,2)}, v{V+2 if T_ < 2 else V+3} offset:{160*gg + 64*T_} ; @k4{T_}")
    a(f"""s_lshl_b32 s{T}, s{r.sTB}, 2
    s_add_u32 s{T}, s{T}, s{w}
    s_mul_i32 s{T}, s{T}, {2*18*1024}
    s_add_u32 s{T}, s{T}, {WS['O'][0]}
    s_lshl_b32 s{T+1}, s{r.sHP}, 10
    s_add_u32 s{T+1}, s{T+1}, s{T}
    s_lshr_b32 s{T+2}, s{r.sHP}, 3
    s_lshl_b32 s{T+2}, s{T+2}, 10
    s_add_u32 s{T}, s{T}, s{T+2}
    s_and_b32 s{T+2}, s{r.sHP}, 1
    s_lshl_b32 s{T+2}, s{T+2}, 9
    s_add_u32 s{T}, s{T}, s{T+2}
    s_bfe_u32 s{T+2}, s{r.sHP}, 0x20001
    s_lshl_b32 s{T+2}, s{T+2}, 7
    s_add_u32 s{T}, s{T}, s{T+2}
    s_add_u32 s{T}, s{T}, 16384
    v_lshlrev_b32 v{V}, 4, v{r.L}
    v_lshlrev_b32 v{V+1}, 3, v{r.J}
    v_lshl_add_u32 v{V+1}, v{r.C}, 1, v{V+1}
    v_and_b32 v{V+4}, 1, v{r.C}
    v_lshl_add_u32 v{V+1}, v{V+4}, 30, v{V+1}""")
    for T_ in range(3):
        a(f"WAITLG k4{T_}")
        for t in range(2):
            acc = vr(O4 + 12 * t + 4 * T_); f = r.FQ + 10 * t; k = K4 + 10 * T_
            a(f"{MF} {acc}, {vr(k)}, {vr(f)}, 0\n{MF} {acc}, {vr(k+4)}, {vr(f+4)}, {acc}")
    for T_ in range(3):
        for t in range(2):
            acc = vr(O4 + 12 * t + 4 * T_); f = r.FQ + 10 * t; k = K4 + 10 * T_
            a(f"{MF16} {acc}, {vr(k+8,2)}, {vr(f+8,2)}, {acc}")
    for t in range(2):
        o = O4 + 12 * t
        a(f"v_add_f32 v{o+10}, 0x358637bd, v{o+10}\nv_rcp_f32 v{o+10}, v{o+10}")
        for i in range(5): a(f"v_pk_mul_f32 {vr(o+2*i,2)}, {vr(o+2*i,2)}, {vr(o+10,2)} op_sel_hi:[1,0]")
        for i in range(5): a(f"v_cvt_pk_bf16_f32 v{o+i}, v{o+2*i}, v{o+2*i+1}")
        a(f"buffer_store_dwordx4 {vr(o)}, v{V}, {srd(r.SW)}, s{T+1} offen sc1 ; @ost")
        a(f"buffer_store_dword v{o+4}, v{V+1}, {srd(r.SW)}, s{T} offen sc1 ; @ost")
        if t == 0: a(f"s_add_u32 s{T}, s{T}, {18*1024}\ns_add_u32 s{T+1}, s{T+1}, {18*1024}")
    a(st.text("o"))

def b_dma_ops(r, slow):
    T = r.sBT; w = r.sWv
    D0, D1, D2 = r.WD, r.WD + 1, r.WD + 2; V = r.T
    o = []
    o.append(f"buffer_load_dword v{r.FL}, off, {srd(r.SDB)}, 0 offset:128 sc1 ; @fwb")
    o.append(f"s_lshr_b32 s{r.sB}, s2, 5\ns_and_b32 s{T}, s2, 7\ns_lshl_b32 s{T}, s{T}, 4")
    o.append(f"s_bfe_u32 s{T+1}, s2, 0x20003\ns_lshl_b32 s{T+1}, s{T+1}, 2\ns_add_u32 s{T}, s{T}, s{T+1}\ns_add_u32 s{r.sTT}, s{T}, s{w}")
    o.append(f"v_bfe_u32 v{V}, v{r.L}, 1, 2\nv_xor_b32 v{V}, v{V}, v{r.C}")
    o.append(f"v_and_b32 v{V+1}, 1, v{r.L}\nv_lshlrev_b32 v{V+1}, 4, v{V+1}")
    o.append(f"v_lshl_add_u32 v{V}, v{V}, 5, v{V+1}\nv_lshrrev_b32 v{V+1}, 3, v{r.L}")
    o.append(f"v_mul_u32_u24 v{V+2}, 1152, v{V+1}\nv_add_u32 v{D0}, v{V+2}, v{V}")
    o.append(f"s_and_b32 s{T}, s{w}, 1\ns_lshr_b32 s{T+1}, s{w}, 1\ns_mul_i32 s{T+2}, s{T}, 18")
    o.append(f"s_lshl_b32 s{T+3}, s{T+1}, 3\ns_add_u32 s{T+2}, s{T+2}, s{T+3}\ns_mul_i32 s73, s{T+2}, 1152")
    o.append(f"s_mul_i32 s{T}, s{T}, 144\ns_mul_i32 s{T+1}, s{T+1}, 36\ns_add_u32 s{T}, s{T}, s{T+1}")
    o.append(f"s_add_u32 s{T}, s{T}, 16\ns_mul_i32 s74, s{T}, 1152\ns_lshl_b32 s{T}, s{r.sB}, 7")
    o.append(f"s_add_u32 s{T+2}, s73, s{T}\ns_add_u32 s{T+3}, s74, s{T}\ns_mul_i32 s75, s{w}, 18432")
    tail = lambda src, d: [f"v_lshrrev_b32 v{d}, 2, v{src}\nv_mul_u32_u24 v{d}, 72, v{d}", f"v_bfe_u32 v{V+3}, v{src}, 1, 1\nv_mul_u32_u24 v{V+3}, 18, v{V+3}",
                           f"v_add_u32 v{d}, v{d}, v{V+3}\nv_and_b32 v{V+3}, 1, v{src}", f"v_add_u32 v{d}, v{d}, v{V+3}"]
    for s_ in range(18):
        if s_ % 4 == 0: o.append(f"s_add_u32 m0, s75, {WO + 1024*s_}")
        if s_ == 16:
            o += tail(V + 1, D1); o.append(f"v_mul_u32_u24 v{D1}, 1152, v{D1}\nv_add_u32 v{D1}, v{D1}, v{V}")
        imm = 1024 * (s_ % 4)
        c = (36 * s_ if s_ < 16 else 288 * (s_ - 16)) * 1152 - imm
        o.append(f"s_add_u32 s{T}, s{T+2 if s_ < 16 else T+3}, {c}\nbuffer_load_dwordx4 v{D0 if s_ < 16 else D1}, {srd(r.SO)}, s{T} offen offset:{imm} lds ; @wo")
    o.append(f"v_and_b32 v{V}, 7, v{r.L}\nv_mul_u32_u24 v{D0}, 36, v{V+1}")
    o.append(f"v_add_u32 v{D0}, v{D0}, v{V}\nv_mul_u32_u24 v{D0}, 1152, v{D0}")
    o += tail(V, D1)
    o.append(f"v_mul_u32_u24 v{V+3}, 288, v{V+1}\nv_add_u32 v{D1}, v{D1}, v{V+3}")
    o.append(f"v_mul_u32_u24 v{D1}, 1152, v{D1}\ns_lshl_b32 s{T}, s{r.sB}, 4")
    o.append(f"s_add_u32 s{T}, s{T}, 1024\ns_add_u32 s{T+2}, s73, s{T}\ns_add_u32 s{T+3}, s74, s{T}")
    o.append(f"s_mul_i32 s75, s{w}, 3072\ns_add_u32 m0, s75, {WO8}")
    o.append(f"buffer_load_dwordx4 v{D0}, {srd(r.SO)}, s{T+2} offen lds ; @wo")
    o.append(f"s_add_u32 s{T+2}, s{T+2}, {8*36*1152 - 1024}\nbuffer_load_dwordx4 v{D0}, {srd(r.SO)}, s{T+2} offen offset:1024 lds ; @wo")
    o.append(f"s_sub_u32 s{T+3}, s{T+3}, 2048\nbuffer_load_dwordx4 v{D1}, {srd(r.SO)}, s{T+3} offen offset:2048 lds ; @wo")
    o.append(f"v_lshl_add_u32 v{D0}, v{V}, 4, v{V+2}\nv_mul_u32_u24 v{D1}, 1152, v{r.J}")
    o.append(f"v_lshl_add_u32 v{D1}, v{r.C}, 28, v{D1}\ns_mul_i32 s{T+1}, s{r.sTT}, {16*1152}")
    o.append(f"s_add_u32 s{T+3}, s{T+1}, s{T}\ns_lshl_b32 s{T}, s{r.sB}, 7\ns_add_u32 s{T+1}, s{T+1}, s{T}")
    o.append(f"s_add_u32 m0, s{r.sXm}, {XRES}\ns_add_u32 s{T+2}, s{T+1}, {8*1152-1024}")
    o.append(f"buffer_load_dwordx4 v{D0}, {srd(r.SX)}, s{T+1} offen lds ; @wo")
    o.append(f"buffer_load_dwordx4 v{D0}, {srd(r.SX)}, s{T+2} offen offset:1024 lds ; @wo")
    o.append(f"s_add_u32 m0, s{r.sXm}, {XRES8}\ns_lshl_b32 s{T}, s{w}, 9")
    o.append(f"buffer_load_dwordx4 v{D1}, {srd(r.SX)}, s{T+3} offen lds ; @wo")
    c1, c2 = poll_check(r.FL, r.SDB, T + 2, "0 offset:128", 72, "fwb", slow)
    o += [c1, f"s_add_u32 m0, s{T}, {WBL}\ns_add_u32 s{T}, s{T}, {WS['WBAR'][0]}\nv_lshlrev_b32 v{D0}, 4, v{r.L}", c2]
    o.append(f"s_mov_b32 exec_hi, 0\nbuffer_load_dwordx4 v{D0}, {srd(r.SW)}, s{T} offen sc1 lds ; @wo\ns_mov_b32 exec_hi, -1")
    return o

def phase_b(a, r, f, st, slow, w2_ops=(), w2b_ops=(), w3_ops=(), setup=None):
    T = r.sBT; w = r.sWv; V = r.T
    WFV, OF, AC, XR_ = 24, 128, 200, 220
    def wfr(s_, T_):
        i = 5 * s_ + T_
        return (4 * i, "a") if i < 64 else (WFV + 4 * (i - 64), "v")
    sF2s, sF2, sOb = 73, 74, 75
    TA = r.XD
    a(f"""s_lshl_b32 s{T}, s{r.sTB}, 2
    s_add_u32 s{T}, s{T}, s{w}
    s_lshl_b32 s{T}, s{T}, 7
    s_add_u32 s{sF2s}, s{T}, {WS['FLAG'][0] + F_E2*128}
    s_lshr_b32 s{T}, s{r.sTT}, 1
    s_lshl_b32 s{T}, s{T}, 7
    s_add_u32 s{sF2}, s{T}, {WS['FLAG'][0] + F_E2*128}
    s_mul_i32 s{T}, s{r.sTT}, {18*1024}
    s_add_u32 s{sOb}, s{T}, {WS['O'][0]}
    v_lshlrev_b32 v{V}, 7, v{r.J}
    v_lshl_add_u32 v{V}, v{r.C}, 3, v{V}
    v_add_u32 v{V}, s{r.sXm}, v{V}
    v_and_b32 v{V+2}, 1, v{r.C}
    v_lshlrev_b32 v{V+1}, 4, v{r.J}
    v_lshl_add_u32 v{V+1}, v{V+2}, 3, v{V+1}
    v_add_u32 v{V+1}, s{r.sXm}, v{V+1}""")
    for T_ in range(4): a(f"ds_read_b64 {vr(XR_+2*T_,2)}, v{V} offset:{XRES + 32*T_} ; @xr")
    a(f"ds_read_b64 {vr(XR_+8,2)}, v{V+1} offset:{XRES8} ; @xr")
    a(f"""v_bfe_u32 v{V}, v{r.L}, 2, 3
    v_and_b32 v{V+1}, 3, v{r.L}
    v_lshlrev_b32 v{V+1}, 3, v{V+1}
    v_lshl_add_u32 v{V+1}, v{V}, 7, v{V+1}
    v_lshrrev_b32 v{V+2}, 5, v{r.L}
    v_mul_u32_u24 v{V+3}, 18432, v{V+2}
    v_add_u32 v{V+1}, v{V+1}, v{V+3}
    v_lshrrev_b32 v{V+3}, 1, v{V}""")
    for tc in range(4): a(f"v_xor_b32 v{V+4}, {tc}, v{V+3}\nv_lshl_add_u32 v{TA+tc}, v{V+4}, 5, v{V+1}")
    a(f"""v_mul_u32_u24 v{V+2}, 3072, v{V+2}
    v_lshl_add_u32 v{V+2}, v{V}, 4, v{V+2}
    v_and_b32 v{V+1}, 1, v{r.L}
    v_lshl_add_u32 v{V+2}, v{V+1}, 3, v{V+2}
    v_add_u32 v{TA+4}, {WO8}, v{V+2}
    v_lshlrev_b32 v{TA+5}, 4, v{r.C}
    v_add_u32 v{TA+5}, {WBL}, v{TA+5}
    WAITLG xr""")
    if setup: setup()
    a("s_barrier")
    for t in w2_ops: a(t)
    for i in range(10):
        a(f"v_lshlrev_b32 v{AC+2*i}, 16, v{XR_+i}\nv_and_b32 v{AC+2*i+1}, 0xffff0000, v{XR_+i}")
    def rd(s_, T_):
        b, k = wfr(s_, T_)
        for h in range(2):
            off = WO + 1024 * s_ + 36864 * h if T_ < 4 else 128 * s_ + 6144 * h
            a(f"ds_read_b64_tr_b16 {vr(b+2*h,2,k)}, v{TA+T_} offset:{off}")
    for s_ in range(18): rd(s_, 4)
    for s_ in range(6):
        for T_ in range(4): rd(s_, T_)
    a(f"WAITVM ost\nbuffer_atomic_add v{r.ONE}, v{r.AT}, {srd(r.SW)}, s{sF2s} offen sc1")
    a("s_mov_b32 exec_lo, 0xff00ff00\ns_mov_b32 exec_hi, 0xff00ff00")
    for s_ in range(18):
        b, k = wfr(s_, 4); a(f"ds_read_b128 {vr(b,4,k)}, v{TA+5} offset:{64*s_}")
    a("s_mov_b64 exec, -1")
    for s_ in range(6, 18):
        for T_ in range(4): rd(s_, T_)
        if s_ == 13: a(f"buffer_load_dword v{r.FL}, off, {srd(r.SW)}, s{sF2} sc1 ; @f2")
    a(f"""s_lshl_b32 s{T}, s{r.sTT}, 6
    s_add_u32 s{T}, s{T}, {WS['MUX'][0]}
    v_lshlrev_b32 v{V}, 2, v{r.J}
    s_waitcnt lgkmcnt(0)
    s_barrier""")
    for c in poll_check(r.FL, r.SW, T + 2, f"s{sF2}", 16, "f2", slow): a(c)
    a(st.text("e2"))
    a(f"s_mov_b32 exec_lo, 0\nbuffer_load_dword v{AC+16}, v{V}, {srd(r.SW)}, s{T} offen sc1 ; @o0\ns_mov_b32 exec_lo, -1")
    for s_ in range(18):
        if s_ % 4 == 0 and s_: a(f"s_add_u32 s{sOb}, s{sOb}, 4096")
        if s_ < 16:
            a(f"buffer_load_dwordx4 {vr(OF+4*s_)}, v{f.L16}, {srd(r.SW)}, s{sOb} offen offset:{1024*(s_%4)} sc1 ; @o{s_}")
        else:
            for h in range(2):
                a(f"buffer_load_dwordx2 {vr(OF+4*s_+2*h,2)}, v{f.L8}, {srd(r.SW)}, s{sOb} offen offset:{1024*(s_%4)+512*h} sc1 ; @o{s_}")
    sHa, sHb, sSS = sF2s, sF2, sOb
    a(f"""s_lshr_b32 s{T}, s{r.sTT}, 2
    s_mul_i32 s{T}, s{T}, {72*1024}
    s_lshl_b32 s{T+1}, s{w}, 10
    s_add_u32 s{T}, s{T}, s{T+1}
    s_add_u32 s{T}, s{T}, {WS['HC'][0]}
    s_lshl_b32 s{T+1}, s{r.sB}, 13
    s_add_u32 s{sHa}, s{T}, s{T+1}
    s_lshr_b32 s{T+1}, s{r.sB}, 2
    s_lshl_b32 s{T+1}, s{T+1}, 12
    s_add_u32 s{T}, s{T}, s{T+1}
    s_and_b32 s{T+1}, s{r.sB}, 3
    s_lshl_b32 s{T+1}, s{T+1}, 8
    s_add_u32 s{T}, s{T}, s{T+1}
    s_add_u32 s{sHb}, s{T}, {16*4096}
    s_lshl_b32 s{T}, s{r.sTT}, 9
    s_lshl_b32 s{T+1}, s{r.sB}, 2
    s_add_u32 s{T}, s{T}, s{T+1}
    s_add_u32 s{sSS}, s{T}, {WS['SS'][0]}
    s_lshl_b32 s{T}, s{r.sTT}, 6
    s_add_u32 s{T}, s{T}, {WS['MU'][0]}
    s_cmp_eq_u32 s{r.sB}, 0
    s_cselect_b32 s{T}, s{T}, {OOB}
    s_lshl_b32 s{T+1}, s{r.sTT}, 7
    s_add_u32 s{T+1}, s{T+1}, {WS['FLAG'][0] + F_E3*128}
    s_add_u32 s{T+2}, s{sHa}, 4096
    v_lshl_add_u32 v{V}, v{r.C}, 28, v{V}
    v_lshlrev_b32 v{V+1}, 5, v{r.J}
    v_lshl_add_u32 v{V+1}, v{r.C}, 28, v{V+1}
    v_cmp_gt_u32 vcc, 32, v{r.L}""")
    fill = list(w2b_ops)
    for s_ in range(18):
        a(f"WAITVM o{s_}")
        for T_ in range(5):
            b, k = wfr(s_, T_); acc = vr(AC + 4 * T_)
            a(f"{MF} {acc}, {vr(b,4,k)}, {vr(OF+4*s_)}, {acc}")
            if fill and (T_ % 2 == 0 or "buffer" not in fill[0]): a(fill.pop(0))
    for t in fill: a(t)
    M, Q = V + 2, V + 4
    a(f"""v_mov_b32 v{M+1}, v{AC+16}
    v_mov_b32 v{M}, v{AC+16}
    v_permlane32_swap_b32 v{M+1}, v{M}""")
    for i in (8, 9, 0, 1, 2, 3, 4, 5, 6, 7):
        a(f"v_pk_add_f32 {vr(AC+2*i,2)}, {vr(AC+2*i,2)}, {vr(M,2)} op_sel_hi:[1,0] neg_lo:[0,1] neg_hi:[0,1]")
    for i in range(10): a(f"v_cvt_pk_bf16_f32 v{XR_+i}, v{AC+2*i}, v{AC+2*i+1}")
    a(f"""buffer_store_dwordx4 {vr(XR_)}, v{f.L16}, {srd(r.SW)}, s{sHa} offen sc1 ; @hst
    buffer_store_dwordx4 {vr(XR_+4)}, v{f.L16}, {srd(r.SW)}, s{T+2} offen sc1 ; @hst
    s_mov_b32 exec_hi, 0
    buffer_store_dwordx2 {vr(XR_+8,2)}, v{f.L8}, {srd(r.SW)}, s{sHb} offen sc1 ; @hst
    s_mov_b32 exec_hi, -1
    buffer_store_dword v{M}, v{V}, {srd(r.SW)}, s{T} offen sc1 ; @hst
    v_pk_mul_f32 {vr(Q,2)}, {vr(AC+16,2)}, {vr(AC+16,2)}
    v_pk_fma_f32 {vr(Q,2)}, {vr(AC+18,2)}, {vr(AC+18,2)}, {vr(Q,2)}
    v_cndmask_b32 v{Q}, 0, v{Q}, vcc
    v_cndmask_b32 v{Q+1}, 0, v{Q+1}, vcc""")
    for i in range(8): a(f"v_pk_fma_f32 {vr(Q,2)}, {vr(AC+2*i,2)}, {vr(AC+2*i,2)}, {vr(Q,2)}")
    a(f"""v_add_f32 v{Q}, v{Q}, v{Q+1}
    v_mov_b32 v{Q+1}, v{Q}
    v_permlane32_swap_b32 v{Q}, v{Q+1}
    v_add_f32 v{Q}, v{Q}, v{Q+1}
    v_mov_b32 v{Q+1}, v{Q}
    v_permlane16_swap_b32 v{Q}, v{Q+1}
    v_add_f32 v{Q}, v{Q}, v{Q+1}
    buffer_store_dword v{Q}, v{V+1}, {srd(r.SW)}, s{sSS} offen sc1 ; @hst""")
    a(st.text("hc"))
    for t in w3_ops: a(t)
    a(f"WAITVM hst\nbuffer_atomic_add v{r.ONE}, v{r.AT}, {srd(r.SW)}, s{T+1} offen sc1")

def k_attn_a(name="attna_kernel", stamps=False):
    a = Asm(); r = a_regs(); slow = []
    st = Stamps(stamps, kid=0)
    a(f"s_cmp_ge_u32 s2, 256\ns_cbranch_scc1 {name}_end")
    a(st.text("start"))
    h = phase_a(a, r, st, slow)
    phase_a2(a, r, st, slow, h)
    if stamps:
        a("s_waitcnt vmcnt(0)"); a(st.text("end")); st.flush(a, r.SW, 2)
    a(f"{name}_end:\ns_endpgm")
    for s in slow: a(s)
    return (name, 256, 256, 163840), kernel_text(name, a, force_vgpr=512), st.names

if __name__ == "__main__":
    k = k_attn_a(stamps=True)
    open("attna.s", "w").write(file_text([k[0]], [k[1]]))
```

```python
from asmlib import *
MB = 1 << 20
ARG = dict(x=0, wqkv=8, wphi=16, wo=24, wg=40, wu=48, wd=56, out=64, dbg=72, ws=80)
SZ = dict(x=2359296, wqkv=576*1728*2, wphi=32*18*18*2, wo=576*576*2, wg=576*4608*2, wu=576*4608*2, wd=576*4608*2, out=2359296, dbg=256)
WS = dict(HC=(0, 2359296), HH=(4*MB, 2048*4608*2), PART=(24*MB, 8*2359296), H=(44*MB, 2359296), SS=(47*MB, 2048*8*4),
          O=(48*MB, 2359296), MU=(51*MB, 8192), MUX=(51*MB + 65536, 8192), WBAR=(51*MB + 131072, 2048), KVP=(52*MB, 256*8192),
          FLAG=(56*MB, 262144), STAMP=(60*MB, 1*MB))
F_E1, F_E2, F_E3, F_E4, F_E5, F_END = 0, 16, 80, 208, 976, 1360
MF = "v_mfma_f32_16x16x32_bf16"

def mk_srd(a, s, ptr, size, off=0):
    if off:
        a(f"s_add_u32 s{s}, s{ptr}, {off}\ns_addc_u32 s{s+1}, s{ptr+1}, 0\ns_and_b32 s{s+1}, s{s+1}, 0xffff")
    else:
        a(f"s_mov_b32 s{s}, s{ptr}\ns_and_b32 s{s+1}, s{ptr+1}, 0xffff")
    a(f"s_mov_b32 s{s+2}, {size}\ns_mov_b32 s{s+3}, 0x20000")

def vr(b, n=4, k="v"): return f"{k}[{b}:{b+n-1}]" if n > 1 else f"{k}{b}"

class Stamps:
    def __init__(self, on, base=76, kid=0):
        self.on, self.base, self.n, self.kid = on, base, 0, kid
        self.names = []
    def text(self, name=""):
        if not self.on: return ""
        b = self.base + 2 * self.n; self.n += 1; self.names.append(name)
        assert b + 1 <= 101
        return f"s_memrealtime s[{b}:{b+1}]"
    def flush(self, a, srd, vtmp, swave=3):
        if not self.on: return
        a("s_waitcnt lgkmcnt(0)")
        t = self.base + 1
        a(f"s_lshl_b32 s{t}, s2, 2\ns_add_u32 s{t}, s{t}, s{swave}\ns_lshl_b32 s{t}, s{t}, 6\ns_add_u32 s{t}, s{t}, {WS['STAMP'][0] + self.kid*65536}")
        for i in range(self.n):
            a(f"v_mov_b32 v{vtmp}, s{self.base + 2*i}\nbuffer_store_dword v{vtmp}, off, s[{srd}:{srd+3}], s{t} offset:{4*i}\ns_waitcnt vmcnt(0)")

def k_stamp(name="stamp_kernel", kid=7):
    a = Asm(); st = Stamps(True, kid=kid)
    a(st.text())
    a(f"s_cmp_ge_u32 s2, 256\ns_cbranch_scc1 {name}_end")
    a(f"s_load_dwordx2 s[4:5], s[0:1], {ARG['ws']}\nv_lshrrev_b32 v1, 6, v0\nv_readfirstlane_b32 s3, v1")
    a("s_waitcnt lgkmcnt(0)"); mk_srd(a, 12, 4, 64 * MB)
    st.flush(a, 12, 2)
    a(f"{name}_end:\ns_endpgm")
    return (name, 256, 256, 0), kernel_text(name, a)

def srd(s): return f"s[{s}:{s+3}]"
class R: pass
_lab = [0]
def poll_check(vfl, sw, stmp, sflag, count, tag, slow, shift=0, width=16):
    _lab[0] += 1; L = f"Lp{_lab[0]}"; T = stmp
    slow.append(f"""{L}_slow:
    s_mov_b32 s{T+1}, 0
    {L}_spin:
    buffer_load_dword v{vfl}, off, {srd(sw)}, {sflag} sc1
    s_add_u32 s{T+1}, s{T+1}, 1
    s_waitcnt vmcnt(0)
    v_readfirstlane_b32 s{T}, v{vfl}
    s_cmp_gt_u32 s{T+1}, 100000
    s_cbranch_scc1 {L}_ok
    s_cmp_ge_u32 s{T}, {count}
    s_cbranch_scc1 {L}_ok
    s_branch {L}_spin""")
    return [f"WAITVM {tag}\nv_readfirstlane_b32 s{T}, v{vfl}", f"s_cmp_ge_u32 s{T}, {count}\ns_cbranch_scc0 {L}_slow\n{L}_ok:"]

def k_flush(name="flush_kernel", data=True, code=True):
    a = Asm()
    a(f"s_cmp_ge_u32 s2, 256\ns_cbranch_scc1 {name}_end")
    if data:
        a("s_load_dwordx2 s[4:5], s[0:1], 32\ns_waitcnt lgkmcnt(0)")
        mk_srd(a, 8, 4, 512 * MB)
        a(f"v_lshlrev_b32 v1, 4, v0\ns_lshl_b32 s3, s2, 15\ns_mov_b32 s6, 64\n{name}_l:")
        for i in range(8):
            a(f"buffer_load_dwordx4 v[{4+4*i}:{7+4*i}], v1, s[8:11], s3 offen\ns_add_u32 s3, s3, 4096")
        a(f"s_add_u32 s3, s3, {255*32768}\ns_waitcnt vmcnt(0)\ns_sub_u32 s6, s6, 1\ns_cmp_lg_u32 s6, 0\ns_cbranch_scc1 {name}_l")
    if code:
        a.raw(".rept 10240\n  v_add3_u32 v1, v2, v3, v0\n.endr")
    else:
        a(f"s_mov_b32 s6, 20\n{name}_d:\ns_sleep 100\ns_sub_u32 s6, s6, 1\ns_cmp_lg_u32 s6, 0\ns_cbranch_scc1 {name}_d")
    a(f"v_mov_b32 v40, 0\n{name}_end:\ns_endpgm")
    return (name, 256, 256, 0), kernel_text(name, a)
```

```python
from common import *

def ffn_regs():
    r = R()
    r.ACC = 4; r.FR = 164; r.XV = 188; r.STG = 220; r.TRA = 236; r.TRC = 248
    r.DVW = 249; r.DVD = 250; r.DC = 251; r.L16 = 252; r.L8 = 253; r.AT = 254; r.FL = 255
    r.SG, r.SU, r.SD, r.SC, r.SW = 12, 16, 20, 24, 28
    r.SO = 12
    r.sWv = 3
    r.sW, r.sWC, r.sMC, r.sM0, r.sX, r.sH, r.sHC, r.sHL, r.sD, r.sDC, r.sF4, r.sF5, r.sP = 32, 33, 34, 35, 36, 37, 38, 39, 40, 41, 42, 43, 44
    r.sRD, r.sRH, r.sRC = 45, 49, 53
    r.sT = 57
    r.sKG, r.sJ, r.sTB = 64, 65, 66
    r.SLOT = 24576; r.NS = 5; r.XB = 5 * 24576
    return r

def ffn_setup(a, r, v1=1, v2=2, v3=3):
    a(f"""v_lshlrev_b32 v{r.L16}, 4, v{v1}
    v_lshlrev_b32 v{r.L8}, 3, v{v1}
    v_cmp_eq_u32 vcc, 0, v{v1}
    v_lshrrev_b32 v{v2}, 2, v{v1}
    v_and_b32 v{v3}, 3, v{v1}
    v_lshlrev_b32 v{v3}, 3, v{v3}
    v_mov_b32 v{r.FL}, 0x40000000
    v_cndmask_b32 v{r.AT}, v{r.FL}, 0, vcc
    v_lshl_add_u32 v{r.TRC}, v{v2}, 5, v{v3}
    v_add_u32 v{r.TRC}, {r.XB}, v{r.TRC}
    v_and_b32 v{r.FL}, 7, v{v2}
    v_lshl_add_u32 v{v3}, v{r.FL}, 7, v{v3}
    v_lshrrev_b32 v{r.FL}, 3, v{v2}
    v_mul_u32_u24 v{r.FL}, 3072, v{r.FL}
    v_add_u32 v{v3}, v{v3}, v{r.FL}
    v_bfe_u32 v{v2}, v{v2}, 1, 2""")
    for tc in range(4):
        a(f"v_xor_b32 v{r.FL}, {tc}, v{v2}\nv_lshl_add_u32 v{r.TRA+tc}, v{r.FL}, 5, v{v3}\nv_add_u32 v{r.TRA+4+tc}, 61440, v{r.TRA+tc}")
    a(f"""v_bfe_u32 v{v2}, v{v1}, 1, 2
    v_bfe_u32 v{v3}, v{v1}, 4, 2
    v_xor_b32 v{v2}, v{v2}, v{v3}
    v_and_b32 v{v3}, 1, v{v1}
    v_lshlrev_b32 v{v3}, 4, v{v3}
    v_lshl_add_u32 v{v2}, v{v2}, 5, v{v3}
    v_lshrrev_b32 v{r.FL}, 3, v{v1}
    v_mul_u32_u24 v{r.DVW}, 9216, v{r.FL}
    v_add_u32 v{r.DVW}, v{r.DVW}, v{v2}
    v_mul_u32_u24 v{r.DVD}, 1152, v{r.FL}
    v_add_u32 v{r.DVD}, v{r.DVD}, v{v2}
    v_lshrrev_b32 v{r.FL}, 1, v{v1}
    v_mul_u32_u24 v{r.DC}, 9216, v{r.FL}
    v_add_u32 v{r.DC}, v{r.DC}, v{v3}""")
    T = r.sT; w = r.sWv
    a(f"""s_and_b32 s{r.sKG}, s2, 7
    s_bfe_u32 s{r.sJ}, s2, 0x20003
    s_lshr_b32 s{r.sTB}, s2, 5
    s_mul_i32 s{T}, s{r.sKG}, 1152
    s_lshl_b32 s{T+1}, s{r.sJ}, 8
    s_add_u32 s{r.sW}, s{T}, s{T+1}
    s_mul_i32 s{T+2}, s{w}, {8*9216}
    s_add_u32 s{r.sW}, s{r.sW}, s{T+2}
    s_lshl_b32 s{T+3}, s{r.sJ}, 5
    s_add_u32 s{T+3}, s{T+3}, 1024
    s_add_u32 s{r.sWC}, s{T}, s{T+3}
    s_and_b32 s{T+2}, s{w}, 1
    s_mul_i32 s{T+2}, s{T+2}, {9*32*9216}
    s_add_u32 s{r.sWC}, s{r.sWC}, s{T+2}
    s_mul_i32 s{r.sMC}, s{w}, 9216
    s_add_u32 s{r.sMC}, s{r.sMC}, {r.XB}
    s_mul_i32 s{r.sM0}, s{w}, 3072
    s_mul_i32 s{T}, s{r.sKG}, {576*1152}
    s_mul_i32 s{T+2}, s{w}, {8*1152}
    s_add_u32 s{r.sD}, s{T}, s{T+1}
    s_add_u32 s{r.sD}, s{r.sD}, s{T+2}
    s_add_u32 s{r.sDC}, s{T}, s{T+3}
    s_lshl_b32 s{T+4}, s{r.sTB}, 2
    s_add_u32 s{T+4}, s{T+4}, s{w}
    s_mul_i32 s{T+5}, s{T+4}, {72*1024}
    s_add_u32 s{r.sX}, s{T+5}, {WS['HC'][0]}
    s_mul_i32 s{T}, s{r.sKG}, {32*72*1024}
    s_add_u32 s{T}, s{T}, s{T+5}
    s_add_u32 s{r.sHL}, s{T}, {WS['HH'][0]}
    s_lshl_b32 s{T+1}, s{r.sJ}, 14
    s_add_u32 s{r.sH}, s{r.sHL}, s{T+1}
    s_lshr_b32 s{T+1}, s{r.sJ}, 1
    s_lshl_b32 s{T+1}, s{T+1}, 12
    s_and_b32 s{T+2}, s{r.sJ}, 1
    s_lshl_b32 s{T+2}, s{T+2}, 9
    s_add_u32 s{T+1}, s{T+1}, s{T+2}
    s_add_u32 s{T+1}, s{T+1}, {16*4096}
    s_add_u32 s{r.sHC}, s{r.sHL}, s{T+1}
    s_lshl_b32 s{T}, s{r.sKG}, 5
    s_add_u32 s{T}, s{T}, s{T+4}
    s_mul_i32 s{T}, s{T}, 384
    s_add_u32 s{r.sF4}, s{T}, {WS['FLAG'][0] + F_E4*128}
    s_lshl_b32 s{T}, s{r.sTB}, 2
    s_add_u32 s{T}, s{T}, s{r.sJ}
    s_lshl_b32 s{T+1}, s{T}, 2
    s_add_u32 s{T+1}, s{T+1}, s{w}
    s_mul_i32 s{T+1}, s{T+1}, 384
    s_add_u32 s{r.sF5}, s{T+1}, {WS['FLAG'][0] + F_E5*128}
    s_mul_i32 s{T}, s{T}, {8*8*9216}
    s_mul_i32 s{T+1}, s{w}, {2*8*9216}
    s_add_u32 s{T}, s{T}, s{T+1}
    s_mul_i32 s{T+1}, s{r.sKG}, 9216
    s_add_u32 s{T}, s{T}, s{T+1}
    s_add_u32 s{r.sP}, s{T}, {WS['PART'][0]}""")
    for i in range(4):
        a(f"""s_add_u32 s{T}, s{r.sJ}, {i}
        s_and_b32 s{T}, s{T}, 3
        s_mul_i32 s{r.sRD+i}, s{T}, {4*32*1152}
        s_add_u32 s{r.sRD+i}, s{r.sRD+i}, s{r.sD}
        s_lshl_b32 s{r.sRH+i}, s{T}, 14
        s_add_u32 s{r.sRH+i}, s{r.sRH+i}, s{r.sHL}
        s_lshl_b32 s{r.sRC+i}, s{T}, 12""")

def ffn_srds(a, r, pW, pD, pWS=None):
    mk_srd(a, r.SG, pW, SZ['wg']); mk_srd(a, r.SU, pW + 2, SZ['wu']); mk_srd(a, r.SD, pD, SZ['wd'])
    if pWS: mk_srd(a, r.SW, pWS, 64 * MB)
    a(f"s_cmp_lt_u32 s{r.sWv}, 2\ns_cselect_b32 s{r.SC}, s{pW}, s{pW+2}\ns_cselect_b32 s{r.SC+1}, s{pW+1}, s{pW+3}\ns_and_b32 s{r.SC+1}, s{r.SC+1}, 0xffff\ns_mov_b32 s{r.SC+2}, {SZ['wg']}\ns_mov_b32 s{r.SC+3}, 0x20000")

def kq(q):
    if q < 8: return None, 4 * (q // 2) + q % 2
    if q < 10: return None, 16 + q - 8
    if q < 12: return 0, 2 + q - 10
    if q < 15: return q - 11, 2
    return q - 14, 3

def slab_ops(r, n):
    ops = []; T = r.sT
    slot = n % r.NS
    if n < 12:
        col = 0 if n < 6 else 128
        for ks in range(3):
            ops.append((f"s_add_u32 s{T+ks}, s{r.sW}, {(3*(n%6)+ks)*32*9216 + col - 1024*ks}", 1))
        for m, S in enumerate((r.SG, r.SU)):
            ops.append((f"s_add_u32 m0, s{r.sM0}, {slot*r.SLOT + m*12288}", 1))
            for ks in range(3):
                ops.append((f"buffer_load_dwordx4 v{r.DVW}, {srd(S)}, s{T+ks} offen offset:{1024*ks} lds ; @slab{n}", 2))
    else:
        col = 128 * (n % 2)
        for m in range(2):
            ops.append((f"s_add_u32 m0, s{r.sM0}, {slot*r.SLOT + m*12288}", 1))
            for ks in range(3):
                q = 6 * ((n - 12) // 2) + 3 * m + ks
                rot, s = kq(q)
                b = r.sD if rot is None else r.sRD + rot
                c = s * 32 * 1152 + col - 1024 * ks
                assert c >= 0
                ops.append((f"s_add_u32 s{T}, s{b}, {c}", 1))
                ops.append((f"buffer_load_dwordx4 v{r.DVD}, {srd(r.SD)}, s{T} offen offset:{1024*ks} lds ; @slab{n}", 2))
    return ops

def wc_ops(r):
    ops = []
    for i in range(9):
        ops.append((f"s_add_u32 m0, s{r.sMC}, {1024*i}", 1))
        ops.append((f"s_add_u32 s{r.sT}, s{r.sWC}, {i*32*9216}", 1))
        ops.append((f"buffer_load_dwordx4 v{r.DC}, {srd(r.SC)}, s{r.sT} offen lds ; @wc @quarter", 2))
    return ops

def xreg(r, s, t):
    return vr(r.XV + 16 * s + 4 * t) if s < 2 else vr(16 * (s - 2) + 4 * t, 4, "a")
def hreg(r, q, t):
    if q in (10, 11): return vr(r.XV + 16 * (q - 10) + 4 * t)
    return vr(16 * (q if q < 10 else q - 2) + 4 * t, 4, "a")
def half(reg, h):
    m = re.match(r"([va])\[(\d+):", reg); b = int(m.group(2)) + 2 * h
    return f"{m.group(1)}[{b}:{b+1}]"
def frag_loads(r, regf, sbase, s, tag, fl, tmp):
    ops = [(f"s_add_u32 s{tmp}, s{sbase}, {4096*s}", 1)]
    for t in range(4):
        if s < 16 or s is None:
            ops.append((f"buffer_load_dwordx4 {regf(t)}, v{r.L16}, {srd(r.SW)}, s{tmp} offen offset:{1024*t} {fl} ; @{tag}", 2))
        else:
            for h in range(2):
                ops.append((f"buffer_load_dwordx2 {half(regf(t), h)}, v{r.L8}, {srd(r.SW)}, s{tmp} offen offset:{1024*t+512*h} {fl} ; @{tag} @half", 2))
    return ops

def ffn_main(a, r, st, slow, cap=2, pace=5, lat=80, chk=45, lead=50, hst='sc1', pst='sc1', hld='sc1', nochk=False, fine=False, npre=5, wcpre=True, verbose=False):
    S = Sched(cap)
    groups = []
    for n in range(6):
        for tc in range(4):
            for m in range(2): groups.append(("A", n, m, tc))
    for n in range(6):
        for m in range(2): groups.append(("C", n, m, 0))
    for n in range(6):
        for tc in range(4):
            for m in range(2): groups.append(("B", n, m, tc))
    for n in range(6):
        for tc in range(6): groups.append(("D", n, 0, tc))
    for tc in (6, 7, 8):
        for n in range(6): groups.append(("D", n, 0, tc))
    gidx = {g: i for i, g in enumerate(groups)}
    def accb(kind, m, tc):
        if kind in "AB": return r.ACC + 32 * tc + 16 * m
        if kind == "C": return r.ACC + 128 + 16 * m
        return r.ACC + (128, 144, 0, 16, 32, 48, 64, 80, 96)[tc]
    def slab_of(g):
        kind, n, m, tc = g
        if kind == "A": return n
        if kind == "B": return 6 + n
        if kind == "C": return "wc"
        return 12 + 2 * (n // 2) + tc // 4 if tc < 8 else "dc"
    def frag_reads(gi):
        kind, n, m, tc = g = groups[gi]
        b = r.FR + 12 * (gi % 2); out = []
        sl = slab_of(g)
        for ks in range(3):
            pre = ""
            if sl == "wc": ad, off, hs = r.TRC, m * 18432 + (3 * n + ks) * 1024, 512
            elif sl == "dc":
                rot, s = kq(3 * n + ks); ad, off, hs = r.TRC, s * 1024, 512
                if rot is not None:
                    ad = 1 + ks; pre = f"v_add_u32 v{ad}, s{r.sRC+rot}, v{r.TRC}"
            else:
                hm = m if kind in "AB" else n % 2
                slot = sl % r.NS
                off = slot * r.SLOT + hm * 12288; pg = int(off >= 61440)
                ad = r.TRA + 4 * pg + tc % 4; off += ks * 1024 - 61440 * pg; hs = 6144
            if pre: out.append(pre)
            for h in range(2):
                out.append(f"ds_read_b64_tr_b16 {vr(b+4*ks+2*h, 2)}, v{ad} offset:{off+h*hs} ; @fr{gi}")
        return out
    start = []; done = []
    for gi, (kind, n, m, tc) in enumerate(groups):
        b = r.FR + 12 * (gi % 2)
        start.append(S.n())
        for t in range(4):
            for ks in range(3):
                acc = vr(accb(kind, m, tc) + 4 * t); s = 3 * n + ks
                breg = xreg(r, s, t) if kind in "ABC" else hreg(r, s, t)
                S.mfma(f"{MF} {acc}, {vr(b+4*ks)}, {breg}, {'0' if s == 0 else acc}")
        done.append(S.n())
    NG = len(groups); END = S.n()
    G = lambda *g: start[gidx[g]]
    first_use, last_use = {}, {}
    for gi, g in enumerate(groups):
        sl = slab_of(g); first_use.setdefault(sl, gi); last_use[sl] = gi
    bar_at = {}
    for sl, gi in first_use.items():
        if gi == 0: continue
        key = gi - 1
        if sl == "dc": key = first_use[16] - 1
        if sl in (13, 15, 17): key = first_use[sl - 1] - 1
        bar_at.setdefault(key, []).append(sl)
    bars = sorted(bar_at)
    def free_slot(sl):
        return min(start[b] for b in bars if b >= last_use[sl]) + 1
    def tagof(sl): return f"slab{sl}" if isinstance(sl, int) else sl
    a("WAITVM slab0\ns_barrier")
    a(st.text("C0"))
    for t in frag_reads(0): a(t)
    for gi, g in enumerate(groups):
        kind, n, m, tc = g
        w = f"WAITLG fr{gi}"
        if kind == "A" and m == 0 and tc == 0: w += f" WAITVM x{3*n+2}"
        if kind == "D" and tc == 0: w += f" WAITVM h{3*n+2 if n != 3 else 9}"
        for sl in bar_at.get(gi, []): w += f" WAITVM {tagof(sl)}"
        S.fix(start[gi], w)
        if gi in bar_at: S.fix(start[gi], "s_barrier")
        if fine:
            if gi: S.fix(start[gi], f"v_writelane_b32 v{r.TRA+8+(gi-1)//64}, s74, {(gi-1)%64}")
            S.fix(start[gi], "s_memtime s[74:75]")
        if gi + 1 < NG:
            k = 0
            for t in frag_reads(gi + 1):
                S.add("rd", start[gi] + 1 + k, start[gi] + 9, t)
                if t.startswith("ds_"): k += 1
    bslot = {sl: start[k] for k, l in bar_at.items() for sl in l}
    def epi_gu(kind, tc, deadline):
        e = done[gidx[(kind, 5, 1, tc)]] + 8
        h = tc % 2
        stg = r.STG if kind != "B" else r.XV + 16 * (tc // 2)
        if kind != "C" and h == 1:
            S.add("ep", e, None, f"s_add_u32 s{r.sT+4}, s{r.sH}, {4096 * (tc // 2 + (2 if kind == 'B' else 0))}")
        for t in range(4):
            g, u = accb(kind, 0, tc) + 4 * t, accb(kind, 1, tc) + 4 * t
            for i in range(4): S.add("ep", e, deadline, f"v_mul_f32 v{g+i}, v{g+i}, v{u+i}")
            d = stg + 4 * t + 2 * h
            S.add("ep", e, deadline, f"v_cvt_pk_bf16_f32 v{d}, v{g}, v{g+1}")
            S.add("ep", e, deadline, f"v_cvt_pk_bf16_f32 v{d+1}, v{g+2}, v{g+3}")
            if kind == "C":
                S.add("ep", e, None, f"buffer_store_dwordx2 {vr(d,2)}, v{r.L8}, {srd(r.SW)}, s{r.sHC} offen offset:{1024*t} {hst} ; @stC", 2)
            elif h == 1:
                S.add("ep", e, None, f"buffer_store_dwordx4 {vr(stg+4*t)}, v{r.L16}, {srd(r.SW)}, s{r.sT+4} offen offset:{1024*t} {hst} ; @st{kind}{tc//2}", 2)
        return e
    for tc in range(4): epi_gu("A", tc, G("B", 0, 0, tc) - 2)
    e = epi_gu("C", 0, G("D", 0, 0, 0) - 2); tC = e + 25 + lat
    dls = [G("D", 0, 0, 2) - 2, G("D", 0, 0, 4) - 2, G("D", 3, 0, 0) - 4, G("D", 3, 0, 0) - 4]
    eb = [epi_gu("B", tc, dls[tc]) for tc in range(4)]
    tB0, tB1 = eb[1] + 25 + lat, eb[3] + 25 + lat
    def epi_d(tc, tag):
        e = done[gidx[("D", 5, 0, tc)]] + 8
        h = tc % 2
        for t in range(4):
            g = accb("D", 0, tc) + 4 * t
            d = r.STG + 4 * t + 2 * h
            S.add("ep", e, None, f"v_cvt_pk_bf16_f32 v{d}, v{g}, v{g+1}")
            S.add("ep", e, None, f"v_cvt_pk_bf16_f32 v{d+1}, v{g+2}, v{g+3}")
            if tc == 8:
                if t % 2 == 0: S.add("ep", e, None, f"s_add_u32 s{r.sT+4}, s{r.sP}, {(t//2)*8*9216 + 8192}")
                S.add("ep", e, None, f"buffer_store_dwordx2 {vr(d,2)}, v{r.L8}, {srd(r.SW)}, s{r.sT+4} offen offset:{512*(t%2)} {pst} ; @{tag}", 2)
            elif h == 1:
                if t % 2 == 0: S.add("ep", e, None, f"s_add_u32 s{r.sT+4}, s{r.sP}, {(t//2)*8*9216 + (tc//2)*2048}")
                S.add("ep", e, None, f"buffer_store_dwordx4 {vr(r.STG+4*t)}, v{r.L16}, {srd(r.SW)}, s{r.sT+4} offen offset:{1024*(t%2)} {pst} ; @{tag}", 2)
        return e
    for tc in range(6): e = epi_d(tc, "sp0")
    tP0 = e + 60 + lat
    epi_d(6, "sp1"); epi_d(7, "sp1"); epi_d(8, "sp2")
    vm = []
    def put(ops, e, d):
        for t, c in ops: vm.append([e, d, t, c])
    def xl(s): return frag_loads(r, lambda t: xreg(r, s, t), r.sX, s, f"x{s}", "sc1", r.sT + 3)
    def hl(q):
        rot, s = kq(q)
        put(frag_loads(r, lambda t: hreg(r, q, t), r.sHL if rot is None else r.sRH + rot, s, f"h{q}", hld, r.sT + 3), hfree(q), hneed(q))
    def slab(n): put(slab_ops(r, n), free_slot(n - r.NS) if n >= r.NS else 0, bslot[n])
    def sgn(stage, tag, e, sflag):
        put([(f"WAITVM {tag}\nbuffer_atomic_add v0, v{r.AT}, {srd(r.SW)}, s{sflag} offen offset:{128*stage} sc1", 2)], e, None)
    def chkflag(stage, e, tag, filler):
        put([(f"buffer_load_dword v{r.FL}, off, {srd(r.SW)}, s{r.sF4} offset:{128*stage} sc1 ; @{tag} @flag", 2)], e, None)
        filler()
        c1, c2 = poll_check(r.FL, r.SW, r.sT + 5, f"s{r.sF4} offset:{128*stage}", 0 if nochk else 4, tag, slow)
        vm.append([("after", tag, chk), None, c1, 2]); vm.append([("gap", 3), None, c2, 2])
    hfree = lambda q: done[gidx[("B", ((q if q < 10 else q - 2) + 2) // 3, 1, 3)]]
    hneed = lambda q: G("D", q // 3, 0, 0)
    nxt = npre
    for n in range(1, 6):
        for s in range(3 * n, 3 * n + 3): put(xl(s), 0, G("A", n, 0, 0))
        if nxt <= min(n + 2, 5): slab(nxt); nxt += 1
    if not wcpre: put(wc_ops(r), 0, bslot["wc"])
    for n in range(nxt, 12): slab(n)
    sgn(0, "stC", tC, r.sF4)
    dc = [(f"v_lshrrev_b32 v{r.DC}, 5, v{r.L16}\nv_mul_u32_u24 v{r.DC}, 1152, v{r.DC}", 2), (f"v_and_b32 v1, 16, v{r.L16}\nv_add_u32 v{r.DC}, v{r.DC}, v1", 2)]
    for i in range(5):
        T = r.sT
        if i < 4: dc.append((f"s_add_u32 s{T}, s{r.sWv}, {4*i}", 1))
        else: dc.append((f"s_and_b32 s{T}, s{r.sWv}, 1\ns_add_u32 s{T}, s{T}, 16", 2))
        dc.append((f"s_lshl_b32 s{T+1}, s{T}, 10\ns_add_u32 m0, s{T+1}, {r.XB}", 2))
        dc.append((f"s_mul_i32 s{T}, s{T}, {32*1152}\ns_add_u32 s{T}, s{T}, s{r.sDC}", 2))
        dc.append((f"buffer_load_dwordx4 v{r.DC}, {srd(r.SD)}, s{T} offen lds ; @dc @quarter", 2))
    put(dc[:2 + 12], free_slot("wc"), bslot["dc"])
    chkflag(0, tC + 60, "fC", lambda: slab(12))
    for q in range(0, 4): hl(q)
    slab(13)
    for q in range(4, 7): hl(q)
    slab(14)
    for q in range(7, 10): hl(q)
    slab(15); slab(16)
    put(dc[14:], free_slot("wc"), bslot["dc"])
    sgn(1, "stB0", tB0, r.sF4)
    sgn(2, "stB1", tB1, r.sF4)
    chkflag(1, hneed(12) - 12 * pace - lead - chk, "fB0", lambda: slab(17))
    hl(12)
    def f():
        for q in (13, 14): hl(q)
    chkflag(2, hneed(15) - 12 * pace - lead - chk, "fB1", f)
    for q in range(15, 18): hl(q)
    sgn(0, "sp0", tP0, r.sF5)
    cur = 0; tagslot = {}
    for e, d, t, c in vm:
        if isinstance(e, tuple):
            e = tagslot[e[1]] + e[2] if e[0] == "after" else cur + e[1]
        cur = max(cur, e)
        if d is not None and cur > d - 30 and "buffer" in t: print(f"   tight: {t[-30:]!r} at {cur} deadline {d}")
        if d is not None: cur = min(cur, d)
        S.add("vm", cur, d, t, c)
        for tg in re.findall(r"@(\S+)", t): tagslot[tg] = cur
        if "atomic" in t or "readfirst" in t: tagslot[t.split()[1] + ("_sig" if "atomic" in t else "_chk")] = cur
        if "buffer_load" in t:
            cur += 1 if "@flag" in t else (pace + 1) // 2 if "@half" in t else 4 * pace if "@quarter" in t else pace
    for g in (("B", 0, 0, 0), ("D", 0, 0, 0)):
        if st.on: S.fix(G(*g), st.text(g[0]))
    if verbose: print("  vm timeline:", "A0 C%d B%d D%d E%d end%d |" % (G("C",0,0,0), G("B",0,0,0), G("D",0,0,0), G("D",0,0,6), END), " ".join(f"{k}:{v}" for k, v in sorted(tagslot.items(), key=lambda kv: kv[1])))
    late = S.emit(a, ["rd", "ep", "vm"])
    if late: print("  late fillers:", late)

def ffn_tail(a, r, st, slow, pOut):
    T = r.sT; w = r.sWv
    a(st.text("E"))
    vTok, vOut, vA8, vMu, vRs, vA4, vO4 = 4, 5, 6, 7, 8, 9, 10
    vHres = 12
    vP = 24
    vAcc = 112; vSS = 120
    sPB, sHB, sF = r.sW, r.sWC, r.sM0
    poll = lambda stage: f"s{sF} offset:{128*stage}"
    a(f"""s_lshl_b32 s{T}, s{r.sTB}, 2
    s_add_u32 s{T}, s{T}, s{r.sJ}
    s_lshl_b32 s{T+1}, s{T}, 3
    s_add_u32 s{T+1}, s{T+1}, s{r.sKG}
    s_mul_i32 s{T+1}, s{T+1}, {8*9216}
    s_add_u32 s{sPB}, s{T+1}, {WS['PART'][0]}
    s_lshl_b32 s{T}, s{T}, 2
    s_lshr_b32 s{T+1}, s{r.sKG}, 1
    s_add_u32 s{T}, s{T}, s{T+1}
    s_mul_i32 s{T}, s{T}, 384
    s_add_u32 s{sF}, s{T}, {WS['FLAG'][0] + F_E5*128}
    buffer_load_dword v{r.FL}, off, {srd(r.SW)}, {poll(0)} sc1 ; @f50
    s_lshl_b32 s{T}, s{r.sTB}, 2
    s_add_u32 s{T}, s{T}, s{T+1}
    s_mul_i32 s{T}, s{T}, {72*1024}
    s_and_b32 s{T+1}, s{r.sKG}, 1
    s_lshl_b32 s{T+1}, s{T+1}, 1
    s_lshr_b32 s{T+2}, s{w}, 1
    s_add_u32 s{T+1}, s{T+1}, s{T+2}
    s_lshl_b32 s{T+1}, s{T+1}, 10
    s_add_u32 s{T}, s{T}, s{T+1}
    s_add_u32 s{sHB}, s{T}, {WS['HC'][0]}
    s_lshl_b32 s{T}, s{r.sTB}, 8
    s_lshl_b32 s{T+1}, s{r.sKG}, 5
    s_add_u32 s{T}, s{T}, s{T+1}
    s_lshl_b32 s{T+1}, s{w}, 3
    s_add_u32 s{T}, s{T}, s{T+1}
    v_bfe_u32 v1, v{r.L16}, 5, 3
    v_add_u32 v{vTok}, s{T}, v1
    v_lshlrev_b32 v2, 5, v{vTok}
    s_mov_b32 s{T+1}, {WS['SS'][0]}
    buffer_load_dwordx4 {vr(vSS)}, v2, {srd(r.SW)}, s{T+1} offen sc1 ; @stat
    buffer_load_dwordx4 {vr(vSS+4)}, v2, {srd(r.SW)}, s{T+1} offen offset:16 sc1 ; @stat
    v_lshlrev_b32 v2, 2, v{vTok}
    s_mov_b32 s{T+1}, {WS['MU'][0]}
    buffer_load_dword v{vMu}, v2, {srd(r.SW)}, s{T+1} offen sc1 ; @stat
    v_lshrrev_b32 v2, 8, v{r.L16}
    v_bfe_u32 v3, v{r.L16}, 4, 1
    s_and_b32 s{T+1}, s{w}, 1
    s_lshl_b32 s{T+1}, s{T+1}, 7
    v_and_b32 v{vA8}, 0x7f, v{r.L8}
    v_add_u32 v{vA8}, s{T+1}, v{vA8}
    v_lshl_add_u32 v{vA8}, v2, 8, v{vA8}
    v_lshrrev_b32 v{vA4}, 1, v{vA8}
    v_mul_u32_u24 v{vOut}, 1152, v{vTok}
    v_lshl_add_u32 v{vOut}, v2, 3, v{vOut}
    v_lshl_add_u32 v{vO4}, v3, 2, v{vOut}
    v_lshl_add_u32 v{vOut}, v3, 5, v{vOut}""")
    a(f"s_lshl_b32 s{T}, s{r.sJ}, 14\ns_add_u32 s{T}, s{T}, s{sHB}")
    for p in range(4):
        a(f"buffer_load_dwordx2 {vr(vHres+2*p,2)}, v{vA8}, {srd(r.SW)}, s{T} offen sc1 ; @stat\ns_add_u32 s{T}, s{T}, 4096")
    a(f"""s_lshr_b32 s{T}, s{r.sJ}, 1
    s_lshl_b32 s{T}, s{T}, 12
    s_and_b32 s{T+1}, s{r.sJ}, 1
    s_lshl_b32 s{T+1}, s{T+1}, 9
    s_add_u32 s{T}, s{T}, s{T+1}
    s_add_u32 s{T}, s{T}, s{sHB}
    s_add_u32 s{T}, s{T}, {16*4096}
    buffer_load_dword v{vHres+8}, v{vA4}, {srd(r.SW)}, s{T} offen sc1 ; @stat""")
    mk_srd(a, r.SO, pOut, SZ['out'])
    def loads(u):
        a(f"s_lshr_b32 s{T}, s{w}, 1\ns_lshl_b32 s{T}, s{T}, {10 if u < 4 else 9}\ns_add_u32 s{T}, s{T}, {2048*u}\ns_add_u32 s{T}, s{T}, s{sPB}")
        for k in range(8):
            if u < 4: a(f"buffer_load_dwordx2 {vr(vP+16*u+2*k,2)}, v{vA8}, {srd(r.SW)}, s{T} offen sc1 ; @pl{u}")
            else: a(f"buffer_load_dword v{vP+16*u+2*k}, v{vA4}, {srd(r.SW)}, s{T} offen sc1 ; @pl{u}")
            if k < 7: a(f"s_add_u32 s{T}, s{T}, 9216")
    def reduce(u):
        nd = 2 if u < 4 else 1
        a(f"WAITVM pl{u}")
        for k in range(8):
            for d in range(nd):
                src = vP + 16 * u + 2 * k + d
                if k == 0:
                    a(f"v_lshlrev_b32 v{vAcc+2*d}, 16, v{src}\nv_and_b32 v{vAcc+2*d+1}, 0xffff0000, v{src}")
                else:
                    a(f"v_lshlrev_b32 v{vAcc+4}, 16, v{src}\nv_and_b32 v{vAcc+5}, 0xffff0000, v{src}\nv_pk_add_f32 {vr(vAcc+2*d,2)}, {vr(vAcc+2*d,2)}, {vr(vAcc+4,2)}")
        for d in range(nd):
            h = vHres + 2 * u + d
            a(f"""v_lshlrev_b32 v{vAcc+4}, 16, v{h}
            v_and_b32 v{vAcc+5}, 0xffff0000, v{h}
            v_add_f32 v{vAcc+4}, v{vAcc+4}, v{vMu}
            v_add_f32 v{vAcc+5}, v{vAcc+5}, v{vMu}
            v_fmac_f32 v{vAcc+4}, v{vAcc+2*d}, v{vRs}
            v_fmac_f32 v{vAcc+5}, v{vAcc+2*d+1}, v{vRs}
            v_cvt_pk_bf16_f32 v{h}, v{vAcc+4}, v{vAcc+5}""")
        if u < 4:
            a(f"s_lshl_b32 s{T}, s{r.sJ}, 8\nbuffer_store_dwordx2 {vr(vHres+2*u,2)}, v{vOut}, {srd(r.SO)}, s{T} offen offset:{64*u}")
        else:
            a(f"s_lshl_b32 s{T}, s{r.sJ}, 5\nbuffer_store_dword v{vHres+8}, v{vO4}, {srd(r.SO)}, s{T} offen offset:1024")
    a(f"WAITVM sp2\nbuffer_atomic_add v0, v{r.AT}, {srd(r.SW)}, s{r.sF5} offen offset:128 sc1")
    for c in poll_check(r.FL, r.SW, T + 5, poll(0), 8, "f50", slow): a(c)
    loads(0); loads(1); loads(2)
    a(f"buffer_load_dword v{r.FL}, off, {srd(r.SW)}, {poll(1)} sc1 ; @f51")
    a(f"""WAITVM stat
    v_pk_add_f32 {vr(vSS,2)}, {vr(vSS,2)}, {vr(vSS+2,2)}
    v_pk_add_f32 {vr(vSS+4,2)}, {vr(vSS+4,2)}, {vr(vSS+6,2)}
    v_pk_add_f32 {vr(vSS,2)}, {vr(vSS,2)}, {vr(vSS+4,2)}
    v_add_f32 v{vRs}, v{vSS}, v{vSS+1}
    v_mov_b32 v3, 0x3727c5ac
    v_fmac_f32 v3, 0x3ae38e39, v{vRs}
    v_rcp_f32 v{vRs}, v3""")
    reduce(0)
    for c in poll_check(r.FL, r.SW, T + 5, poll(1), 8, "f51", slow): a(c)
    loads(3); loads(4)
    reduce(1); reduce(2); reduce(3); reduce(4)

def k_ffn(name="ffn_kernel", stamps=False, **kw):
    a = Asm(); r = ffn_regs(); slow = []
    st = Stamps(stamps, kid=2)
    a(f"s_cmp_ge_u32 s2, 256\ns_cbranch_scc1 {name}_end")
    a(st.text("start"))
    a(f"s_load_dwordx4 s[4:7], s[0:1], {ARG['wg']}\ns_load_dwordx4 s[8:11], s[0:1], {ARG['wd']}\ns_load_dwordx2 s[68:69], s[0:1], {ARG['ws']}")
    a(f"v_lshrrev_b32 v1, 6, v0\nv_readfirstlane_b32 s{r.sWv}, v1")
    a("v_and_b32 v1, 63, v0")
    ffn_setup(a, r)
    a("v_mov_b32 v0, 1\ns_waitcnt lgkmcnt(0)")
    ffn_srds(a, r, 4, 8, 68)
    for n in range(5):
        for t, c in slab_ops(r, n): a(t)
    for t, c in wc_ops(r): a(t)
    a("s_waitcnt vmcnt(0)")
    for s in range(3):
        for t, c in frag_loads(r, lambda t: xreg(r, s, t), r.sX, s, f"x{s}", "sc1", r.sT + 3): a(t)
    ffn_main(a, r, st, slow, **kw)
    ffn_tail(a, r, st, slow, 10)
    if stamps:
        a("s_waitcnt vmcnt(0)"); a(st.text("end")); st.flush(a, r.SW, 2)
        if kw.get("fine"):
            a(f"s_lshl_b32 s4, s2, 2\ns_add_u32 s4, s4, s3\ns_lshl_b32 s4, s4, 10\ns_add_u32 s4, s4, {WS['STAMP'][0] + MB}\nbuffer_store_dwordx4 v[{r.TRA+8}:{r.TRA+11}], v{r.L16}, {srd(r.SW)}, s4 offen")
    a(f"{name}_end:\ns_endpgm")
    for s in slow: a(s)
    return (name, 256, 256, r.XB + 36864), kernel_text(name, a), st.names

if __name__ == "__main__":
    k = k_ffn(stamps=True, verbose=True)
    open("ffn.s", "w").write(file_text([k[0]], [k[1]]))
```

```python
from common import *
import attn, ffn, sys
NAME = "sequential_preLN__linear_kernel_hedgehog__glu_gated_bilinear__prompt_kernel"

def k_mega(name=NAME, stamps=False, w2="wc", w2b=(0, 1, 2), w3=(3, 4), codepf=True, akw={}, **kw):
    a = Asm(); r = attn.a_regs(); f = ffn.ffn_regs(); slow = []
    st = Stamps(stamps, kid=0)
    a(f"s_cmp_ge_u32 s2, 256\ns_cbranch_scc1 L_end")
    a(st.text("start"))
    if codepf:
        a(f"""s_getpc_b64 s[72:73]
        s_lshr_b32 s74, s2, 3
        s_lshl_b32 s74, s74, 11
        v_and_b32 v1, 15, v0
        v_lshlrev_b32 v1, 7, v1
        v_add_u32 v1, s74, v1
        v_min_u32 v1, L_code_end-{name}-64, v1
        global_load_dword v255, v1, s[72:73]""")
    h = attn.phase_a(a, r, st, slow, **akw)
    attn.phase_a2(a, r, st, slow, h, attn.b_dma_ops(r, slow))
    def setup():
        a(f"s_load_dwordx8 s[4:11], s[0:1], {ARG['wg']}")
        ffn.ffn_setup(a, f, r.L, r.T, r.T + 1)
        a("v_mov_b32 v0, 1\ns_waitcnt lgkmcnt(0)")
        ffn.ffn_srds(a, f, 4, 8)
    def ops(l):
        o = []
        for n in ([l] if isinstance(l, str) else l):
            o += [t for t, c in (ffn.wc_ops(f) if n == "wc" else ffn.slab_ops(f, n))]
        return o
    pre = [n for l in (w2, w2b, w3) for n in ([l] if isinstance(l, str) else l)]
    npre = len([n for n in pre if n != "wc"])
    attn.phase_b(a, r, f, st, slow, ops(w2), ops(w2b), ops(w3), setup)
    T = f.sT
    a(f"""s_lshl_b32 s{T}, s{f.sTB}, 2
    s_add_u32 s{T}, s{T}, s{f.sWv}
    s_lshl_b32 s{T}, s{T}, 9
    s_add_u32 s{T}, s{T}, {WS['FLAG'][0] + F_E3*128}
    v_and_b32 v1, 0x30, v{f.L16}
    v_lshlrev_b32 v1, 3, v1
    s_mov_b32 s{T+1}, 0
    L_e3:
    buffer_load_dword v{f.FL}, v1, {srd(f.SW)}, s{T} offen sc1
    s_add_u32 s{T+1}, s{T+1}, 1
    s_waitcnt vmcnt(0)
    v_cmp_gt_u32 vcc, 8, v{f.FL}
    s_cmp_gt_u32 s{T+1}, 100000
    s_cbranch_scc1 L_e3ok
    s_cbranch_vccnz L_e3
    L_e3ok:""")
    a(st.text("e3"))
    for s in range(3):
        for t, c in ffn.frag_loads(f, lambda t: ffn.xreg(f, s, t), f.sX, s, f"x{s}", "sc1", f.sT + 3): a(t)
    nst = Stamps(False)
    ffn.ffn_main(a, f, nst, slow, npre=npre, wcpre=("wc" in pre), **kw)
    ffn.ffn_tail(a, f, st, slow, 10)
    if stamps:
        a("s_waitcnt vmcnt(0)"); a(st.text("end")); st.flush(a, f.SW, 2)
        if kw.get("fine"):
            a(f"s_lshl_b32 s4, s2, 2\ns_add_u32 s4, s4, s3\ns_lshl_b32 s4, s4, 10\ns_add_u32 s4, s4, {WS['STAMP'][0] + MB}\nbuffer_store_dwordx4 v[{f.TRA+8}:{f.TRA+11}], v{f.L16}, {srd(f.SW)}, s4 offen")
    a("L_end:\ns_endpgm")
    for s in slow: a(s)
    a("L_code_end:")
    return (name, 256, 256, 163840), kernel_text(name, a), st.names

HEAD = open("sequential_preLN__linear_kernel_hedgehog__glu_gated_bilinear__prompt.s.ref").read().split("; Override")[0] if __name__ == "__main__" else ""
def single_file(k):
    n, g, b, lds = k[0]
    return HEAD + f"; @launch grid=({g},1,1) block=({b},1,1) lds={lds}\n" + '.amdgcn_target "amdgcn-amd-amdhsa--gfx950"\n.text\n' + k[1][0] + '.section .rodata,"a"\n' + k[1][1]

if __name__ == "__main__":
    cfg = eval(sys.argv[2]) if len(sys.argv) > 2 else {}
    k = k_mega(**cfg)
    open(sys.argv[1] if len(sys.argv) > 1 else "mega.s", "w").write(single_file(k))
```

```python
from common import *
import attn, ffn, sys
NAME = "sequential_preLN__linear_kernel_hedgehog__glu_gated_bilinear__prompt_kernel"

def k_mega(name=NAME, stamps=False, w2="wc", w2b=(0, 1, 2), w3=(3, 4), codepf=True, akw={}, amp=None, **kw):
    a = Asm(); r = attn.a_regs(); f = ffn.ffn_regs(); slow = []
    st = Stamps(stamps or amp is not None, kid=0)
    a(f"s_cmp_ge_u32 s2, 256\ns_cbranch_scc1 L_end")
    a(st.text("start"))
    if codepf:
        a(f"""s_getpc_b64 s[72:73]
        s_lshr_b32 s74, s2, 3
        s_lshl_b32 s74, s74, 11
        v_and_b32 v1, 15, v0
        v_lshlrev_b32 v1, 7, v1
        v_add_u32 v1, s74, v1
        v_min_u32 v1, L_code_end-{name}-64, v1
        global_load_dword v255, v1, s[72:73]""")
    h = attn.phase_a(a, r, st, slow, **akw)
    attn.phase_a2(a, r, st, slow, h, attn.b_dma_ops(r, slow))
    def setup():
        a(f"s_load_dwordx8 s[4:11], s[0:1], {ARG['wg']}")
        ffn.ffn_setup(a, f, r.L, r.T, r.T + 1)
        a("v_mov_b32 v0, 1\ns_waitcnt lgkmcnt(0)")
        ffn.ffn_srds(a, f, 4, 8)
    def ops(l):
        o = []
        for n in ([l] if isinstance(l, str) else l):
            o += [t for t, c in (ffn.wc_ops(f) if n == "wc" else ffn.slab_ops(f, n))]
        return o
    pre = [n for l in (w2, w2b, w3) for n in ([l] if isinstance(l, str) else l)]
    npre = len([n for n in pre if n != "wc"])
    attn.phase_b(a, r, f, st, slow, ops(w2), ops(w2b), ops(w3), setup)
    T = f.sT
    a(f"""s_lshl_b32 s{T}, s{f.sTB}, 2
    s_add_u32 s{T}, s{T}, s{f.sWv}
    s_lshl_b32 s{T}, s{T}, 9
    s_add_u32 s{T}, s{T}, {WS['FLAG'][0] + F_E3*128}
    v_and_b32 v1, 0x30, v{f.L16}
    v_lshlrev_b32 v1, 3, v1
    s_mov_b32 s{T+1}, 0
    L_e3:
    buffer_load_dword v{f.FL}, v1, {srd(f.SW)}, s{T} offen sc1
    s_add_u32 s{T+1}, s{T+1}, 1
    s_waitcnt vmcnt(0)
    v_cmp_gt_u32 vcc, 8, v{f.FL}
    s_cmp_gt_u32 s{T+1}, 100000
    s_cbranch_scc1 L_e3ok
    s_cbranch_vccnz L_e3
    L_e3ok:""")
    a(st.text("e3"))
    for s in range(3):
        for t, c in ffn.frag_loads(f, lambda t: ffn.xreg(f, s, t), f.sX, s, f"x{s}", "sc1", f.sT + 3): a(t)
    nst = Stamps(False)
    ffn.ffn_main(a, f, nst, slow, npre=npre, wcpre=("wc" in pre), **kw)
    ffn.ffn_tail(a, f, st, slow, 10)
    if amp is not None:
        a("s_waitcnt vmcnt(0)"); a(st.text("end"))
        i, j, e = [st.base + 2 * st.names.index(n) for n in (amp[0], amp[1], "end")]
        a(f"s_waitcnt lgkmcnt(0)\ns_sub_u32 s4, s{j}, s{i}\ns_min_u32 s4, s4, 20000\ns_mul_i32 s4, s4, 10")
        a(f"L_amp:\ns_memrealtime s[6:7]\ns_waitcnt lgkmcnt(0)\ns_sub_u32 s5, s6, s{e}\ns_cmp_lt_u32 s5, s4\ns_cbranch_scc1 L_amp")
    if stamps:
        a("s_waitcnt vmcnt(0)"); a(st.text("end")); st.flush(a, f.SW, 2)
        if kw.get("fine"):
            a(f"s_lshl_b32 s4, s2, 2\ns_add_u32 s4, s4, s3\ns_lshl_b32 s4, s4, 10\ns_add_u32 s4, s4, {WS['STAMP'][0] + MB}\nbuffer_store_dwordx4 v[{f.TRA+8}:{f.TRA+11}], v{f.L16}, {srd(f.SW)}, s4 offen")
    a("L_end:\ns_endpgm")
    for s in slow: a(s)
    a("L_code_end:")
    return (name, 256, 256, 163840), kernel_text(name, a), st.names

HEAD = open("sequential_preLN__linear_kernel_hedgehog__glu_gated_bilinear__prompt.s.ref").read().split("; Override")[0] if __name__ == "__main__" else ""
def single_file(k):
    n, g, b, lds = k[0]
    return HEAD + f"; @launch grid=({g},1,1) block=({b},1,1) lds={lds}\n" + '.amdgcn_target "amdgcn-amd-amdhsa--gfx950"\n.text\n' + k[1][0] + '.section .rodata,"a"\n' + k[1][1]

if __name__ == "__main__":
    cfg = eval(sys.argv[2]) if len(sys.argv) > 2 else {}
    k = k_mega(**cfg)
    open(sys.argv[1] if len(sys.argv) > 1 else "mega.s", "w").write(single_file(k))
```

```python
import re

TRANS = ("v_exp_f32", "v_log_f32", "v_rcp_f32", "v_rsq_f32", "v_sqrt_f32", "v_sin_f32", "v_cos_f32", "v_rcp_iflag_f32")
REG_RE = re.compile(r"\b([vas])(?:(\d+)|\[(\d+):(\d+)\])")

def regs_of(tok):
    tok = tok.strip()
    out = set()
    for m in REG_RE.finditer(tok):
        k = m.group(1)
        if m.group(2) is not None:
            out.add((k, int(m.group(2))))
        else:
            for i in range(int(m.group(3)), int(m.group(4)) + 1):
                out.add((k, i))
    if re.search(r"\bvcc(_lo|_hi)?\b", tok): out.add(("x", "vcc"))
    if re.search(r"\bexec(_lo|_hi)?\b", tok): out.add(("x", "exec"))
    if re.search(r"\bm0\b", tok): out.add(("x", "m0"))
    return out

def split_ops(s):
    ops, depth, cur = [], 0, ""
    for ch in s:
        if ch in "[(": depth += 1
        if ch in "])": depth -= 1
        if ch == "," and depth == 0:
            ops.append(cur.strip()); cur = ""
        else:
            cur += ch
    if cur.strip(): ops.append(cur.strip())
    return ops

class Ins:
    __slots__ = ("text", "op", "cls", "w", "r", "ops", "srcc", "srcab", "passes", "states", "dpp", "sdwa", "lds_dma", "widestore", "data")
    def __init__(self, text):
        self.text = text
        t = text.split(";")[0].strip()
        parts = t.split(None, 1)
        self.op = op = parts[0]
        rest = parts[1] if len(parts) > 1 else ""
        ops = split_ops(rest)
        self.ops = ops
        self.w, self.r = set(), set()
        self.srcc, self.srcab, self.passes = set(), set(), 0
        self.states = 1
        self.dpp = "_dpp" in op or "row_" in rest or "quad_perm" in rest
        self.sdwa = "_sdwa" in op and "dst_sel:DWORD" not in rest
        self.lds_dma = False; self.widestore = False; self.data = set()
        R = [regs_of(o) for o in ops]
        allr = lambda i: set().union(*R[i:]) if len(R) > i else set()
        if op.startswith("v_mfma"):
            self.cls = "mfma"
            self.w = R[0]; self.srcab = R[1] | R[2]; self.srcc = R[3]; self.r = self.srcab | self.srcc
            self.passes = 8 if "32x32" in op else 4
        elif op.startswith("v_cmpx"):
            raise Exception("v_cmpx not supported by linter")
        elif op.startswith("v_cmp"):
            self.cls = "valu"; self.w = R[0]; self.r = allr(1)
        elif op.startswith("v_readfirstlane") or op.startswith("v_readlane"):
            self.cls = "valu"; self.w = R[0]; self.r = allr(1)
        elif op.startswith("v_permlane") and "swap" in op:
            self.cls = "valu"; self.w = R[0] | R[1]; self.r = R[0] | R[1]
        elif op.startswith("v_add_co") or op.startswith("v_addc_co") or op.startswith("v_sub_co") or op.startswith("v_subb_co") or op.startswith("v_div_scale") or op.startswith("v_mad_u64"):
            self.cls = "valu"; self.w = R[0] | R[1]; self.r = allr(2)
        elif op.startswith("v_nop"):
            self.cls = "valu"
        elif op.startswith("v_"):
            self.cls = "valu"; self.w = R[0]; self.r = allr(1)
            if op.startswith(("v_fmac", "v_dot2c", "v_pk_fmac", "v_writelane")) or self.dpp or self.sdwa or "d16" in op:
                self.r |= R[0]
            if op.startswith("v_div_fmas"): self.r.add(("x", "vcc"))
        elif op.startswith("ds_"):
            self.cls = "ds"
            if op.startswith(("ds_read", "ds_bpermute", "ds_permute", "ds_swizzle")) or "_rtn" in op:
                self.w = R[0]; self.r = allr(1)
                if "d16" in op: self.r |= R[0]
            else:
                self.r = allr(0)
        elif op.startswith(("buffer_", "global_")):
            self.cls = "vmem"
            if op in ("buffer_wbl2", "buffer_inv"):
                pass
            elif re.search(r"\blds\b", rest) or "load_lds" in op:
                self.lds_dma = True; self.r = allr(0) | {("x", "m0")}
            elif "_load" in op:
                self.w = R[0]; self.r = allr(1)
                if "d16" in op: self.r |= R[0]
            elif "atomic" in op:
                if op.startswith("buffer_"):
                    self.r = allr(0)
                    if re.search(r"\bsc0\b", rest): self.w = R[0]
                else:
                    if re.search(r"\bsc0\b", rest): self.w = R[0]; self.r = allr(1)
                    else: self.r = allr(0)
            else:
                self.r = allr(0)
                self.data = R[0] if op.startswith("buffer_") else R[1]
                if "x3" in op or "x4" in op: self.widestore = True
        elif op.startswith(("s_load", "s_buffer_load", "s_memtime", "s_memrealtime", "s_atomic")):
            self.cls = "smem"; self.w = R[0]; self.r = allr(1)
        elif op == "s_nop":
            self.cls = "nop"; self.states = int(ops[0], 0) + 1
        elif op.startswith(("s_waitcnt", "s_barrier", "s_endpgm", "s_setprio", "s_sleep", "s_branch", "s_cbranch")):
            self.cls = "ctl"
            if "vcc" in op: self.r = {("x", "vcc")}
            if "exec" in op: self.r = {("x", "exec")}
        elif op.startswith("s_cmp") or op.startswith("s_bitcmp"):
            self.cls = "salu"; self.r = allr(0)
        elif op.startswith("s_"):
            self.cls = "salu"; self.w = R[0] if R else set(); self.r = allr(1)
            if "saveexec" in op: self.w = self.w | {("x", "exec")}; self.r = self.r | {("x", "exec")}
            if op.startswith(("s_addk", "s_mulk", "s_cmov")): self.r |= R[0]
        else:
            raise Exception("unknown instruction: " + text)

def is_vec(rs): return {r for r in rs if r[0] in "va"}
def is_sc(rs): return {r for r in rs if r[0] == "s" or r == ("x", "vcc")}

def need(p, c):
    n = 0
    if p.cls == "valu":
        wv, ws = is_vec(p.w), is_sc(p.w)
        if wv:
            if c.cls == "mfma" and wv & c.r: n = max(n, 2)
            if c.cls == "valu":
                if c.op.startswith(("v_readlane", "v_readfirstlane")) and wv & c.r: n = max(n, 1)
                if c.dpp and wv & c.r: n = max(n, 2)
                if c.op.startswith("v_permlane") and wv & c.r: n = max(n, 2)
                if p.op.startswith(TRANS) and wv & c.r: n = max(n, 1)
                if p.sdwa and wv & (c.r | c.w): n = max(n, 1)
            if p.op.startswith("v_dot"):
                if wv & (c.r | c.w):
                    same_c = c.op == p.op and not (wv & (regs_of(c.ops[1]) | regs_of(c.ops[2])))
                    if not same_c: n = max(n, 3)
        if ws:
            if c.cls == "valu" and ws & c.r:
                n = max(n, 4 if c.op.startswith(("v_readlane", "v_writelane", "v_div_fmas")) else 2)
            if c.cls == "mfma" and ws & c.r: n = max(n, 2)
            if c.cls == "vmem" and ws & c.r: n = max(n, 5)
            if c.cls in ("salu", "smem") and ws & c.r: n = max(n, 3)
            if c.cls == "ctl" and ws & c.r: n = max(n, 3)
    if p.cls == "mfma":
        d = p.w
        big = p.passes == 8
        if c.cls == "mfma":
            if d & c.srcab: n = max(n, 12 if big else 8)
            if d & c.srcc:
                if not (c.srcc == d and c.op == p.op): n = max(n, 10 if big else 6)
            elif d & c.w:
                n = max(n, 10 if big else 6)
        elif c.cls in ("valu", "vmem", "ds"):
            if d & (c.r | c.w): n = max(n, 12 if big else 8)
        if c.cls == "valu" and p.srcc & c.w: n = max(n, 7 if big else 3)
    if p.cls == "vmem" and p.widestore:
        if p.data & c.w: n = max(n, 2 if c.cls in ("valu", "mfma") else 1)
    if p.cls == "salu" and ("x", "m0") in p.w:
        if c.lds_dma or "addtid" in c.op or c.op.startswith("s_movrel"): n = max(n, 1)
    return n

MAXD = 13

class Asm:
    def __init__(self):
        self.items = []
    def resolve_waits(self):
        out = []; vml = []; lgl = []
        total = {}
        for it in self.items:
            if isinstance(it, Ins):
                for tg in re.findall(r"@(\S+)", it.text): total[tg] = total.get(tg, 0) + 1
        vmdone = lgdone = 0
        for it in self.items:
            if isinstance(it, str) and it.startswith(("WAITVM", "WAITLG")):
                toks = it.split()
                parts = {}
                i = 0
                while i < len(toks):
                    kind, tag = toks[i], toks[i+1]; i += 2
                    q = vml if kind == "WAITVM" else lgl
                    idx = [n for n, t in enumerate(q) if tag in t]
                    assert idx, "no op tagged " + tag
                    assert len(idx) == total[tag], f"wait on {tag} placed before all its ops were issued"
                    last = idx[-1] + 1
                    done = vmdone if kind == "WAITVM" else lgdone
                    if last <= done: continue
                    n = len(q) - last
                    mx = 63 if kind == "WAITVM" else 15
                    n = min(n, mx)
                    if kind == "WAITVM": vmdone = len(q) - n; parts["vmcnt"] = n
                    else: lgdone = len(q) - n; parts["lgkmcnt"] = n
                if parts: out.append(Ins("s_waitcnt " + " ".join(f"{k}({v})" for k, v in parts.items())))
                continue
            if isinstance(it, Ins):
                tags = re.findall(r"@(\S+)", it.text)
                if it.cls == "vmem":
                    if "cond" not in tags: vml.append(tags)
                elif it.cls == "ds": lgl.append(tags)
                elif it.op == "s_waitcnt":
                    m = re.search(r"vmcnt\((\d+)\)", it.text)
                    if m: vmdone = max(vmdone, len(vml) - int(m.group(1)))
                    m = re.search(r"lgkmcnt\((\d+)\)", it.text)
                    if m: lgdone = max(lgdone, len(lgl) - int(m.group(1)))
            out.append(it)
        self.items = out
    def __call__(self, s):
        for line in s.split("\n"):
            t = line.strip()
            if not t: continue
            if t.startswith((";", ".", "WAITVM", "WAITLG")) or re.match(r"^[\w.$]+:$", t):
                self.items.append(t)
            else:
                self.items.append(Ins(t))
    def raw(self, s): self.items.append(s)
    def pad(self):
        changed = True
        total = 0
        while changed:
            changed = False
            items = self.items
            labels = {it[:-1]: i for i, it in enumerate(items) if isinstance(it, str) and it.endswith(":") and not it.startswith(";")}
            brs = {}
            for i, it in enumerate(items):
                if isinstance(it, Ins) and it.op.startswith(("s_branch", "s_cbranch")):
                    brs.setdefault(it.ops[0], []).append(i)
            def back(i, dist, c, acc):
                j = i - 1
                while j >= 0 and dist < MAXD:
                    it = items[j]
                    if isinstance(it, str):
                        if it.endswith(":") and it[:-1] in brs:
                            for b in brs[it[:-1]]:
                                back(b, dist + 1, c, acc)
                        j -= 1; continue
                    if it.op in ("s_branch", "s_endpgm"): return
                    nd = need(it, c)
                    if nd > dist: acc[0] = max(acc[0], nd - dist)
                    dist += it.states
                    j -= 1
            out = []
            for i, it in enumerate(items):
                if isinstance(it, Ins) and it.cls not in ("nop",):
                    acc = [0]
                    back(i, 0, it, acc)
                    if acc[0] > 0:
                        items.insert(i, Ins(f"s_nop {acc[0]-1}"))
                        total += acc[0]
                        changed = True
                        break
        return total
    def pad_fast(self):
        total = 0
        for _ in range(50):
            items = self.items
            brs = {}
            for i, it in enumerate(items):
                if isinstance(it, Ins) and it.op.startswith(("s_branch", "s_cbranch")):
                    brs.setdefault(it.ops[0], []).append(i)
            extra = {}
            def back(i, dist, c, acc):
                j = i - 1
                while j >= 0 and dist < MAXD:
                    it = items[j]
                    if isinstance(it, str):
                        if it.endswith(":") and it[:-1] in brs:
                            for b in brs[it[:-1]]:
                                back(b, dist + 1 + extra.get(b, 0), c, acc)
                        j -= 1; continue
                    if it.op in ("s_branch", "s_endpgm"): return
                    nd = need(it, c)
                    if nd > dist: acc[0] = max(acc[0], nd - dist)
                    dist += it.states + extra.get(j, 0)
                    j -= 1
            for i, it in enumerate(items):
                if isinstance(it, Ins) and it.cls != "nop":
                    acc = [0]
                    back(i, 0, it, acc)
                    if acc[0] > 0: extra[i] = acc[0]
            if not extra: return total
            new = []
            for i, it in enumerate(items):
                if i in extra:
                    new.append(Ins(f"s_nop {extra[i]-1}")); total += extra[i]
                new.append(it)
            self.items = new
        raise Exception("pad did not converge")
    def verify_waits(self, name=""):
        items = self.items
        labels = {it[:-1]: i for i, it in enumerate(items) if isinstance(it, str) and it.endswith(":") and not it.startswith(";")}
        vm, lg = [], []
        taken = set()
        i = 0; errs = []
        while i < len(items):
            it = items[i]
            if isinstance(it, str): i += 1; continue
            if it.op == "s_endpgm":
                vm, lg = [], []; i += 1; continue
            if it.op == "s_waitcnt":
                t = it.text
                m = re.search(r"vmcnt\((\d+)\)", t)
                if m:
                    n = int(m.group(1)); assert n <= 63, t
                    while len(vm) > n: vm.pop(0)
                m = re.search(r"lgkmcnt\((\d+)\)", t)
                if m:
                    n = int(m.group(1)); assert n <= 15, t
                    if n == 0: lg = []
                    else:
                        while sum(k == "ds" for _, _, k in lg) > n:
                            lg.pop([k for _, _, k in lg].index("ds"))
                i += 1; continue
            touched = it.r | it.w
            for q in (vm, lg):
                for d, t, k in q:
                    if d & touched:
                        if not (d & it.r) and ((q is vm and it.cls == "vmem") or (q is lg and it.cls == "ds" and k == "ds")): continue
                        errs.append(f"{name}: '{it.text}' touches result of un-waited '{t}'")
            if it.cls == "vmem": vm.append((it.w, it.text, "vm"))
            elif it.cls == "ds": lg.append((it.w, it.text, "ds"))
            elif it.cls == "smem": lg.append((it.w, it.text, "smem"))
            if it.op.startswith(("s_branch", "s_cbranch")):
                if it.ops[0].startswith("L_hop"): i += 1; continue
                tgt = labels[it.ops[0]]
                if tgt < i and i not in taken:
                    taken.add(i); i = tgt; continue
                if it.op == "s_branch" and tgt > i:
                    i = tgt; continue
            i += 1
        return errs
    def text(self):
        out = []
        for it in self.items:
            out.append(it if isinstance(it, str) else "  " + it.text.split(";")[0].rstrip())
        return "\n".join(out) + "\n"
    def maxregs(self):
        mv = ma = ms = -1
        for it in self.items:
            if isinstance(it, Ins):
                for k, n in it.r | it.w:
                    if k == "v": mv = max(mv, n)
                    if k == "a": ma = max(ma, n)
                    if k == "s": ms = max(ms, n)
        return mv + 1, ma + 1, ms + 1

def insert_hops(name, a, split=None):
    import subprocess, tempfile, os
    d = tempfile.mkdtemp()
    open(d + "/k.s", "w").write('.amdgcn_target "amdgcn-amd-amdhsa--gfx950"\n.text\n' + f"{name}:\n" + a.text() + "".join(f"L_hop{x}{i}:\n" for i in range(1, 5) for x in ("", "b")))
    r = subprocess.run(["clang", "-x", "assembler", "-target", "amdgcn-amd-amdhsa", "-mcpu=gfx950", "-c", d + "/k.s", "-o", d + "/k.o"], capture_output=True, text=True)
    assert r.returncode == 0, r.stderr
    dis = subprocess.run(["llvm-objdump", "-d", "--mcpu=gfx950", d + "/k.o"], capture_output=True, text=True).stdout
    dis = dis[dis.index("<L_main>:"):]
    addrs = [int(m.group(1), 16) for m in re.finditer(r"// ([0-9A-F]{12}):", dis)]
    i0 = a.items.index("L_main:")
    base = addrs[0]; assert base % 4096 == 0
    pos = []; k = 0; page = 1; second = False; endseen = False
    for i in range(i0, len(a.items)):
        it = a.items[i]
        if it == f"{split}:": second = True
        if not isinstance(it, Ins): continue
        if not endseen and addrs[k] - base + 4 * len(pos) >= 4096 * page:
            pos.append((i, second)); page += 1
        if it.op == "s_endpgm": endseen = True
        k += 1
    assert k == len(addrs), (k, len(addrs))
    ins = {}
    for x, end in (("", "L_main"), ("b", "L_mainb")):
        l = [i for i, sec in pos if sec == (x == "b")]
        for n, i in enumerate(l):
            ins[i] = [f"L_hop{x}{n+1}:", Ins(f"s_cbranch_execz {'L_hop%s%d' % (x, n + 5) if n + 4 < len(l) else end}")]
        if x == "" or split:
            assert len(l) >= 4, "too few pages"
    out = []
    for i, it in enumerate(a.items):
        out += ins.get(i, []); out.append(it)
    a.items = out
    return len(pos)

def hop_dispatch(swave, x=""):
    t = "s_mov_b64 exec, 0\n"
    for w in range(3): t += f"s_cmp_eq_u32 s{swave}, {w}\ns_cbranch_scc1 L_hop{x}{w+1}\n"
    return t + f"s_branch L_hop{x}4"

def kernel_text(name, a, force_vgpr=None, hop=False, split=None):
    a.resolve_waits()
    npad = a.pad_fast()
    errs = a.verify_waits(name)
    if errs:
        for e in errs[:20]: print("WAIT ERROR", e)
        raise Exception("waitcnt verification failed")
    if hop: insert_hops(name, a, split)
    nv, na, ns = a.maxregs()
    acc_off = max(4, (nv + 3) // 4 * 4)
    nfv = acc_off + na if na else max(nv, 1)
    if force_vgpr: nfv = max(nfv, force_vgpr)
    assert nv <= 256 and na <= 256 and ns <= 102, (nv, na, ns)
    code = f".globl {name}\n.p2align 8\n.type {name},@function\n{name}:\n" + a.text()
    desc = f""".p2align 6
.amdhsa_kernel {name}
  .amdhsa_next_free_vgpr {nfv}
  .amdhsa_next_free_sgpr {max(ns, 8)}
  .amdhsa_accum_offset {acc_off}
  .amdhsa_group_segment_fixed_size 0
  .amdhsa_kernarg_size 88
  .amdhsa_user_sgpr_count 2
  .amdhsa_user_sgpr_kernarg_segment_ptr 1
  .amdhsa_system_sgpr_workgroup_id_x 1
  .amdhsa_float_denorm_mode_32 3
.end_amdhsa_kernel
"""
    ninst = sum(isinstance(it, Ins) for it in a.items)
    print(f"  {name}: {ninst} instr, v{nv} a{na} s{ns}, nop states inserted {npad}")
    return code, desc

def file_text(header_launches, kernels):
    out = ""
    for n, g, b, lds in header_launches:
        out += f"; @launch kernel={n} grid=({g},1,1) block=({b},1,1) lds={lds}\n"
    out += '.amdgcn_target "amdgcn-amd-amdhsa--gfx950"\n.text\n'
    for c, d in kernels: out += c
    out += '.section .rodata,"a"\n'
    for c, d in kernels: out += d
    return out


class Sched:
    def __init__(self, cap=2):
        self.mf = []; self.cap = cap
        self.streams = {}
        self.fixed = {}
        self.order = []; self.freefix = set()
    def n(self): return len(self.mf)
    def mfma(self, t): self.mf.append(t); return len(self.mf) - 1
    def fix(self, slot, t, free=False):
        self.fixed.setdefault(slot, []).append(t)
        if free: self.freefix.add(slot)
    def add(self, stream, earliest, deadline, t, cost=1):
        if stream not in self.streams: self.streams[stream] = []; self.order.append(stream)
        self.streams[stream].append([earliest, deadline, t, cost])
    def emit(self, a, prio=None, vmcost=2, twods=()):
        prio = prio or self.order
        for s in self.order:
            assert s in prio, s
        pos = {s: 0 for s in self.order}
        late = 0
        N = len(self.mf)
        def adv(t, nd, text):
            for l in text.split("\n"):
                l = l.strip()
                if not l or l.endswith(":"): continue
                if l.startswith(("s_", "WAIT")): t += 1; continue
                if t == 1: t = 2
                t += vmcost if l.startswith(("buffer_", "global_")) else 2 if l.startswith(TRANS) else 1
                nd += l.startswith("ds_read")
            return t, nd
        for slot in range(N + 1):
            t, nd = 1, 0
            for x in self.fixed.get(slot, []): a(x); t, nd = adv(t, nd, x)
            for s in prio:
                q = self.streams.get(s, [])
                lastforced = -1
                for j in range(pos[s], min(len(q), pos[s] + 400)):
                    if q[j][1] is not None and q[j][1] <= slot: lastforced = j
                while pos[s] <= lastforced or (slot == N and pos[s] < len(q)):
                    e = q[pos[s]]
                    assert e[0] <= slot or slot == N, ("deadline before earliest", s, e, slot)
                    a(e[2]); t, nd = adv(t, nd, e[2]); pos[s] += 1
                    if t > 4 and slot < N: late += 1
            while t < 4 and slot < N:
                best = None
                for pas in (0, 1):
                    for s in prio:
                        q = self.streams.get(s, [])
                        if pos[s] >= len(q) or q[pos[s]][0] > slot: continue
                        x = q[pos[s]][2]
                        tt, d = adv(t, nd, x)
                        if pas == 0 and not (t == 1 and tt == 2): continue
                        if (tt <= 4 or t == 1) and d <= (2 if slot in twods else 1): best = (s, tt, d); break
                    if best: break
                if not best: break
                s, t, nd = best
                a(self.streams[s][pos[s]][2]); pos[s] += 1
            if slot < N: a(self.mf[slot])
        return late
```

```python
from common import *
from common import _lab
MF16 = "v_mfma_f32_16x16x16_bf16"
OOB = 0x40000000
NLEAD = 5

WKV, XR, ZERO, PHI, DUMMY = 0, 92160, 157696, 158592, 161600
FK, VI = 0, 20480
WO, WO8, KVI = 0, 73728, 158592
XRES, XRES8 = 14336, 2560
QOFF = (4096, 6656, 9216, 11776, 0)

def a_regs():
    r = R()
    r.SX, r.SQ, r.SP, r.SO, r.SW, r.SDB = 12, 16, 20, 24, 28, 32
    r.sWv = 3
    r.sHP, r.sTB, r.sRot, r.sC, r.sXb, r.sWb, r.sXm, r.sWm = 36, 37, 38, 39, 40, 41, 42, 43
    r.sT = 44
    r.sU = 48
    r.sF1, r.sKVP, r.sG, r.sPS = 52, 53, 54, 55
    r.sM = 56
    r.sMX, r.sO0, r.sO1, r.sHv, r.sLd, r.sRS, r.sRP = 64, 65, 66, 76, 77, 73, 74
    r.sB, r.sTT, r.sBT = 67, 72, 68
    r.L = 1; r.J = 2; r.C = 3
    r.XD = 4; r.WD = 6; r.XRD = 9; r.TW = 11
    r.AT = 15; r.FL = 16; r.ONE = 17; r.T = 18
    r.ONES = 24
    r.WF = 28
    r.WB = 68
    r.AK = 108; r.AS = 168; r.RS = 184; r.NM = 186
    r.PK = 188; r.FQ = 208
    names = "AV AM AF AV3 AF3 PS0 PS1 PS2 BP MX C1 TQ TQM PL KW K4a TG TG1 TG2 DUM".split()
    for k, n in enumerate(names): setattr(r, n, 228 + k)
    r.U = 248
    r.K4b, r.OS0, r.OS1 = 252, 253, 254
    r.touch = {}
    r.aX = 0; r.aPH = 144; r.aP = 176; r.aSEL = 240
    return r

def xa(r, p, t): return vr(r.aX + 8 * p + 4 * t, 4, "a")

def touches(r, where):
    P = dict(g=(4, 0), u=(6, 0), G=(4, 1), U=(6, 1), d=(8, 2))
    return [f"buffer_load_dword v{r.DUM}, v{r.WB+36}, {srd(r.SO)}, 0 offen" if c == "o" else
            f"global_load_dword v{r.DUM}, v{r.TG+P[c][1]}, s[{P[c][0]}:{P[c][0]+1}]" for c in r.touch.get(where, "")]

def hop_here(a, w):
    a(hop_dispatch(w)); a.raw(".p2align 12"); a("L_main:\ns_mov_b64 exec, -1\ns_nop 1")

def phase_a(a, r, st, slow, LA=2, A=4, gaps=([0, 10, 13, 16], [8, 11, 16]), exp='', hop=0, qw=220):
    T, U, V = r.sT, r.sU, r.T; w = r.sWv; WB = r.WB
    la = A.bit_length() - 1
    a(f"""s_load_dwordx8 s[4:11], s[0:1], 0
    s_load_dwordx4 s[68:71], s[0:1], {ARG['dbg']}
    v_lshrrev_b32 v{V}, 6, v0
    v_and_b32 v{r.L}, 63, v0
    v_readfirstlane_b32 s{w}, v{V}
    v_bfe_u32 v{r.C}, v0, 4, 2
    s_and_b32 s{T}, s2, {16//A - 1}
    s_lshl_b32 s{T}, s{T}, {la}
    s_bfe_u32 s{T+1}, s2, {hex(la << 16 | 3)}
    s_add_u32 s{r.sHP}, s{T}, s{T+1}
    s_lshr_b32 s{r.sTB}, s2, {3 + la}
    s_bfe_u32 s{T}, s2, {hex((la - 1) << 16 | (4 - la))}
    s_lshl_b32 s{T}, s{T}, {5 - la}
    s_add_u32 s{r.sTB}, s{r.sTB}, s{T}
    s_lshl_b32 s{T}, s{r.sHP}, 2
    s_add_u32 s{T}, s{T}, s{r.sTB}
    s_mul_i32 s{T+1}, s{T}, 57
    s_lshr_b32 s{T+1}, s{T+1}, 9
    s_mul_i32 s{T+1}, s{T+1}, 9
    s_sub_u32 s{r.sRot}, s{T}, s{T+1}
    s_mov_b32 s{r.sC}, s{r.sRot}
    v_lshrrev_b32 v{V}, 3, v{r.L}
    v_and_b32 v{V+1}, 7, v{r.L}
    v_xor_b32 v{V+1}, v{V+1}, v{r.C}
    v_mul_u32_u24 v{V+2}, 1152, v{V}
    v_lshl_add_u32 v{r.XD}, v{V+1}, 4, v{V+2}
    v_xor_b32 v{r.XD+1}, 64, v{r.XD}
    v_add_u32 v{r.XD+1}, {8*1152-1024}, v{r.XD+1}
    s_lshl_b32 s{T}, s{r.sTB}, 2
    s_add_u32 s{T}, s{T}, s{w}
    s_mul_i32 s{r.sXb}, s{T}, {32*1152}
    s_lshl_b32 s{r.sXm}, s{w}, 14
    s_add_u32 s{r.sXm}, s{r.sXm}, {XR}
    s_lshr_b32 s{T}, s{r.sHP}, 3
    s_xor_b32 s{T}, s{T}, s{r.sHP}
    s_and_b32 s{r.sHv}, s{T}, 1
    s_or_b32 s{T}, s{r.sHv}, s{w}
    s_lshl_b32 s{T+1}, s{r.sTB}, 3
    s_lshr_b32 s{T+2}, s{r.sHP}, 1
    s_add_u32 s{T+1}, s{T+1}, s{T+2}
    s_cmp_lg_u32 s{T}, 0
    s_cselect_b32 s{r.sG}, 72, s{T+1}
    s_waitcnt lgkmcnt(0)""")
    a(st.text("ka"))
    mk_srd(a, r.SX, 4, SZ['x']); mk_srd(a, r.SO, 10, SZ['wo'])
    a(f"""s_cmp_ge_u32 s{r.sG}, 72
    s_cbranch_scc1 L_wb1
    s_lshr_b32 s{U}, s{r.sG}, 1
    s_mul_i32 s{U}, s{U}, 18
    s_and_b32 s{U+1}, s{r.sG}, 1
    s_lshl_b32 s{U+1}, s{U+1}, 2
    s_add_u32 s{U}, s{U}, s{U+1}
    s_sub_u32 s{U+1}, s{r.sG}, 64
    s_mul_i32 s{U+1}, s{U+1}, 72
    s_add_u32 s{U+1}, s{U+1}, 16
    v_and_b32 v{V+1}, 4, v{V}
    v_add_u32 v{V+1}, v{V+1}, v{V}
    v_mul_u32_u24 v{V+2}, 18, v{r.C}
    v_and_b32 v{V+3}, 1, v{V}
    v_add_u32 v{V+2}, v{V+2}, v{V+3}
    s_cmp_lt_u32 s{r.sG}, 64
    s_cselect_b32 s{U}, s{U}, s{U+1}
    s_cselect_b64 vcc, -1, 0
    s_mul_i32 s{U}, s{U}, 1152
    v_cndmask_b32 v{V+1}, v{V+2}, v{V+1}, vcc
    v_mul_u32_u24 v{V+1}, 1152, v{V+1}
    v_and_b32 v{V+2}, 7, v{r.L}
    v_lshl_add_u32 v{V+1}, v{V+2}, 4, v{V+1}""")
    for i in range(9):
        a(f"buffer_load_dwordx4 {vr(WB+4*i)}, v{V+1}, {srd(r.SO)}, s{U} offen offset:{128*i} ; @cond")
    W8 = r.PK
    a(f"""v_bfe_u32 v{V+1}, v{r.L}, 1, 2
    v_bfe_u32 v{V+2}, v{r.L}, 2, 1
    v_lshl_add_u32 v{V+2}, v{V+2}, 4, v{V+1}
    v_cndmask_b32 v{V+1}, v{V+2}, v{V+1}, vcc
    v_mul_u32_u24 v{V+1}, 1152, v{V+1}
    v_lshl_add_u32 v{V+1}, v{V}, 4, v{V+1}
    s_cselect_b32 s{U+1}, 8, 36
    s_mul_i32 s{U+1}, s{U+1}, 1152
    s_add_u32 s{U+1}, s{U+1}, s{U}
    buffer_load_dwordx4 {vr(W8)}, v{V+1}, {srd(r.SO)}, s{U} offen offset:1024 ; @cond
    buffer_load_dwordx4 {vr(W8+4)}, v{V+1}, {srd(r.SO)}, s{U+1} offen offset:1024 ; @cond
    L_wb1:""")
    def x_dma(n, k=0):
        m0 = f"s_add_u32 m0, s{r.sXm}, {4096*(n%4)}\n"
        o = [f"s_lshl_b32 s{T+k}, s{r.sC}, 7\ns_add_u32 s{T+k}, s{T+k}, s{r.sXb}", ("" if k else m0) + f"s_add_u32 s{T+k+1}, s{T+k}, {16*1152-2048}"]
        for i in range(4):
            o.append((m0 if k else "") + f"buffer_load_dwordx4 v{r.XD+i%2}, {srd(r.SX)}, s{T+k+i//2} offen offset:{1024*i} lds ; @c{n}")
        return o
    def w3(tag, m0=""):
        o = [m0 + f"buffer_load_dwordx4 v{r.WD+p}, {srd(r.SQ)}, s{T} offen offset:{1024*p} lds ; @{tag}" for p in range(2)]
        o.append(m0 + f"s_mov_b32 exec_hi, 0\nbuffer_load_dwordx4 v{r.WD+2}, {srd(r.SQ)}, s{T} offen offset:2048 lds ; @{tag}\ns_mov_b64 exec, -1")
        return o
    def w_dma(n, each=False):
        m0 = f"s_add_u32 m0, s{r.sWm}, {WKV + 10240*n}\n"
        o = [("" if each else m0) + f"s_mul_i32 s{T}, s{r.sC}, {64*3456}", f"s_add_u32 s{T}, s{T}, s{r.sWb}\ns_add_u32 s{r.sC}, s{r.sC}, 1"]
        return o + w3(f"c{n}", m0 if each else "") + [f"s_cmp_eq_u32 s{r.sC}, 9\ns_cselect_b32 s{r.sC}, 0, s{r.sC}"]
    emit(a, x_dma(0))
    mk_srd(a, r.SQ, 6, SZ['wqkv'])
    a(f"s_movk_i32 s{U}, 3456\ns_movk_i32 s{U+1}, 1152")
    for p in range(3):
        if p: a(f"v_add_u32 v{V}, {64*p}, v{r.L}")
        src = V if p else r.L
        a(f"""v_mul_u32_u24 v{V+1}, 205, v{src}
        v_lshrrev_b32 v{V+1}, 10, v{V+1}
        v_mad_i32_i24 v{V}, v{V+1}, -5, v{r.L}
        v_lshlrev_b32 v{V}, 4, v{V}
        v_and_b32 v{r.U+p}, 1, v{V+1}
        v_mad_u32_u24 v{V}, v{r.U+p}, s{U+1}, v{V}
        v_bfe_u32 v{V+2}, v{V+1}, 1, 2
        v_and_or_b32 v{V+1}, v{V+1}, 56, v{V+2}
        v_mad_u32_u24 v{r.WD+p}, v{V+1}, s{U}, v{V}""")
    a(f"""s_lshr_b32 s{T}, s{w}, 1
    s_mul_i32 s{T}, s{T}, {32*3456}
    s_and_b32 s{T+1}, s{w}, 1
    s_mul_i32 s{T+1}, s{T+1}, {4*3456}
    s_add_u32 s{T}, s{T}, s{T+1}
    s_mul_i32 s{T+1}, s{r.sHP}, 72
    s_and_b32 s{T+1}, s{T+1}, -16
    s_add_u32 s{T}, s{T}, s{T+1}
    s_add_u32 s{r.sWb}, s{T}, 1152
    s_mul_i32 s{r.sWm}, s{w}, 2560""")
    emit(a, w_dma(0))
    a(st.text("c0i"))
    mk_srd(a, r.SW, 70, 64 * MB); mk_srd(a, r.SP, 8, SZ['wphi']); mk_srd(a, r.SDB, 68, 256)
    a(f"""s_load_dwordx8 s[4:11], s[0:1], {ARG['wg']}
    s_sub_u32 s{U+1}, s{r.sTB}, 11
    s_xor_b32 s{U}, s{w}, 1
    s_or_b32 s{U}, s{U}, s{r.sHP}
    s_cselect_b32 s{r.sLd}, -1, s{U+1}
    s_lshl_b32 s{U}, s{r.sLd}, 11
    s_add_u32 s{U}, s{U}, {WS['FLAG'][0]}
    s_cmp_lt_u32 s{r.sLd}, {NLEAD}
    s_cselect_b32 s{U}, s{U}, {OOB}
    v_lshlrev_b32 v{V}, 7, v{r.L}
    v_lshl_add_u32 v{V}, v{r.C}, 28, v{V}
    v_mov_b32 v{r.AS}, 0
    buffer_store_dword v{r.AS}, v{V}, {srd(r.SW)}, s{U} offen sc1 ; @clr
    v_lshlrev_b32 v{V}, 2, v0
    s_mul_i32 s{U}, s{r.sHP}, 1296
    buffer_load_dword v{WB+36}, v{V}, {srd(r.SP)}, s{U} offen ; @phi
    buffer_load_dword v{WB+37}, v{V}, {srd(r.SP)}, s{U} offen offset:1024 ; @phi
    v_and_b32 v{r.J}, 15, v0
    v_bfe_u32 v{V}, v0, 1, 3
    v_xor_b32 v{V}, v{V}, v{r.C}
    v_lshlrev_b32 v{V+1}, 7, v{r.J}
    v_add_u32 v{V+1}, s{r.sXm}, v{V+1}
    v_lshl_add_u32 v{r.XRD}, v{V}, 4, v{V+1}
    v_xor_b32 v{r.XRD+1}, 64, v{r.XRD}
    v_lshrrev_b32 v{V}, 2, v{r.L}
    v_mul_u32_u24 v{V}, 160, v{V}
    s_and_b32 s{U}, s{r.sHP}, 1
    s_lshl_b32 s{U}, s{U}, 3
    v_add_u32 v{V}, s{U}, v{V}
    v_add_u32 v{r.TQM}, {XR + 64}, v{V}
    v_and_b32 v{V+1}, 3, v{r.L}
    v_lshl_add_u32 v{r.TW}, v{V+1}, 3, v{V}
    v_and_b32 v{V+1}, 1, v{r.L}
    v_mul_u32_u24 v{V+1}, 48, v{V+1}
    v_add3_u32 v{r.TW+1}, v{V}, v{V+1}, 64
    v_add_u32 v{r.TW+2}, 51200, v{r.TW}
    v_add_u32 v{r.TW+3}, 51200, v{r.TW+1}
    v_mov_b32 v{r.AS+1}, 0
    v_mov_b32 v{r.AS+2}, 0
    v_mov_b32 v{r.AS+3}, 0
    v_lshlrev_b32 v{V}, 4, v0
    v_add_u32 v{V}, {ZERO}, v{V}
    ds_write_b128 v{V}, {vr(r.AS)}""")
    for i in range(4): a(f"v_mov_b32 v{r.ONES+i}, {0 if 'z' in exp else 0x3f803f80}")
    if hop == 1: hop_here(a, w)
    for n in range(1, LA): emit(a, x_dma(n) + w_dma(n))
    if hop == 2: hop_here(a, w)
    a(st.text("pre"))
    F = {}
    f = ["WAITVM phi"]
    for i in range(2):
        f += lines(f"""v_add_u32 v{V}, {256*i}, v0
        v_mul_u32_u24 v{V+1}, 7282, v{V}
        v_lshrrev_b32 v{V+1}, 16, v{V+1}
        v_add_lshl_u32 v{V+1}, v{V+1}, v{V}, 2
        v_add_u32 v{V+1}, {PHI}, v{V+1}
        v_xor_b32 v{V+2}, 0x80008000, v{WB+36+i}""")
        if i: f += lines(f"v_cmp_gt_u32 vcc, 324, v{V}\nv_mov_b32 v{V+3}, {DUMMY}\nv_mov_b32 v{r.ONE}, 1\nv_cndmask_b32 v{V+1}, v{V+3}, v{V+1}, vcc")
        f += lines(f"ds_write_b32 v{V+1}, v{WB+36+i}\nds_write_b32 v{V+1}, v{V+2} offset:1440")
    f += lines(f"v_cmp_eq_u32 vcc, 0, v{r.L}\nv_mov_b32 v{V}, {OOB}") + [f"s_cmp_lt_u32 s{r.sLd}, {NLEAD}\ns_cselect_b32 s{U}, 0, {OOB}", f"v_cndmask_b32 v{r.AT}, v{V}, 0, vcc",
          f"buffer_atomic_add v{r.ONE}, v{r.AT}, {srd(r.SDB)}, s{U} offen sc1"]
    F[1] = f
    wbt = f"s_cmp_ge_u32 s{r.sG}, 72\ns_cbranch_scc1 L_wb2\nv_mov_b32 v{V}, 0\nv_mov_b32 v{V+1}, 0\n"
    for i in range(36): wbt += f"v_dot2_f32_bf16 v{V+i%2}, v{WB+i}, v{r.ONES}, v{V+i%2}\n"
    wbt += f"""v_add_f32 v{V}, v{V}, v{V+1}
    v_add_f32_dpp v{V}, v{V}, v{V} quad_perm:[1,0,3,2] row_mask:0xf bank_mask:0xf
    v_add_f32_dpp v{V}, v{V}, v{V} quad_perm:[2,3,0,1] row_mask:0xf bank_mask:0xf
    v_add_f32_dpp v{V}, v{V}, v{V} row_half_mirror row_mask:0xf bank_mask:0xf
    v_mul_f32 v{V}, 0x3ae38e39, v{V}
    v_cvt_pk_bf16_f32 v{V}, v{V}, v{V}
    v_and_b32 v{V+1}, 6, v{r.L}
    v_lshlrev_b32 v{V+1}, 4, v{V+1}
    ds_bpermute_b32 v{V+2}, v{V+1}, v{V}
    ds_bpermute_b32 v{V+3}, v{V+1}, v{V} offset:128
    v_and_b32 v{V+1}, 1, v{r.L}
    v_cmp_eq_u32 vcc, 1, v{V+1}
    v_lshrrev_b32 v{V+1}, 3, v{r.L}
    v_mul_u32_u24 v{V+1}, {18432-128}, v{V+1}
    v_lshl_add_u32 v{V+1}, v{r.L}, 4, v{V+1}
    s_lshr_b32 s{U}, s{r.sG}, 2
    s_lshl_b32 s{U}, s{U}, 2
    s_add_u32 s{U}, s{U}, s{r.sG}
    s_lshl_b32 s{U}, s{U}, 7
    s_add_u32 s{U}, s{U}, {WS['W8'][0]}
    s_waitcnt lgkmcnt(0)
    """ + "".join(f"v_cndmask_b32 v{W8+k}, v{W8+k}, v{V+2+k//4}, vcc\n" for k in range(8)) + f"""
    buffer_store_dwordx4 {vr(W8)}, v{V+1}, {srd(r.SW)}, s{U} offen sc1 ; @cond
    buffer_store_dwordx4 {vr(W8+4)}, v{V+1}, {srd(r.SW)}, s{U} offen offset:512 sc1 ; @cond
    L_wb2:"""
    F[2] = [wbt]
    f = []
    for hh, base in enumerate((0, 16, 32)):
        f += lines(f"""v_lshrrev_b32 v{V}, 2, v{r.L}
        v_add_u32 v{V}, {base}, v{V}
        v_and_b32 v{V+2}, 1, v{r.L}
        v_mul_u32_u24 v{V+2}, 1440, v{V+2}
        v_mad_u32_u24 v{V+1}, v{V}, 40, v{V+2}
        v_bfe_u32 v{V+2}, v{r.L}, 1, 1
        v_mul_u32_u24 v{V+2}, 18, v{V+2}
        v_sub_u32 v{V}, v{V}, v{V+2}
        v_cmp_gt_u32 vcc, 18, v{V}
        v_add_u32 v{V+1}, {PHI}, v{V+1}
        v_mov_b32 v{V+2}, {ZERO}
        v_cndmask_b32 v{V+1}, v{V+2}, v{V+1}, vcc""")
        f += [f"ds_read_b64_tr_b16 {vr(r.aPH + 6*T2 + 2*hh, 2, 'a')}, v{V+1} offset:{8*T2}" for T2 in range(5)]
    F[2] = f[:17] + F[2]; F[3] = f[17:]
    M = r.sM
    F[4] = lines(f"""v_and_b32 v{V}, 3, v{r.J}
    v_cmp_eq_u32 s[{M}:{M+1}], 1, v{V}
    v_cmp_eq_u32 s[{M+2}:{M+3}], 2, v{V}
    v_cmp_eq_u32 s[{M+4}:{M+5}], 3, v{V}
    v_cmp_eq_u32 s[{M+6}:{M+7}], 1, v{r.C}
    v_lshrrev_b32 v{V}, 2, v{r.J}
    v_lshl_add_u32 v{V}, v{V}, 4, v{r.J}
    v_lshlrev_b32 v{r.BP}, 2, v{V}
    s_lshl_b32 s{U}, s{r.sTB}, 2
    s_add_u32 s{U}, s{U}, s{w}
    s_lshl_b32 s{U+1}, s{U}, 7
    s_add_u32 s{U+1}, s{U+1}, {WS['MUX'][0]}""") + [f"s_cmp_eq_u32 s{r.sHP}, 0\ns_cselect_b32 s{r.sMX}, s{U+1}, {OOB}"] + lines(f"""v_lshlrev_b32 v{V}, 2, v{r.J}
    v_lshl_add_u32 v{r.MX}, v{r.C}, 28, v{V}
    s_mul_i32 s{U}, s{U}, {2*18*1024}
    s_add_u32 s{U}, s{U}, {WS['O'][0]}
    s_lshl_b32 s{U+1}, s{r.sHP}, 10
    s_add_u32 s{r.sO0}, s{U+1}, s{U}
    s_lshr_b32 s{U+1}, s{r.sHP}, 3
    s_lshl_b32 s{U+1}, s{U+1}, 10
    s_add_u32 s{U}, s{U}, s{U+1}
    s_and_b32 s{U+1}, s{r.sHP}, 1
    s_lshl_b32 s{U+1}, s{U+1}, 9
    s_add_u32 s{U}, s{U}, s{U+1}
    s_bfe_u32 s{U+1}, s{r.sHP}, 0x20001
    s_lshl_b32 s{U+1}, s{U+1}, 7
    s_add_u32 s{U}, s{U}, s{U+1}
    s_add_u32 s{r.sO1}, s{U}, 16384
    v_lshlrev_b32 v{r.OS0}, 4, v{r.L}
    v_lshlrev_b32 v{V+1}, 3, v{r.J}
    v_lshl_add_u32 v{V+1}, v{r.C}, 1, v{V+1}
    v_and_b32 v{V}, 1, v{r.C}
    v_lshl_add_u32 v{r.OS1}, v{V}, 30, v{V+1}
    s_lshl_b32 s{U}, s{w}, 5
    v_add_u32 v{V}, s{U}, v{r.J}
    v_mul_u32_u24 v{r.AV}, 96, v{V}
    v_add_u32 v{V+1}, 3, v{r.C}
    v_and_b32 v{V+1}, 3, v{V+1}
    v_lshl_add_u32 v{r.AM}, v{V+1}, 3, v{r.AV}
    v_lshl_add_u32 v{r.AV}, v{r.C}, 3, v{r.AV}
    v_mul_u32_u24 v{r.AF}, 160, v{V}
    v_cmp_eq_u32 vcc, 2, v{r.C}
    v_mad_u32_u24 v{r.AF}, v{r.C}, 40, v{r.AF}
    v_mov_b32 v{V+1}, 0x3f80
    v_cndmask_b32 v{r.C1}, 0, v{V+1}, vcc""")
    F[5] = lines(f"""v_lshrrev_b32 v{V}, 2, v{r.L}
    v_and_b32 v{V+1}, 3, v{r.L}
    v_mul_u32_u24 v{r.AV3}, 96, v{V}
    v_lshl_add_u32 v{r.AV3}, v{V+1}, 3, v{r.AV3}
    s_min_u32 s{U}, s{w}, 2
    s_lshl_b32 s{U}, s{U}, 5
    v_add_u32 v{r.AV3}, s{U}, v{r.AV3}
    s_and_b32 s{U+1}, s{w}, 1
    s_lshl_b32 s{U}, s{U+1}, 3
    s_and_b32 s{U+2}, s{r.sHP}, 1
    s_sub_u32 s{U}, s{U}, s{U+2}
    s_lshl_b32 s{U}, s{U}, 3
    v_add_u32 v{r.AF3}, s{U}, v{r.TW}
    v_add_u32 v{r.TQ}, {XR}, v{r.TW}
    s_mul_i32 s{U+2}, s{U+1}, 1280
    v_mul_u32_u24 v{V}, 160, v{r.C}
    v_add_u32 v{V}, s{U+2}, v{V}
    s_lshl_b32 s{U+2}, s{U+1}, 1
    v_add_u32 v{V+1}, s{U+2}, v{r.J}
    v_subrev_u32 v{V+2}, s{U+2}, v{r.J}
    s_lshl_b32 s{U+3}, s{U+1}, 4
    s_xor_b32 s{U+3}, s{U+3}, 16
    v_cmp_gt_u32 vcc, 2, v{V+2}
    v_add_u32 v{V+2}, s{U+3}, v{V+2}
    v_mov_b32 v{V+3}, {OOB >> 3}
    v_cndmask_b32 v{V+2}, v{V+3}, v{V+2}, vcc
    v_subrev_u32 v{V+3}, 4, v{r.J}
    v_cmp_gt_u32 vcc, 2, v{V+3}
    v_add_u32 v{V+3}, 18, v{V+3}
    s_lshl_b32 s{U+2}, s{r.sHP}, 16
    v_cndmask_b32 v{V+2}, v{V+2}, v{V+3}, vcc""") + [f"s_cmp_lt_u32 s{w}, 2\ns_cselect_b64 vcc, -1, 0"] + lines(f"""v_cndmask_b32 v{V+1}, v{V+2}, v{V+1}, vcc
    v_lshl_add_u32 v{r.PS1}, v{V+1}, 3, v{V}
    v_lshrrev_b32 v{V+1}, 1, v{r.C}
    v_cmp_le_u32 vcc, s{U+1}, v{V+1}
    v_mov_b32 v{V+3}, {OOB}
    s_add_u32 s{r.sKVP}, s{U+2}, {WS['KVP'][0]}
    v_cndmask_b32 v{r.PS0}, v{V+3}, v{r.PS1}, vcc
    v_cmp_ge_u32 vcc, s{U+1}, v{V+1}
    s_lshl_b32 s{U+2}, s{r.sTB}, 12
    s_add_u32 s{r.sPS}, s{U+2}, s{r.sKVP}
    v_cndmask_b32 v{r.PS2}, v{V+3}, v{r.PS1}, vcc
    s_lshl_b32 s{U}, s{r.sHP}, 7
    s_add_u32 s{U}, s{U}, {WS['FLAG'][0] + F_E1*128}""") + [f"s_cmp_eq_u32 s{w}, 0\ns_cselect_b32 s{r.sF1}, s{U}, {OOB}",
          f"s_cmp_ge_u32 s{r.sG}, 72\ns_cbranch_scc1 L_wb3\nbuffer_atomic_add v{r.ONE}, v{r.AT}, {srd(r.SDB)}, 0 offen offset:128 sc1 ; @cond\nL_wb3:"]
    f = lines(f"v_and_b32 v{V}, 1, v{r.J}\nv_lshlrev_b32 v{V}, 4, v{V}\nv_mov_b32 v{V+1}, 0x3f80\nv_lshlrev_b32 v{V}, v{V}, v{V+1}\nv_bfe_u32 v{V+1}, v{r.J}, 1, 2")
    for e in range(4):
        f += lines(f"v_cmp_eq_u32 vcc, {e}, v{V+1}\nv_cndmask_b32 v{V+2}, 0, v{V}, vcc\nv_accvgpr_write_b32 a{r.aSEL+e}, v{V+2}")
    f += lines(f"""v_lshlrev_b32 v{r.PL}, 12, v{r.C}
    v_lshl_add_u32 v{r.PL}, v{r.J}, 4, v{r.PL}
    s_lshl_b32 s{U}, s{w}, 8
    s_add_u32 s{r.sKVP}, s{r.sKVP}, s{U}
    v_and_b32 v{V}, 1, v{r.C}
    v_lshlrev_b32 v{V}, 3, v{V}
    v_lshl_add_u32 v{V}, v{r.J}, 4, v{V}
    s_add_u32 s{U}, s{U}, {KVI}
    v_add_u32 v{r.KW}, s{U}, v{V}
    v_mul_u32_u24 v{V+1}, 800, v{r.C}
    v_add_u32 v{V+1}, {KVI}, v{V+1}
    v_and_b32 v{V+2}, 7, v{r.J}
    v_lshl_add_u32 v{V+2}, v{V+2}, 3, v{V+1}
    v_and_b32 v{V+3}, 3, v{r.J}
    v_lshl_add_u32 v{V+3}, v{V+3}, 3, v{V+1}
    v_lshrrev_b32 v{V+1}, 3, v{r.J}
    v_lshrrev_b32 v{V}, 1, v{r.C}
    v_cmp_eq_u32 vcc, v{V+1}, v{V}
    v_mov_b32 v{V+1}, {ZERO}
    v_mov_b32 v{r.FQ+9}, 0
    v_cndmask_b32 v{r.K4a}, v{V+1}, v{V+2}, vcc
    v_cndmask_b32 v{r.K4b}, v{V+1}, v{V+3}, vcc
    v_mov_b32 v{r.FQ+19}, 0""")
    F[6] = f
    F[7] = lines(f"""s_lshr_b32 s{U}, s2, 3
    s_lshl_b32 s{U}, s{U}, 2
    s_add_u32 s{U}, s{U}, s{w}
    s_and_b32 s{U+1}, s2, 7
    s_mul_i32 s{U+3}, s{U+1}, 1152
    s_mul_i32 s{U+2}, s{U}, 18
    v_min_u32 v{V}, 17, v{r.L}
    v_add_u32 v{V}, s{U+2}, v{V}
    v_lshrrev_b32 v{V+1}, 2, v{V}
    v_mul_u32_u24 v{V+1}, {9216-1024}, v{V+1}
    v_lshl_add_u32 v{V+1}, v{V}, 8, v{V+1}
    v_add_u32 v{r.TG}, s{U+3}, v{V+1}
    v_add_u32 v{r.TG+1}, 128, v{r.TG}
    s_mul_i32 s{U+2}, s{U}, 36
    v_min_u32 v{V}, 35, v{r.L}
    v_add_u32 v{V}, s{U+2}, v{V}
    v_lshrrev_b32 v{V+1}, 3, v{V}
    v_add_u32 v{V}, v{V}, v{V+1}
    s_mul_i32 s{U+3}, s{U+1}, {576*1152}
    v_lshlrev_b32 v{r.WB+36}, 7, v{V}
    v_lshl_add_u32 v{r.TG+2}, v{V}, 7, s{U+3}""")
    RA, RB, RD = r.WB + 26, r.WB + 27, r.WB + 28
    F[8] = lines(f"""s_lshr_b32 s{U}, s2, 3
    s_lshl_b32 s{U}, s{U}, 2
    s_add_u32 s{U}, s{U}, s{w}
    s_min_u32 s{U}, s{U}, 107
    s_mul_i32 s{U+1}, s{U}, 57
    s_lshr_b32 s{U+1}, s{U+1}, 11
    s_mul_i32 s{U+2}, s{U+1}, 36
    s_sub_u32 s{U}, s{U}, s{U+2}
    s_and_b32 s{U+2}, s2, 7
    s_mul_i32 s{U+3}, s{U+2}, {4*55296}
    s_mul_i32 s{r.sRS}, s{U+1}, 18432
    s_add_u32 s{r.sRS}, s{r.sRS}, s{U+3}
    s_lshl_b32 s{U+3}, s{U}, 9
    s_add_u32 s{r.sRS}, s{r.sRS}, s{U+3}
    s_add_u32 s{r.sRS}, s{r.sRS}, {WS['RP'][0]}
    v_mul_u32_u24 v{RB}, 55296, v{r.C}
    v_lshl_add_u32 v{RB}, v{r.J}, 4, v{RB}
    s_lshl_b32 s{U}, s{U}, 4
    v_lshrrev_b32 v{RA}, 1, v{r.J}
    v_add_u32 v{RA}, s{U}, v{RA}""") + [f"s_cmp_eq_u32 s{U+1}, 0\ns_cselect_b64 s[{r.sRP}:{r.sRP+1}], s[4:5], s[6:7]",
          f"s_cmp_eq_u32 s{U+1}, 2\ns_cselect_b64 s[{r.sRP}:{r.sRP+1}], s[8:9], s[{r.sRP}:{r.sRP+1}]\ns_cselect_b32 s{U}, 1, 8\ns_cselect_b32 s{U+3}, 576, 1"] + lines(f"""s_mul_i32 s{U+2}, s{U+2}, s{U+3}
    v_mul_u32_u24 v{RA}, s{U}, v{RA}
    v_add_u32 v{RA}, s{U+2}, v{RA}
    v_mul_u32_u24 v{RA}, 1152, v{RA}
    v_lshl_add_u32 v{RA}, v{r.C}, 5, v{RA}
    v_and_b32 v{RD}, 1, v{r.J}
    v_lshl_add_u32 v{RA}, v{RD}, 4, v{RA}
    s_mul_i32 s{U}, s{U}, {8*1152}
    global_load_dwordx4 {vr(RD)}, v{RA}, s[{r.sRP}:{r.sRP+1}] offset:1024 ; @rp
    v_add_u32 v{RA}, s{U}, v{RA}
    global_load_dwordx4 {vr(RD+4)}, v{RA}, s[{r.sRP}:{r.sRP+1}] offset:1024 ; @rp""")
    rpst = ["WAITVM rp"] + [f"buffer_store_dwordx4 {vr(RD+4*k)}, v{RB}, {srd(r.SW)}, s{r.sRS} offen offset:{256*k} sc1" for k in range(2)]
    TB = (0, 32, 80, 120)
    def wf(p, T_): return r.WF + 20 * (p % 2) + 4 * T_
    def ak(T_, t): return r.AK + 12 * T_ + 4 * t
    def reads_kv(p):
        n, ks = p // 2, p % 2
        if 'r' in exp: return []
        o = [f"ds_read_b128 {xa(r, p, t)}, v{r.XRD+ks} offset:{4096*(n%4) + 2048*t}" for t in range(2)]
        for T_ in (0, 1, 4, 2, 3):
            for h in range(2):
                off = WKV + 5120 * p + 2560 * h; pg = int(off >= 51200); off -= 51200 * pg
                ad = r.TW + 2 * pg + (T_ == 4)
                o.append(f"ds_read_b64_tr_b16 {vr(wf(p,T_)+2*h,2)}, v{ad} offset:{off + (TB[T_] if T_ < 4 else 0)}")
        return o
    def mf_kv(p):
        o = []
        if 'm' in exp and p < 17: return ["s_nop 0"] * 19
        for g in (1, 0):
            for t in range(2):
                if 0 < p < 17 and "sg"[g] in exp: continue
                acc = vr(r.AS + 8 * g + 4 * t); x = xa(r, p, t)
                o.append(f"{MF} {acc}, {x if g else vr(r.ONES)}, {x}, {'0' if p == 0 else acc}")
        for T_ in (0, 1, 4, 2, 3):
            for t in (2, 0, 1):
                if 0 < p < 17 and t == 2 and 'c' in exp: continue
                acc = vr(ak(T_, t)); b = xa(r, p, t) if t < 2 else vr(r.ONES)
                o.append(f"{MF} {acc}, {vr(wf(p,T_))}, {b}, {'0' if p == 0 else acc}")
        return o
    def q_dma(i):
        o = []
        if i < 4: o.append(f"s_lshr_b32 s{T}, s{w}, 1\ns_add_u32 s{T}, s{T}, s{r.sRot}\ns_add_u32 s{T}, s{T}, {2*i}")
        else: o.append(f"s_add_u32 s{T}, s{r.sRot}, 8")
        o.append(f"s_sub_u32 s{T+1}, s{T}, 9\ns_cselect_b32 s{T}, s{T}, s{T+1}")
        o.append(f"s_add_u32 m0, s{r.sXm}, {QOFF[i]}\ns_mul_i32 s{T}, s{T}, {64*3456}\ns_add_u32 s{T}, s{T}, s{r.sWb}")
        return o + w3(f"wq{i}")
    qsw = [f"s_movk_i32 s{T}, {4*3456-1152}"] + [f"v_mad_u32_u24 v{r.WD+p}, v{r.U+p}, s{T}, v{r.WD+p}" for p in range(3)]
    qsw += lines(f"s_and_b32 s{T}, s{w}, 1\ns_mul_i32 s{T}, s{T}, {32*3456}\ns_mul_i32 s{T+1}, s{r.sHP}, 72\ns_and_b32 s{T+1}, s{T+1}, -16\ns_add_u32 s{r.sWb}, s{T}, s{T+1}")
    PC = Pacer()
    PC.add(touches(r, 'c8'), 60)
    PC.add(qsw + [x for i in range(5) for x in q_dma(i)], lambda x: qw // 2 if "exec" in x else qw)
    F[6], F[7], F[8] = F[7], F[8], F[6]
    assert LA == 2 or not touches(r, 'c8')
    for n in range(9):
        if n + LA < 9:
            xd, wd_ = x_dma(n + LA, 2), w_dma(n + LA, True)
            prep = [wd_[0], f"s_add_u32 s{T}, s{T}, s{r.sWb}"]
            d1 = (prep if n == 0 else []) + [wd_[2], xd[0], xd[1], xd[2], lines(xd[3])[1], wd_[3]]
            d2 = [xd[4], wd_[4], f"s_add_u32 s{r.sC}, s{r.sC}, 1", wd_[5]] + prep + [xd[5]]
            g1, g2 = gaps
            if 'd' in exp: d1, d2 = [f"buffer_load_dword v{r.DUM}, off, {srd(r.SX)}, 0 ; @c{n+LA}"], []
            d1, d2 = flat(d1), flat(d2)
            pk1 = lambda m, *st_: pack(m, st_[0], (d1, g1), *st_[1:])
            pk2 = lambda m, *st_: pack(m, st_[0], (d2, g2), *st_[1:])
        else: pk1 = pk2 = PC.mfma
        f = F.get(n, [])
        f1, f2 = f[:len(f)//2], f[len(f)//2:]
        a("s_waitcnt lgkmcnt(0)")
        if n == 8:
            emit(a, pk1(mf_kv(15), [], f1))
            a("WAITVM c8\ns_barrier"); a(st.text("c8"))
            emit(a, reads_kv(16)); PC.t += 200
        else:
            a(f"WAITVM c{n}\ns_barrier")
            if n == 0: a(st.text("c0"))
            if n == 4: a(st.text("c4"))
            emit(a, pk1(mf_kv(2*n-1) if n else [], reads_kv(2*n), f1))
            if n and pack.left: print("   left", n, pack.left)
        a("s_waitcnt lgkmcnt(0)")
        emit(a, pk2(mf_kv(2*n), reads_kv(2*n+1), f2))
        if pack.left: print("   left", n, pack.left)
    a("s_waitcnt lgkmcnt(0)")
    assert sum("@wq4" in x for g, _ in PC.q for x in g) == 3
    clr2 = lines(f"""s_mul_i32 s{U}, s2, 640
    s_add_u32 s{U}, s{U}, {WS['FLAG'][0] + F_E3*128}
    v_min_u32 v{r.XD}, 5, v0
    v_mul_u32_u24 v{r.XD+1}, 52, v{r.XD}
    v_lshrrev_b32 v{r.XD+1}, 8, v{r.XD+1}
    v_lshlrev_b32 v{r.XD}, 7, v{r.XD}
    v_lshl_add_u32 v{r.XD}, v{r.XD+1}, 28, v{r.XD}
    buffer_store_dword v{r.FQ+9}, v{r.XD}, {srd(r.SW)}, s{U} offen sc1""")
    s1 = []
    for t in range(2):
        g = r.AS + 8 + 4 * t
        s1 += [f"v_cndmask_b32 v{g}, v{g}, v{g+e}, s[{M+2*e-2}:{M+2*e-1}]" for e in range(1, 4)] + [f"ds_bpermute_b32 v{g}, v{r.BP}, v{g}"]
    s1 += [f"v_mul_f32 v{r.AS+4*t}, 0x3ae38e39, v{r.AS+4*t}" for t in range(2)]
    s1 += [f"v_mov_b32 v{V+t}, 0x3727c5ac" for t in range(2)]
    s1 += [f"v_fma_f32 v{V+t}, -v{r.AS+4*t}, v{r.AS+4*t}, v{V+t}" for t in range(2)]
    s1 += ["s_waitcnt lgkmcnt(0)"]
    for op in (lambda t: f"v_fmac_f32 v{V+t}, 0x3ae38e39, v{r.AS+8+4*t}", lambda t: f"v_max_f32 v{V+t}, 0x3727c5ac, v{V+t}",
               lambda t: f"v_rsq_f32 v{r.RS+t}, v{V+t}", lambda t: f"v_mul_f32 v{r.NM+t}, -v{r.AS+4*t}, v{r.RS+t}"):
        s1 += [op(t) for t in range(2)]
    m = mf_kv(17)
    emit(a, PC.mfma(m[:5], clr2[:-1]) + pack(m[5:], s1)); PC.t += 16 * 14
    late = [f"buffer_store_dword v{r.AS+4*t}, v{r.MX}, {srd(r.SW)}, s{r.sMX} offen offset:{64*t} sc1" for t in range(2)]
    late += touches(r, 'kvg')
    a(st.text("kvg"))
    def pk(t, T_): return r.PK + 10 * t + 2 * T_
    def normalize(tiles, accf, t, packed=True):
        o = []
        for T_, dst in tiles:
            g, cs = accf(T_, t), accf(T_, 2)
            if not packed:
                for e in range(4): o += [f"v_mul_f32 v{g+e}, v{g+e}, v{r.RS+t}", f"v_fmac_f32 v{g+e}, v{cs+e}, v{r.NM+t}"]
                for e in (0, 2): o.append(f"v_cvt_pk_bf16_f32 v{pk(t,dst)+e//2}, v{g+e}, v{g+e+1}")
                continue
            for e in (0, 2): o.append(f"v_pk_mul_f32 {vr(g+e,2)}, {vr(g+e,2)}, {vr(r.RS,2)} op_sel:[0,{t}] op_sel_hi:[1,{t}]")
            for e in (0, 2): o.append(f"v_pk_fma_f32 {vr(g+e,2)}, {vr(cs+e,2)}, {vr(r.NM,2)}, {vr(g+e,2)} op_sel:[0,{t},0] op_sel_hi:[1,{t},1]")
            for e in (0, 2): o.append(f"v_cvt_pk_bf16_f32 v{pk(t,dst)+e//2}, v{g+e}, v{g+e+1}")
        return o
    P = r.WF
    def stage2():
        o = [f"{MF16} {vr(P+20*t+4*T2)}, {vr(r.aPH+6*T2+4,2,'a')}, {vr(pk(t,2),2)}, 0" for t in range(2) for T2 in range(5)]
        return o + [f"{MF} {vr(P+20*t+4*T2)}, {vr(r.aPH+6*T2,4,'a')}, {vr(pk(t,0))}, {vr(P+20*t+4*T2)}" for t in range(2) for T2 in range(5)]
    def softmax(t, wr=None):
        p = P + 20 * t; m = (V, r.U)[t]; f = r.FQ + 10 * t
        o = lines(f"v_max3_f32 v{m}, v{p}, v{p+1}, v{p+2}\nv_max3_f32 v{m+1}, v{p+3}, v{p+4}, v{p+5}")
        for i in range(3): o += lines(f"v_max3_f32 v{m}, v{m}, v{p+6+4*i}, v{p+7+4*i}\nv_max3_f32 v{m+1}, v{m+1}, v{p+8+4*i}, v{p+9+4*i}")
        o += lines(f"v_max_f32 v{m}, v{m}, v{m+1}\nv_mov_b32 v{m+1}, 0x3fb8aa3b\nv_mul_f32 v{m}, 0xbfb8aa3b, v{m}")
        for i in range(9): o.append(f"v_pk_fma_f32 {vr(p+2*i,2)}, {vr(p+2*i,2)}, {vr(m,2)}, {vr(m,2)} op_sel:[0,1,0] op_sel_hi:[1,1,0]")
        o += [f"v_exp_f32 v{p+i}, v{p+i}" for i in range(18)]
        o += lines(f"v_pk_add_f32 {vr(m,2)}, {vr(p,2)}, {vr(p+2,2)}\nv_pk_add_f32 {vr(m+2,2)}, {vr(p+4,2)}, {vr(p+6,2)}")
        for i in range(4, 9): o.append(f"v_pk_add_f32 {vr(m+2*(i%2),2)}, {vr(m+2*(i%2),2)}, {vr(p+2*i,2)}")
        o += lines(f"v_pk_add_f32 {vr(m,2)}, {vr(m,2)}, {vr(m+2,2)}\nv_add_f32 v{m}, v{m}, v{m+1}\nv_rcp_f32 v{m}, v{m}")
        for i in range(9):
            o += [f"v_pk_mul_f32 {vr(p+2*i,2)}, {vr(p+2*i,2)}, {vr(m,2)} op_sel_hi:[1,0]", f"v_cvt_pk_bf16_f32 v{f+i}, v{p+2*i}, v{p+2*i+1}"]
            if wr and (i % 2 or i == 8): o.append(wr[i // 2])
        return o
    KT = [(0, 0), (1, 1), (4, 2)]; VT = [(2, 3), (3, 4)]
    def vimg(t):
        return lines(f"""ds_write_b64 v{r.AV}, {vr(pk(t,3),2)} offset:{VI + 16*96*t}
        ds_write_b64 v{r.AV}, {vr(pk(t,4),2)} offset:{VI + 16*96*t + 32}
        v_cndmask_b32 v{r.AS+8+2*t}, v{r.C1}, v{pk(t,2)}, s[{M+6}:{M+7}]
        v_cndmask_b32 v{r.AS+9+2*t}, 0, v{pk(t,2)+1}, s[{M+6}:{M+7}]
        ds_write_b64 v{r.AM}, {vr(r.AS+8+2*t,2)} offset:{VI + 16*96*t + 64}""")
    fw = lambda t: [f"ds_write_b64 v{r.AF}, {vr(r.FQ+10*t+2*i,2)} offset:{FK + 16*160*t + 8*i}" for i in range(5)]
    small = late + clr2[-1:] + [poll_issue(r.FL, None, r.SDB, ("0", 0), "fclr")]
    emit(a, PC.valu(normalize(KT, ak, 0) + normalize(KT, ak, 1)))
    emit(a, PC.mfma(stage2(), normalize(VT, ak, 0, False) + normalize(VT, ak, 1, False)))
    a(st.text("ks2"))
    emit(a, PC.valu(spread(softmax(0), vimg(0) + vimg(1), small)))
    a(st.text("ksm0"))
    sm = softmax(1, fw(1))
    emit(a, PC.valu(spread(sm[:48], fw(0), ["", ""] + rpst) + sm[48:]) + PC.flush("@wq1"))
    c1, c2 = poll_check(r.FL, None, r.SDB, r.sU + 2, ("0", 0), NLEAD, "fclr", slow)
    a(st.text("smk")); a("WAITVM wq1\ns_waitcnt lgkmcnt(0)\ns_barrier")
    F3 = r.WF; A3 = r.AK
    for ks in range(4):
        for h in range(2):
            a(f"ds_read_b64_tr_b16 {vr(F3+16*ks+2*h,2)}, v{r.AV3} offset:{VI + (32*ks+16*h)*96} ; @s3{ks}")
        for i in range(3):
            for h in range(2):
                a(f"ds_read_b64_tr_b16 {vr(F3+16*ks+4+4*i+2*h,2)}, v{r.AF3} offset:{FK + (32*ks+16*h)*160 + 32*i} ; @s3{ks}")
        if ks:
            a(f"WAITLG s3{ks-1}")
            for i in range(3):
                acc = vr(A3 + 4 * i); k = ks - 1
                a(f"{MF} {acc}, {vr(F3+16*k+4+4*i)}, {vr(F3+16*k)}, {'0' if k == 0 else acc}")
    a("WAITLG s33")
    for i in range(3): a(f"{MF} {vr(A3+4*i)}, {vr(F3+52+4*i)}, {vr(F3+48)}, {vr(A3+4*i)}")
    return dict(normalize=normalize, stage2=stage2, softmax=softmax, pk=pk, PC=PC, clrchk=[c1, c2])

def phase_a2(a, r, st, slow, h, wo_ops=(), sigat=3, pollat=6, chkat=8, wow=70, ppw=50):
    T, V = r.sT, r.T; w = r.sWv
    def qf(n, ks, T_): return r.WF + 24 * (n % 2) + 12 * ks + 4 * T_
    def aq(T_, t): return r.AK + 12 * (T_ + 1) + 4 * t
    def reads_q(n):
        o = []
        for ks in range(2):
            p = 2 * n + ks
            base = 16384 * (p % 4) + QOFF[p // 4]
            for T_ in range(3):
                for hh in range(2):
                    o.append(f"ds_read_b64_tr_b16 {vr(qf(n,ks,T_)+2*hh,2)}, v{r.TQ if T_ < 2 else r.TQM} offset:{base + 80*hh + (32*T_ if T_ < 2 else 0)} ; @q{n}")
        return o
    def mf_q(n):
        o = []
        for t in (2, 0, 1):
            for T_ in range(3):
                for ks in range(2):
                    acc = vr(aq(T_, t)); b = xa(r, 2*n+ks, t) if t < 2 else vr(r.ONES)
                    o.append(f"{MF} {acc}, {vr(qf(n,ks,T_))}, {b}, {'0' if n+ks == 0 else acc}")
        return o
    rq = reads_q(0)
    emit(a, rq[:8])
    for i in range(3):
        g = r.AK + 4 * i
        a(f"v_cvt_pk_bf16_f32 v{g}, v{g}, v{g+1}\nv_cvt_pk_bf16_f32 v{g+1}, v{g+2}, v{g+3}")
        a(f"buffer_store_dwordx2 {vr(g,2)}, v{r.PS0+i}, {srd(r.SW)}, s{r.sPS} offen offset:{640*i} sc1 ; @kvp")
    emit(a, touches(r, 'kvp'))
    a(st.text("kvp"))
    emit(a, rq[8:])
    a("s_barrier")
    wo_ops = list(wo_ops); has_b = bool(wo_ops)
    assert sigat <= 3
    f1 = (f"s{r.sF1}", 0)
    def pp_loads():
        o = [f"s_mov_b32 s{T}, s{r.sKVP}"]
        for m in range(4):
            for i in range(4):
                pre = f"s_cmp_eq_u32 s{w}, 0\ns_cselect_b32 s{T+1}, s{T}, {OOB}\n" if i == 3 else ""
                o.append(pre + f"buffer_load_dwordx4 {vr(r.aP+16*i+4*m,4,'a')}, v{r.PL}, {srd(r.SW)}, s{T + (i == 3)} offen offset:{1024*i} sc1 ; @pp{m}")
            if m < 3: o.append(f"s_add_u32 s{T}, s{T}, 16384")
        return o
    def check():
        a(f"s_cmp_eq_u32 s{w}, 0\ns_cselect_b32 s{T+1}, 16, 0")
        emit(a, poll_check(r.U, r.AT, r.SW, T + 2, f1, f"s{T+1}", "f1", slow))
        a("WAITVM wq4\ns_barrier"); a(st.text("e1"))
    PC = h["PC"]; PC.t += 600
    k = max(n for n, x in enumerate(wo_ops) if "buffer_" in x) + 1 if has_b else 0
    PC.add(wo_ops[:k], wow); post = flat(wo_ops[k:])
    def go():
        check(); rest, PC.q = PC.q, []; PC.due = PC.t
        if pack.verbose: print("   groups left at check:", len(rest))
        PC.add(pp_loads(), ppw); PC.q += rest; PC.add(touches(r, 'pp'), 0)
    for n in range(9):
        a(f"WAITLG q{n}"); a(st.text(f"q{n}"))
        rd = reads_q(n + 1) if n < 8 else []
        if n == sigat:
            emit(a, PC.flush("@wq3") + h["clrchk"])
            a("WAITVM kvp WAITVM wq3\ns_barrier")
            a(f"buffer_atomic_add v{r.ONE}, v{r.AT}, {srd(r.SW)}, s{r.sF1} offen sc1")
        if n == pollat: a(poll_issue(r.U, r.AT, r.SW, f1, "f1"))
        if n == chkat: go()
        elif n == 7 < chkat: a("WAITVM wq4\ns_barrier")
        emit(a, PC.mfma(mf_q(n), rd))
        if pack.left: print("   qleft", n, pack.left)
    QT = [(0, 0), (1, 1), (2, 2)]
    a(st.text("qg"))
    if chkat == 9: go()
    emit(a, PC.valu(h["normalize"](QT, aq, 0) + h["normalize"](QT, aq, 1)))
    if PC.q and pack.verbose: print("   pacer groups left at stage2:", len(PC.q))
    emit(a, PC.mfma(h["stage2"](), []))
    a(st.text("qs2"))
    emit(a, PC.valu(h["softmax"](0)) + PC.flush() + touches(r, 'sm1') + h["softmax"](1) + touches(r, 'smq'))
    a(st.text("smq"))
    A4 = r.AK
    for m in range(4):
        a(f"WAITVM pp{m}")
        mf = [f"{MF} {vr(A4+4*i)}, {vr(r.aSEL,4,'a')}, {vr(r.aP+16*i+4*m,4,'a')}, {'0' if m == 0 else vr(A4+4*i)}" for i in range(4)]
        k = 8 if m < 3 else len(post)
        emit(a, pack(mf, post[:k])); post = post[k:]
    for i in range(4):
        g = A4 + 4 * i
        a(f"v_cvt_pk_bf16_f32 v{g}, v{g}, v{g+1}\nv_cvt_pk_bf16_f32 v{g+1}, v{g+2}, v{g+3}\nds_write_b64 v{r.KW}, {vr(g,2)} offset:{1024*i}")
    a(("WAITVM wo\n" if has_b else "") + "s_waitcnt lgkmcnt(0)\ns_barrier")
    a(st.text("kvi"))
    K4 = r.WF; O4 = r.WF + 32
    for T_ in (2, 0, 1):
        for gg in range(5):
            a(f"ds_read_b64 {vr(K4+10*T_+2*gg,2)}, v{r.K4a if T_ < 2 else r.K4b} offset:{160*gg + 64*T_} ; @k4{T_}")
    accf = lambda t, T_: vr(O4 + 12 * t + 4 * T_)
    for T_ in (2, 0, 1):
        a(f"WAITLG k4{T_}")
        for t in range(2): a(f"{MF16} {accf(t,T_)}, {vr(K4+10*T_+8,2)}, {vr(r.FQ+10*t+8,2)}, 0")
    for T_ in (2, 0, 1):
        for t in range(2):
            acc = accf(t, T_); f = r.FQ + 10 * t; k = K4 + 10 * T_
            a(f"{MF} {acc}, {vr(k)}, {vr(f)}, {acc}\n{MF} {acc}, {vr(k+4)}, {vr(f+4)}, {acc}")
    for t in range(2): a(f"v_add_f32 v{O4+12*t+10}, 0x358637bd, v{O4+12*t+10}")
    for t in range(2): a(f"v_rcp_f32 v{O4+12*t+10}, v{O4+12*t+10}")
    pm = lambda o, i: f"v_pk_mul_f32 {vr(o+2*i,2)}, {vr(o+2*i,2)}, {vr(o+10,2)} op_sel_hi:[1,0]"
    for t in range(2):
        o = O4 + 12 * t
        a(pm(o, 4)); a(pm(o, 0)); a(pm(o, 1))
        a(f"v_cvt_pk_bf16_f32 v{o+8}, v{o+8}, v{o+9}\nv_cvt_pk_bf16_f32 v{o}, v{o}, v{o+1}\nv_cvt_pk_bf16_f32 v{o+1}, v{o+2}, v{o+3}")
        a(f"buffer_store_dword v{o+8}, v{r.OS1}, {srd(r.SW)}, s{r.sO1} offen sc1 ; @ost")
        if t == 0: a(f"s_add_u32 s{r.sO1}, s{r.sO1}, {18*1024}")
    for t in range(2):
        o = O4 + 12 * t
        a(pm(o, 2)); a(pm(o, 3))
        a(f"v_cvt_pk_bf16_f32 v{o+2}, v{o+4}, v{o+5}\nv_cvt_pk_bf16_f32 v{o+3}, v{o+6}, v{o+7}")
        a(f"buffer_store_dwordx4 {vr(o)}, v{r.OS0}, {srd(r.SW)}, s{r.sO0} offen sc1 ; @ost")
        if t == 0: a(f"s_add_u32 s{r.sO0}, s{r.sO0}, {18*1024}")
    emit(a, touches(r, 'o'))
    a(st.text("o"))

def b_dma_ops(r, slow):
    T = r.sBT; w = r.sWv
    D0, D1 = r.WD, r.WD + 1; V = r.WB + 26
    o = []
    o.append(poll_issue(V + 5, None, r.SDB, ("0", 128), "fwb"))
    o.append(f"s_lshr_b32 s{r.sB}, s2, 5\ns_and_b32 s{T}, s2, 7\ns_lshl_b32 s{T}, s{T}, 4")
    o.append(f"s_bfe_u32 s{T+1}, s2, 0x20003\ns_lshl_b32 s{T+1}, s{T+1}, 2\ns_add_u32 s{T}, s{T}, s{T+1}\ns_add_u32 s{r.sTT}, s{T}, s{w}")
    o.append(f"v_bfe_u32 v{V}, v{r.L}, 1, 2\nv_xor_b32 v{V}, v{V}, v{r.C}")
    o.append(f"v_and_b32 v{V+1}, 1, v{r.L}\nv_lshlrev_b32 v{V+1}, 4, v{V+1}")
    o.append(f"v_lshl_add_u32 v{V}, v{V}, 5, v{V+1}\nv_lshrrev_b32 v{V+1}, 3, v{r.L}")
    o.append(f"v_mul_u32_u24 v{V+2}, 1152, v{V+1}\nv_add_u32 v{D0}, v{V+2}, v{V}")
    o.append(f"s_and_b32 s{T}, s{w}, 1\ns_lshr_b32 s{T+1}, s{w}, 1\ns_mul_i32 s{T+2}, s{T}, 18")
    o.append(f"s_lshl_b32 s{T+3}, s{T+1}, 3\ns_add_u32 s{T+2}, s{T+2}, s{T+3}\ns_mul_i32 s73, s{T+2}, 1152")
    o.append(f"s_mul_i32 s{T}, s{T}, 144\ns_mul_i32 s{T+1}, s{T+1}, 36\ns_add_u32 s{T}, s{T}, s{T+1}")
    o.append(f"s_add_u32 s{T}, s{T}, 16\ns_mul_i32 s74, s{T}, 1152\ns_lshl_b32 s{T}, s{r.sB}, 7")
    o.append(f"s_add_u32 s{T+2}, s73, s{T}\ns_add_u32 s{T+3}, s74, s{T}\ns_mul_i32 s75, s{w}, 18432")
    tail = lambda src, d: [f"v_lshrrev_b32 v{d}, 2, v{src}\nv_mul_u32_u24 v{d}, 72, v{d}", f"v_bfe_u32 v{V+3}, v{src}, 1, 1\nv_mul_u32_u24 v{V+3}, 18, v{V+3}",
                           f"v_add_u32 v{d}, v{d}, v{V+3}\nv_and_b32 v{V+3}, 1, v{src}", f"v_add_u32 v{d}, v{d}, v{V+3}"]
    for s_ in range(18):
        if s_ % 4 == 0: o.append(f"s_add_u32 m0, s75, {WO + 1024*s_}")
        if s_ == 16:
            o += tail(V + 1, D1); o.append(f"v_mul_u32_u24 v{D1}, 1152, v{D1}\nv_add_u32 v{D1}, v{D1}, v{V}")
        imm = 1024 * (s_ % 4)
        c = (36 * s_ if s_ < 16 else 288 * (s_ - 16)) * 1152 - imm
        o.append(f"s_add_u32 s{T}, s{T+2 if s_ < 16 else T+3}, {c}\nbuffer_load_dwordx4 v{D0 if s_ < 16 else D1}, {srd(r.SO)}, s{T} offen offset:{imm} lds ; @wo")
    o.append(f"v_and_b32 v{V}, 7, v{r.L}\ns_lshl_b32 s{T}, s{r.sB}, 4\ns_add_u32 s{T}, s{T}, 1024")
    o.append(f"v_lshl_add_u32 v{D0}, v{V}, 4, v{V+2}\nv_mul_u32_u24 v{D1}, 1152, v{r.J}")
    o.append(f"v_lshl_add_u32 v{D1}, v{r.C}, 28, v{D1}\ns_mul_i32 s{T+1}, s{r.sTT}, {16*1152}")
    o.append(f"s_add_u32 s{T+3}, s{T+1}, s{T}\ns_lshl_b32 s{T}, s{r.sB}, 7\ns_add_u32 s{T+1}, s{T+1}, s{T}")
    o.append(f"s_add_u32 m0, s{r.sXm}, {XRES}\ns_add_u32 s{T+2}, s{T+1}, {8*1152-1024}")
    o.append(f"buffer_load_dwordx4 v{D0}, {srd(r.SX)}, s{T+1} offen lds ; @wo")
    o.append(f"buffer_load_dwordx4 v{D0}, {srd(r.SX)}, s{T+2} offen offset:1024 lds ; @wo")
    o.append(f"s_add_u32 m0, s{r.sXm}, {XRES8}")
    o.append(f"buffer_load_dwordx4 v{D1}, {srd(r.SX)}, s{T+3} offen lds ; @wo")
    c1, c2 = poll_check(V + 5, None, r.SDB, T + 2, ("0", 128), 72, "fwb", slow)
    o += [c1, f"s_mul_i32 s{T}, s{w}, 5120\ns_min_u32 s{T}, s{T}, {13*1024}\ns_mul_i32 s{T+1}, s{r.sB}, 18432", c2]
    o.append(f"s_add_u32 m0, s{T}, {WO8}\ns_add_u32 s{T+1}, s{T+1}, s{T}\ns_add_u32 s{T+1}, s{T+1}, {WS['W8'][0]}")
    for k in range(5):
        if k == 4: o.append(f"s_add_u32 m0, s{T}, {WO8 + 4096}\ns_add_u32 s{T+1}, s{T+1}, 4096")
        o.append(f"buffer_load_dwordx4 v{r.OS0}, {srd(r.SW)}, s{T+1} offen offset:{1024*(k%4)} sc1 lds ; @wo")
    TA, T4, TB = r.TW, r.XD, r.XD + 1
    o.append(f"""v_lshlrev_b32 v{V}, 7, v{r.J}
    v_lshl_add_u32 v{V}, v{r.C}, 3, v{V}
    v_add_u32 v{D0}, s{r.sXm}, v{V}
    v_and_b32 v{V+2}, 1, v{r.C}
    v_lshlrev_b32 v{V+1}, 4, v{r.J}
    v_lshl_add_u32 v{V+1}, v{V+2}, 3, v{V+1}
    v_add_u32 v{D1}, s{r.sXm}, v{V+1}
    v_bfe_u32 v{V}, v{r.L}, 2, 3
    v_and_b32 v{V+1}, 3, v{r.L}
    v_lshlrev_b32 v{V+1}, 3, v{V+1}
    v_lshl_add_u32 v{V+1}, v{V}, 7, v{V+1}
    v_lshrrev_b32 v{V+2}, 5, v{r.L}
    v_mul_u32_u24 v{V+3}, 18432, v{V+2}
    v_add_u32 v{V+1}, v{V+1}, v{V+3}
    v_lshrrev_b32 v{V+3}, 1, v{V}""")
    for tc in range(4): o.append(f"v_xor_b32 v{V+4}, {tc}, v{V+3}\nv_lshl_add_u32 v{TA+tc}, v{V+4}, 5, v{V+1}")
    o.append(f"v_lshlrev_b32 v{T4}, 3, v{r.L}\nv_add_u32 v{T4}, {WO8}, v{T4}")
    return o

def phase_b(a, r, f, st, slow, setup, w2_ops=(), w2b_ops=(), w3a_ops=(), w3b_ops=(), sig2=70, poll2=130, w2gap=3, npre_o=10):
    T = r.sBT; w = r.sWv; V = r.T
    WFV, OF, AC, XR_ = 24, 128, 200, 220
    def wfr(s_, T_):
        i = 5 * s_ + T_
        return (4 * i, "a") if i < 64 else (WFV + 4 * (i - 64), "v")
    sF2s, sF2, sOb = 76, 77, 78
    TA = r.TW
    T4, TB = r.XD, r.XD + 1
    for T_ in range(4): a(f"ds_read_b64 {vr(XR_+2*T_,2)}, v{r.WD} offset:{XRES + 32*T_} ; @xr")
    a(f"ds_read_b64 {vr(XR_+8,2)}, v{r.WD+1} offset:{XRES8} ; @xr")
    def rd(s_, T_):
        b, k = wfr(s_, T_); o = []
        for h in range(2):
            off = WO + 1024 * s_ + 36864 * h if T_ < 4 else 1024 * s_ + 512 * h
            o.append(f"ds_read_b64_tr_b16 {vr(b+2*h,2,k)}, v{TA+T_ if T_ < 4 else T4} offset:{off}")
        return o
    reads = [x for s_ in range(18) for T_ in range(5) for x in rd(s_, T_)]
    own = lines(f"""s_lshl_b32 s{T}, s{r.sTB}, 2
    s_add_u32 s{T}, s{T}, s{w}
    s_lshl_b32 s{T}, s{T}, 7
    s_add_u32 s{sF2s}, s{T}, {WS['FLAG'][0] + F_E2*128}""")
    own2 = lines(f"""s_lshr_b32 s{T}, s{r.sTT}, 1
    s_lshl_b32 s{T}, s{T}, 7
    s_add_u32 s{sF2}, s{T}, {WS['FLAG'][0] + F_E2*128}
    s_mul_i32 s{T}, s{r.sTT}, {18*1024}
    s_add_u32 s{sOb}, s{T}, {WS['O'][0]}
    s_lshl_b32 s{T}, s{r.sTT}, 6
    s_add_u32 s{T}, s{T}, {WS['MUX'][0]}""")
    unp = [x for i in range(10) for x in (f"v_lshlrev_b32 v{AC+2*i}, 16, v{XR_+i}", f"v_and_b32 v{AC+2*i+1}, 0xffff0000, v{XR_+i}")]
    dm = flat(w2_ops); mixed = []; side = own2 + unp
    for x in dm:
        mixed.append(x)
        if "buffer" in x:
            for _ in range(w2gap): mixed.append(side.pop(0) if side else "")
    fill = own + list(setup[0]) + ["WAITLG xr\ns_barrier"] + mixed + side + list(setup[1])
    for k, x in enumerate(reads):
        a(x)
        if k == sig2: a(f"WAITVM ost\nbuffer_atomic_add v{r.ONE}, v{r.AT}, {srd(r.SW)}, s{sF2s} offen sc1")
        if k == poll2: a(poll_issue(r.FL, r.AT, r.SW, (f"s{sF2}", 0), "f2"))
        if fill: a(fill.pop(0))
    emit(a, fill)
    a(f"v_lshlrev_b32 v{V}, 2, v{r.J}\ns_waitcnt lgkmcnt(0)\ns_barrier")
    a(st.text("brd"))
    emit(a, poll_check(r.FL, r.AT, r.SW, T + 2, (f"s{sF2}", 0), 16, "f2", slow))
    a(st.text("e2"))
    a(f"s_mov_b32 exec_lo, 0\nbuffer_load_dword v{AC+16}, v{V}, {srd(r.SW)}, s{T} offen sc1 ; @o0\ns_mov_b64 exec, -1")
    ol = []
    for s_ in range(18):
        pre = f"s_add_u32 s{sOb}, s{sOb}, 4096\n" if s_ % 4 == 0 and s_ else ""
        if s_ < 16:
            ol.append(pre + f"buffer_load_dwordx4 {vr(OF+4*s_)}, v{f.L16}, {srd(r.SW)}, s{sOb} offen offset:{1024*(s_%4)} sc1 ; @o{s_}")
        else:
            ol.append(pre + "\n".join(f"buffer_load_dwordx2 {vr(OF+4*s_+2*h,2)}, v{f.L8}, {srd(r.SW)}, s{sOb} offen offset:{1024*(s_%4)+512*h} sc1 ; @o{s_}" for h in range(2)))
    emit(a, ol[:npre_o] + touches(r, 'ol'))
    sHa, sHb, sSS = sF2s, sF2, 79
    a(f"""s_lshr_b32 s{T}, s{r.sTT}, 2
    s_mul_i32 s{T}, s{T}, {72*1024}
    s_lshl_b32 s{T+1}, s{w}, 10
    s_add_u32 s{T}, s{T}, s{T+1}
    s_add_u32 s{T}, s{T}, {WS['HC'][0]}
    s_lshl_b32 s{T+1}, s{r.sB}, 13
    s_add_u32 s{sHa}, s{T}, s{T+1}
    s_lshr_b32 s{T+1}, s{r.sB}, 2
    s_lshl_b32 s{T+1}, s{T+1}, 12
    s_add_u32 s{T}, s{T}, s{T+1}
    s_and_b32 s{T+1}, s{r.sB}, 3
    s_lshl_b32 s{T+1}, s{T+1}, 8
    s_add_u32 s{T}, s{T}, s{T+1}
    s_add_u32 s{sHb}, s{T}, {16*4096}
    s_lshl_b32 s{T}, s{r.sTT}, 9
    s_lshl_b32 s{T+1}, s{r.sB}, 2
    s_add_u32 s{T}, s{T}, s{T+1}
    s_add_u32 s{sSS}, s{T}, {WS['SS'][0]}
    s_lshl_b32 s{T}, s{r.sTT}, 6
    s_add_u32 s{T}, s{T}, {WS['MU'][0]}
    s_cmp_eq_u32 s{r.sB}, 0
    s_cselect_b32 s{T}, s{T}, {OOB}
    s_lshl_b32 s{T+1}, s{r.sTT}, 7
    s_add_u32 s{T+1}, s{T+1}, {WS['FLAG'][0] + F_E3*128}
    s_add_u32 s{T+2}, s{sHa}, 4096
    v_lshl_add_u32 v{V}, v{r.C}, 28, v{V}
    v_lshlrev_b32 v{V+1}, 5, v{r.J}
    v_lshl_add_u32 v{V+1}, v{r.C}, 28, v{V+1}
    v_cmp_gt_u32 vcc, 32, v{r.L}""")
    fill = flat(w2b_ops); rest = ol[npre_o:]
    for s_ in range(18):
        a(f"WAITVM o{s_}")
        mf = []
        for T_ in ((0, 1, 2, 3, 4) if s_ < 17 else (4, 0, 1, 2, 3)):
            b, k = wfr(s_, T_); acc = vr(AC + 4 * T_)
            mf.append(f"{MF} {acc}, {vr(b,4,k)}, {vr(OF+4*s_)}, {acc}")
        ex = []
        if rest: ex = flat([rest.pop(0)])
        else:
            while fill:
                ex.append(fill.pop(0))
                if "buffer" in ex[-1]: break
        emit(a, pack(mf, ex))
    w3a_ops = fill + list(w3a_ops)
    M, Q = V + 2, V + 4
    a(f"""v_mov_b32 v{M+1}, v{AC+16}
    v_mov_b32 v{M}, v{AC+16}
    v_permlane32_swap_b32 v{M+1}, v{M}""")
    for i in (8, 9, 0, 1, 2, 3, 4, 5, 6, 7):
        a(f"v_pk_add_f32 {vr(AC+2*i,2)}, {vr(AC+2*i,2)}, {vr(M,2)} op_sel_hi:[1,0] neg_lo:[0,1] neg_hi:[0,1]")
    for i in range(10): a(f"v_cvt_pk_bf16_f32 v{XR_+i}, v{AC+2*i}, v{AC+2*i+1}")
    a(f"""buffer_store_dwordx4 {vr(XR_)}, v{f.L16}, {srd(r.SW)}, s{sHa} offen sc1 ; @hst
    buffer_store_dwordx4 {vr(XR_+4)}, v{f.L16}, {srd(r.SW)}, s{T+2} offen sc1 ; @hst
    s_mov_b32 exec_hi, 0
    buffer_store_dwordx2 {vr(XR_+8,2)}, v{f.L8}, {srd(r.SW)}, s{sHb} offen sc1 ; @hst
    s_mov_b64 exec, -1
    buffer_store_dword v{M}, v{V}, {srd(r.SW)}, s{T} offen sc1 ; @hst
    v_pk_mul_f32 {vr(Q,2)}, {vr(AC+16,2)}, {vr(AC+16,2)}
    v_pk_fma_f32 {vr(Q,2)}, {vr(AC+18,2)}, {vr(AC+18,2)}, {vr(Q,2)}
    v_cndmask_b32 v{Q}, 0, v{Q}, vcc
    v_cndmask_b32 v{Q+1}, 0, v{Q+1}, vcc""")
    for i in range(8): a(f"v_pk_fma_f32 {vr(Q,2)}, {vr(AC+2*i,2)}, {vr(AC+2*i,2)}, {vr(Q,2)}")
    a(f"""v_add_f32 v{Q}, v{Q}, v{Q+1}
    v_mov_b32 v{Q+1}, v{Q}
    v_permlane32_swap_b32 v{Q}, v{Q+1}
    v_add_f32 v{Q}, v{Q}, v{Q+1}
    v_mov_b32 v{Q+1}, v{Q}
    v_permlane16_swap_b32 v{Q}, v{Q+1}
    v_add_f32 v{Q}, v{Q}, v{Q+1}
    buffer_store_dword v{Q}, v{V+1}, {srd(r.SW)}, s{sSS} offen sc1 ; @hst""")
    a(st.text("hc"))
    emit(a, w3a_ops + touches(r, 'hc'))
    a(f"WAITVM hst\nbuffer_atomic_add v{r.ONE}, v{r.AT}, {srd(r.SW)}, s{T+1} offen sc1")
    a(st.text("s3"))
    emit(a, w3b_ops)

def k_attn_a(name="attna_kernel", stamps=False, akw={}, **kw):
    a = Asm(); r = a_regs(); slow = []
    st = Stamps(stamps, kid=0)
    a(f"s_cmp_ge_u32 s2, 256\ns_cbranch_scc1 {name}_end")
    a(st.text("start"))
    h = phase_a(a, r, st, slow, **akw)
    phase_a2(a, r, st, slow, h, b_dma_ops(r, slow), **kw)
    if stamps:
        a("s_waitcnt vmcnt(0)"); st.flush(a, r.SW, 2)
    a(f"{name}_end:\ns_endpgm")
    for s in slow: a(s)
    return (name, 256, 256, 163840), kernel_text(name, a, force_vgpr=512), st.names

if __name__ == "__main__":
    k = k_attn_a(stamps=True)
    open("attna.s", "w").write(file_text([k[0]], [k[1]]))
```

```python
from asmlib import *
MB = 1 << 20
ARG = dict(x=0, wqkv=8, wphi=16, wo=24, wg=40, wu=48, wd=56, out=64, dbg=72, ws=80)
SZ = dict(x=2359296, wqkv=576*1728*2, wphi=32*18*18*2, wo=576*576*2, wg=576*4608*2, wu=576*4608*2, wd=576*4608*2, out=2359296, dbg=256)
WS = dict(HC=(0, 2359296), HH=(4*MB, 2048*4608*2), PART=(24*MB, 128*64*2560), SS=(47*MB, 128*1024),
          O=(48*MB, 2359296), MU=(51*MB, 8192), MUX=(51*MB + 65536, 8192), WBAR=(51*MB + 131072, 2048), KVP=(52*MB, 256*8192),
          FLAG=(56*MB, 262144), RP=(57*MB, 32*55296), W8=(59*MB, 8*18432), STAMP=(60*MB, 1*MB))
F_E1, F_E2, F_E3, F_E4, F_E5, F_END = 0, 16, 80, 208, 976, 1360
MF = "v_mfma_f32_16x16x32_bf16"

def mk_srd(a, s, ptr, size, off=0):
    if off:
        a(f"s_add_u32 s{s}, s{ptr}, {off}\ns_addc_u32 s{s+1}, s{ptr+1}, 0\ns_and_b32 s{s+1}, s{s+1}, 0xffff")
    else:
        a(f"s_mov_b32 s{s}, s{ptr}\ns_and_b32 s{s+1}, s{ptr+1}, 0xffff")
    a(f"s_mov_b32 s{s+2}, {size}\ns_mov_b32 s{s+3}, 0x20000")

def vr(b, n=4, k="v"): return f"{k}[{b}:{b+n-1}]" if n > 1 else f"{k}{b}"

class Stamps:
    clk = False
    def __init__(self, on, base=80, kid=0, only=None):
        self.on, self.base, self.n, self.kid, self.only = on, base, 0, kid, only
        self.names = []
    def text(self, name=""):
        if not self.on or (self.only is not None and name not in self.only): return ""
        b = self.base + 2 * self.n; self.n += 1; self.names.append(name)
        assert b + 1 <= 101
        return f"{'s_memtime' if Stamps.clk else 's_memrealtime'} s[{b}:{b+1}]"
    def flush(self, a, srd, vtmp, swave=3):
        if not self.on: return
        a("s_waitcnt lgkmcnt(0)")
        t = self.base + 1
        a(f"s_lshl_b32 s{t}, s2, 2\ns_add_u32 s{t}, s{t}, s{swave}\ns_lshl_b32 s{t}, s{t}, 6\ns_add_u32 s{t}, s{t}, {WS['STAMP'][0] + self.kid*65536}")
        for i in range(self.n):
            a(f"v_mov_b32 v{vtmp}, s{self.base + 2*i}\nbuffer_store_dword v{vtmp}, off, s[{srd}:{srd+3}], s{t} offset:{4*i}\ns_waitcnt vmcnt(0)")

def k_stamp(name="stamp_kernel", kid=7):
    a = Asm(); st = Stamps(True, kid=kid)
    a(st.text())
    a(f"s_cmp_ge_u32 s2, 256\ns_cbranch_scc1 {name}_end")
    a(f"s_load_dwordx2 s[4:5], s[0:1], {ARG['ws']}\nv_lshrrev_b32 v1, 6, v0\nv_readfirstlane_b32 s3, v1")
    a("s_waitcnt lgkmcnt(0)"); mk_srd(a, 12, 4, 64 * MB)
    st.flush(a, 12, 2)
    a(f"{name}_end:\ns_endpgm")
    return (name, 256, 256, 0), kernel_text(name, a)

def srd(s): return f"s[{s}:{s+3}]"
class R: pass
_lab = [0]
def poll_issue(vfl, vat, sw, sflag, tag=None, val=0):
    if vat is None:
        return f"buffer_load_dword v{vfl}, off, {srd(sw)}, {sflag[0]} offset:{sflag[1]} sc1" + (f" ; @{tag} @flag" if tag else "")
    return f"v_mov_b32 v{vfl}, {val}\nbuffer_atomic_add v{vfl}, v{vat}, {srd(sw)}, {sflag[0]} offen offset:{sflag[1]} sc0 sc1" + (f" ; @{tag} @flag" if tag else "")
def poll_check(vfl, vat, sw, stmp, sflag, count, tag, slow):
    _lab[0] += 1; L = f"Lp{_lab[0]}"; T = stmp
    slow.append(f"""{L}_slow:
    s_mov_b32 s{T+1}, 0
    {L}_spin:
    {poll_issue(vfl, vat, sw, sflag)}
    s_add_u32 s{T+1}, s{T+1}, 1
    s_waitcnt vmcnt(0)
    v_readfirstlane_b32 s{T}, v{vfl}
    s_cmp_gt_u32 s{T+1}, 100000
    s_cbranch_scc1 {L}_ok
    s_cmp_ge_u32 s{T}, {count}
    s_cbranch_scc1 {L}_ok
    s_branch {L}_spin""")
    return [f"WAITVM {tag}\nv_readfirstlane_b32 s{T}, v{vfl}", f"s_cmp_ge_u32 s{T}, {count}\ns_cbranch_scc0 {L}_slow\n{L}_ok:"]

def lines(text):
    return [l.strip() for l in text.split("\n") if l.strip()]
def spread(main, *fills):
    n = len(main); out = []
    pos = [0] * len(fills)
    for i, m in enumerate(main):
        out.append(m)
        for k, f in enumerate(fills):
            want = (len(f) * (i + 1) + n - 1) // n
            while pos[k] < want: out.append(f[pos[k]]); pos[k] += 1
    if n == 0:
        for f in fills: out += f
    return out
def emit(a, items):
    for t in items: a(t)

def k_flush(name="flush_kernel", data=True, code=True):
    a = Asm()
    a(f"s_cmp_ge_u32 s2, 256\ns_cbranch_scc1 {name}_end")
    if data:
        a("s_load_dwordx2 s[4:5], s[0:1], 32\ns_waitcnt lgkmcnt(0)")
        mk_srd(a, 8, 4, 512 * MB)
        a(f"v_lshlrev_b32 v1, 4, v0\ns_lshl_b32 s3, s2, 15\ns_mov_b32 s6, 64\n{name}_l:")
        for i in range(8):
            a(f"buffer_load_dwordx4 v[{4+4*i}:{7+4*i}], v1, s[8:11], s3 offen\ns_add_u32 s3, s3, 4096")
        a(f"s_add_u32 s3, s3, {255*32768}\ns_waitcnt vmcnt(0)\ns_sub_u32 s6, s6, 1\ns_cmp_lg_u32 s6, 0\ns_cbranch_scc1 {name}_l")
    if code:
        a.raw(".rept 10240\n  v_add3_u32 v1, v2, v3, v0\n.endr")
    else:
        a(f"s_mov_b32 s6, 20\n{name}_d:\ns_sleep 100\ns_sub_u32 s6, s6, 1\ns_cmp_lg_u32 s6, 0\ns_cbranch_scc1 {name}_d")
    a(f"v_mov_b32 v40, 0\n{name}_end:\ns_endpgm")
    return (name, 256, 256, 0), kernel_text(name, a)

def _cls(line):
    if line.endswith(":") or not line: return None
    if line.startswith(("s_", "WAIT")): return "s"
    if line.startswith("ds_read"): return "d"
    if line.startswith(("v_exp", "v_rcp", "v_rsq")): return "t"
    return "v"
def pack(mf, *streams):
    S = []
    for s in streams:
        items, at = (s[0], s[1:]) if isinstance(s, tuple) else (s, None)
        it = [lines(x) for x in items if x.strip()]
        vm = [k for k, x in enumerate(it) if any(l.startswith(("buffer_", "global_")) for l in x)]
        when = {}
        if at:
            gl = at[0] if len(at) == 1 else [at[0] + (at[1] - at[0]) * k // max(1, len(vm)) for k in range(len(vm))]
            when = dict(zip(vm, gl))
        S.append(dict(it=it, pos=0, when=when))
    out = []
    def eligible(s, g):
        if s["pos"] >= len(s["it"]): return False
        return g >= s["when"].get(s["pos"], 0)
    debt = 0
    for g, m in enumerate(mf):
        out.append(m)
        t = 1; nd = 0
        while True:
            best = None
            for pas in (0, 1):
                for s in S:
                    if not eligible(s, g): continue
                    c = [x for x in map(_cls, s["it"][s["pos"]]) if x]
                    if pas == 0 and not (t == 1 and c[0] == "s"): continue
                    tt = t; d = nd
                    for x in c:
                        if x != "s" and tt == 1: tt = 2
                        tt += 2 if x == "t" else 1
                        d += x == "d"
                    if (tt <= 4 and d <= 1) or (t == 1 and len(c) > 2):
                        best = (s, tt, d); break
                if best: break
            if not best: break
            s, t, nd = best
            out += s["it"][s["pos"]]; s["pos"] += 1
            if t >= 4: break
    left = 0
    for s in S:
        for it in s["it"][s["pos"]:]: out += it; left += len(it)
    pack.left = left if pack.verbose else 0
    return out
pack.verbose = False
def flat(items):
    out = []
    for x in items:
        if any(k in x for k in ("cselect", "cbranch", "exec", "WAIT", "s_addc")): out.append(x)
        else: out += lines(x)
    return out

class Cap:
    def __init__(self): self.items = []
    def __call__(self, t):
        ls = lines(t); i = 0
        while i < len(ls):
            if ls[i].startswith("s_cmp") or (i + 1 < len(ls) and ls[i+1].startswith("s_addc")):
                j = i + 1
                while j < len(ls) and ls[j].startswith(("s_cselect", "s_addc", "s_cbranch")): j += 1
                self.items.append("\n".join(ls[i:j])); i = j
            else:
                self.items.append(ls[i]); i += 1

class Pacer:
    def __init__(self): self.q = []; self.t = 0; self.due = 0
    def add(self, items, w):
        g = []
        for x in flat(items):
            g.append(x)
            if "buffer_" in x or "global_" in x:
                self.q.append((g, w(x) if callable(w) else w)); g = []
        if g: self.q.append((g, 0))
    def _pop(self):
        g, w = self.q.pop(0); self.due = max(self.due, self.t) + w; return g
    def valu(self, main):
        out = []
        for m in main:
            while self.q and self.t >= self.due:
                g = self._pop(); out += g; self.t += 4 * sum(len(lines(x)) for x in g)
            out.append(m)
            self.t += sum(8 if _cls(l) in "td" else 4 for l in lines(m) if _cls(l))
        return out
    def mfma(self, mf, *streams):
        items, gaps = [], []; t0 = self.t
        for g in range(len(mf) - 1):
            self.t = t0 + 16 * g
            while self.q and self.t >= self.due:
                grp = self._pop(); items += grp
                if "buffer_" in grp[-1] or "global_" in grp[-1]: gaps.append(g)
        self.t = t0 + 16 * len(mf)
        return pack(mf, *streams[:1], (items, gaps), *streams[1:])
    def flush(self, pred=None):
        n = len(self.q) if pred is None else max([k + 1 for k, (g, w) in enumerate(self.q) if any(pred in x for x in g)] + [0])
        out = []
        for _ in range(n): out += self._pop()
        return out
```

```python
from common import *

def ffn_regs():
    r = R()
    r.ACC = 4; r.FR = 164; r.XV = 188; r.STG = 220; r.TRA = 236; r.TRC = 248
    r.DVW = 249; r.DVD = 250; r.DC = 251; r.L16 = 252; r.L8 = 253; r.AT = 254; r.FL = 255
    r.SG, r.SU, r.SD, r.SC, r.SW = 12, 16, 20, 24, 28
    r.SO = 12
    r.sWv = 3
    r.sW, r.sWC, r.sMC, r.sM0, r.sX, r.sH, r.sHC, r.sHL, r.sD, r.sDC, r.sF4, r.sF5, r.sP = 32, 33, 34, 35, 36, 37, 38, 39, 40, 41, 42, 43, 44
    r.sRD, r.sRH, r.sRC = 45, 49, 53
    r.sT = 57
    r.sKG, r.sJ, r.sTB = 64, 65, 66
    r.sXt = 24; r.sPt = 67; r.sUo, r.sUs, r.sUc = 71, 72, 73; r.sQ, r.sF6, r.sTok, r.sU1 = 76, 77, 78, 79
    r.DVS = r.DC
    r.SLOT = 24576; r.NS = 5; r.XB = 0; r.SB = 36864; r.S0 = 3
    return r

def ffn_setup1(a, r, v1=1, v2=2, v3=3):
    a(f"""v_bfe_u32 v{v2}, v{v1}, 1, 2
    v_bfe_u32 v{v3}, v{v1}, 4, 2
    v_xor_b32 v{v2}, v{v2}, v{v3}
    v_and_b32 v{v3}, 1, v{v1}
    v_lshlrev_b32 v{v3}, 4, v{v3}
    v_lshl_add_u32 v{v2}, v{v2}, 5, v{v3}
    v_lshrrev_b32 v{r.FL}, 3, v{v1}
    v_mul_u32_u24 v{r.DVW}, 9216, v{r.FL}
    v_add_u32 v{r.DVW}, v{r.DVW}, v{v2}
    v_mul_u32_u24 v{r.DVD}, 1152, v{r.FL}
    v_add_u32 v{r.DVD}, v{r.DVD}, v{v2}""")
    T = r.sT; w = r.sWv
    a(f"""s_and_b32 s{r.sKG}, s2, 7
    s_bfe_u32 s{r.sJ}, s2, 0x20003
    s_lshr_b32 s{r.sTB}, s2, 5
    s_mul_i32 s{T}, s{r.sKG}, 1152
    s_lshl_b32 s{T+1}, s{r.sJ}, 8
    s_add_u32 s{r.sW}, s{T}, s{T+1}
    s_mul_i32 s{T+2}, s{w}, {8*9216}
    s_add_u32 s{r.sW}, s{r.sW}, s{T+2}
    s_mul_i32 s{r.sM0}, s{w}, 3072""")

def ffn_setup2(a, r, v1=1, v2=2, v3=3):
    T = r.sT; w = r.sWv
    a(f"""v_lshlrev_b32 v{r.L16}, 4, v{v1}
    v_lshlrev_b32 v{r.L8}, 3, v{v1}
    v_cmp_eq_u32 vcc, 0, v{v1}
    v_lshrrev_b32 v{v2}, 2, v{v1}
    v_and_b32 v{v3}, 3, v{v1}
    v_lshlrev_b32 v{v3}, 3, v{v3}
    v_mov_b32 v{r.FL}, 0x40000000
    v_cndmask_b32 v{r.AT}, v{r.FL}, 0, vcc
    v_lshl_add_u32 v{r.TRC}, v{v2}, 5, v{v3}
    v_and_b32 v{r.FL}, 7, v{v2}
    v_lshl_add_u32 v{v3}, v{r.FL}, 7, v{v3}
    v_lshrrev_b32 v{r.FL}, 3, v{v2}
    v_mul_u32_u24 v{r.FL}, 3072, v{r.FL}
    v_add_u32 v{v3}, v{v3}, v{r.FL}
    v_add_u32 v{v3}, {r.SB}, v{v3}
    v_bfe_u32 v{v2}, v{v2}, 1, 2""")
    for tc in range(4):
        a(f"v_xor_b32 v{r.FL}, {tc}, v{v2}\nv_lshl_add_u32 v{r.TRA+tc}, v{r.FL}, 5, v{v3}\nv_add_u32 v{r.TRA+4+tc}, 61440, v{r.TRA+tc}")
    a(f"""s_lshl_b32 s{T+1}, s{r.sJ}, 8
    s_lshl_b32 s{T+3}, s{r.sKG}, 2
    s_add_u32 s{T+3}, s{T+3}, s{r.sJ}
    s_mul_i32 s{T+3}, s{T+3}, 55296
    s_add_u32 s{T+3}, s{T+3}, {WS['RP'][0]}
    s_add_u32 s{r.sDC}, s{T+3}, 36864
    s_mul_i32 s{r.sMC}, s{w}, 9216
    s_add_u32 s{r.sWC}, s{T+3}, s{r.sMC}
    s_mul_i32 s{T}, s{r.sKG}, {576*1152}
    s_mul_i32 s{T+2}, s{w}, {8*1152}
    s_add_u32 s{r.sD}, s{T}, s{T+1}
    s_add_u32 s{r.sD}, s{r.sD}, s{T+2}
    s_lshl_b32 s{T+4}, s{r.sTB}, 2
    s_add_u32 s{T+4}, s{T+4}, s{w}
    s_mul_i32 s{T+5}, s{T+4}, {72*1024}
    s_add_u32 s{r.sX}, s{T+5}, {WS['HC'][0]}
    s_mul_i32 s{T}, s{r.sKG}, {32*72*1024}
    s_add_u32 s{T}, s{T}, s{T+5}
    s_add_u32 s{r.sHL}, s{T}, {WS['HH'][0]}
    s_lshl_b32 s{T+1}, s{r.sJ}, 14
    s_add_u32 s{r.sH}, s{r.sHL}, s{T+1}
    s_lshr_b32 s{T+1}, s{r.sJ}, 1
    s_lshl_b32 s{T+1}, s{T+1}, 12
    s_and_b32 s{T+2}, s{r.sJ}, 1
    s_lshl_b32 s{T+2}, s{T+2}, 9
    s_add_u32 s{T+1}, s{T+1}, s{T+2}
    s_add_u32 s{T+1}, s{T+1}, {16*4096}
    s_add_u32 s{r.sHC}, s{r.sHL}, s{T+1}
    s_lshl_b32 s{T}, s{r.sKG}, 5
    s_add_u32 s{T}, s{T}, s{T+4}
    s_mul_i32 s{T}, s{T}, 384
    s_add_u32 s{r.sF4}, s{T}, {WS['FLAG'][0] + F_E4*128}
    s_lshl_b32 s{T}, s{r.sTB}, 2
    s_add_u32 s{T}, s{T}, s{r.sJ}
    s_lshl_b32 s{T+1}, s{T}, 2
    s_add_u32 s{T+1}, s{T+1}, s{w}
    s_mul_i32 s{T+1}, s{T+1}, 384
    s_add_u32 s{r.sF5}, s{T+1}, {WS['FLAG'][0] + F_E5*128}""")
    a(f"""s_lshr_b32 s{T}, s{r.sKG}, 2
    s_lshl_b32 s{T}, s{T}, 7
    v_add_u32 v{r.DVS}, s{T}, v{r.DVD}
    s_xor_b32 s{T}, s{T}, 128
    v_add_u32 v{r.DVD}, s{T}, v{r.DVD}
    s_and_b32 s{T+1}, s{r.sKG}, 3""")
    for t in range(4):
        a(f"s_xor_b32 s{T}, s{T+1}, {3 ^ t}\ns_lshl_b32 s{T}, s{T}, 10\ns_add_u32 s{r.sXt+t}, s{T}, s{r.sX}")
    for i in range(4):
        a(f"""s_add_u32 s{T}, s{r.sJ}, {i}
        s_and_b32 s{T}, s{T}, 3
        s_mul_i32 s{r.sRD+i}, s{T}, {4*32*1152}
        s_add_u32 s{r.sRD+i}, s{r.sRD+i}, s{r.sD}
        s_lshl_b32 s{r.sRH+i}, s{T}, 14
        s_add_u32 s{r.sRH+i}, s{r.sRH+i}, s{r.sHL}
        s_lshl_b32 s{r.sRC+i}, s{T}, 12""")

def ffn_srds(a, r, pW, pD, pWS=None):
    mk_srd(a, r.SG, pW, SZ['wg']); mk_srd(a, r.SU, pW + 2, SZ['wu']); mk_srd(a, r.SD, pD, SZ['wd'])
    if pWS: mk_srd(a, r.SW, pWS, 64 * MB)

def kq(q):
    if q < 8: return None, 4 * (q // 2) + q % 2
    if q < 10: return None, 16 + q - 8
    if q < 12: return 0, 2 + q - 10
    if q < 15: return q - 11, 2
    return q - 14, 3

def slab_ops(r, n):
    ops = []; T = r.sT
    slot = (n + r.S0) % r.NS
    if n < 12:
        col = 0 if n < 6 else 128
        for ks in range(3):
            ops.append((f"s_add_u32 s{T+ks}, s{r.sW}, {(3*(n%6)+ks)*32*9216 + col - 1024*ks}", 1))
        for m, S in enumerate((r.SG, r.SU)):
            ops.append((f"s_add_u32 m0, s{r.sM0}, {r.SB + slot*r.SLOT + m*12288}", 1))
            for ks in range(3):
                ops.append((f"buffer_load_dwordx4 v{r.DVW}, {srd(S)}, s{T+ks} offen offset:{1024*ks} lds ; @slab{n}", 2))
    else:
        col = 0; dv = r.DVS if n % 2 else r.DVD
        for m in range(2):
            ops.append((f"s_add_u32 m0, s{r.sM0}, {r.SB + slot*r.SLOT + m*12288}", 1))
            for ks in range(3):
                q = 6 * ((n - 12) // 2) + 3 * m + ks
                rot, s = kq(q)
                b = r.sD if rot is None else r.sRD + rot
                c = s * 32 * 1152 + col - 1024 * ks
                assert c >= 0
                ops.append((f"s_add_u32 s{T}, s{b}, {c}", 1))
                ops.append((f"buffer_load_dwordx4 v{dv}, {srd(r.SD)}, s{T} offen offset:{1024*ks} lds ; @slab{n}", 2))
    return ops

def lin_ops(r, sg, sm, n, tag):
    ops = []
    for i in range(n):
        if i % 4 == 0:
            ops.append((f"s_add_u32 m0, s{sm}, {1024*i}", 1)); ops.append((f"s_add_u32 s{r.sT}, s{sg}, {1024*i}", 1))
        ops.append((f"buffer_load_dwordx4 v{r.L16}, {srd(r.SW)}, s{r.sT} offen offset:{1024*(i%4)} sc1 lds ; @{tag}", 2))
    return ops
def wc_ops(r): return lin_ops(r, r.sWC, r.sMC, 9, "wc")
def dc_ops(r):
    T = r.sT
    return [(f"s_mul_i32 s{T}, s{r.sWv}, 5120\ns_min_u32 s{T}, s{T}, {13*1024}", 2), (f"s_add_u32 s{r.sDC}, s{r.sDC}, s{T}\ns_add_u32 s{r.sMC}, s{T}, {r.XB}", 2)] + lin_ops(r, r.sDC, r.sMC, 5, "dc")

def xreg(r, s, t):
    return vr(r.XV + 16 * s + 4 * t) if s < 2 else vr(16 * (s - 2) + 4 * t, 4, "a")
def hreg(r, q, t):
    if q in (10, 11): return vr(r.XV + 16 * (q - 10) + 4 * t)
    return vr(16 * (q if q < 10 else q - 2) + 4 * t, 4, "a")
def preg(k): return vr(16 * (k // 3) + 4 * (k % 3), 4, 'a')
def half(reg, h):
    m = re.match(r"([va])\[(\d+):", reg); b = int(m.group(2)) + 2 * h
    return f"{m.group(1)}[{b}:{b+1}]"
def x_loads(r, s):
    ops = []; tmp = r.sT + 3
    for t in range(4):
        so = f"s{r.sXt+t}"
        if s: ops.append((f"s_add_u32 s{tmp}, s{r.sXt+t}, {4096*s}", 1)); so = f"s{tmp}"
        if s < 16: ops.append((f"buffer_load_dwordx4 {xreg(r,s,t)}, v{r.L16}, {srd(r.SW)}, {so} offen sc1 ; @x{s}", 2))
        else:
            for h in range(2): ops.append((f"buffer_load_dwordx2 {half(xreg(r,s,t), h)}, v{r.L8}, {srd(r.SW)}, {so} offen offset:{512*h} sc1 ; @x{s} @half", 2))
    return ops
def frag_loads(r, regf, sbase, s, tag, fl, tmp):
    ops = [(f"s_add_u32 s{tmp}, s{sbase}, {4096*s}", 1)]
    for t in range(4):
        if s < 16 or s is None:
            ops.append((f"buffer_load_dwordx4 {regf(t)}, v{r.L16}, {srd(r.SW)}, s{tmp} offen offset:{1024*t} {fl} ; @{tag}", 2))
        else:
            for h in range(2):
                ops.append((f"buffer_load_dwordx2 {half(regf(t), h)}, v{r.L8}, {srd(r.SW)}, s{tmp} offen offset:{1024*t+512*h} {fl} ; @{tag} @half", 2))
    return ops

def ffn_main(a, r, st, slow, cap=2, pace=5, lat=80, chk=55, lead=50, hst='sc1', pst='sc1', hld='sc1', nochk=False, fine=False, npre=5, wcpre=True, verbose=False, touch={}, tgap=120, kfirst=True, nx0=1, merge={1: 0, 3: 2, 5: 4, 'dc': 12}, slabat={}, dcat='early', fcd=30, vmcost=2, tafter=8, tat=625, p0=(90, 30, 16), s1=35, rfd=7):
    S = Sched(cap)
    groups = []
    for n in range(6):
        for tc in range(4):
            for m in range(2): groups.append(("A", n, m, tc))
    for n in range(6):
        for m in range(2): groups.append(("C", n, m, 0))
    for n in range(6):
        for tc in range(4):
            for m in range(2): groups.append(("B", n, m, tc))
    for n in range(6):
        for tc in (0, 1, 2, 3, 8, 4): groups.append(("D", n, 0, tc))
    for tc in (5, 6, 7):
        for n in range(6): groups.append(("D", n, 0, tc))
    gidx = {g: i for i, g in enumerate(groups)}
    def tset(kind, tc): return range(3) if kind == "D" and 4 <= tc < 8 else range(4)
    def accb(kind, m, tc):
        if kind in "AB": return r.ACC + 32 * tc + 16 * m
        if kind == "C": return r.ACC + 128 + 16 * m
        return r.ACC + (128, 144, 0, 16, 48, 64, 80, 96, 32)[tc]
    def slab_of(g):
        kind, n, m, tc = g
        if kind == "A": return n
        if kind == "B": return 6 + n
        if kind == "C": return "wc"
        return 12 + 2 * (n // 2) + tc // 4 if tc < 8 else "dc"
    def frags_of(gi):
        kind, n, m, tc = groups[gi]
        if gi < 8 and kfirst:
            return [(i % 2, (i // 2) % 4, i // 8) for i in range(3 * gi, 3 * gi + 3)]
        return [(m, tc, ks) for ks in range(3)]
    def frag_reads(gi):
        kind, n, _, _ = g = groups[gi]
        b = r.FR + 12 * (gi % 2); out = []
        sl = slab_of(g)
        for fi, (m, tc, ks) in enumerate(frags_of(gi)):
            pre = ""
            if sl == "wc": ad, off, hs = r.TRC, m * 18432 + (3 * n + ks) * 1024, 512
            elif sl == "dc":
                rot, s = kq(3 * n + ks); ad, off, hs = r.TRC, s * 1024, 512
                if rot is not None:
                    ad = 1 + ks; pre = f"v_add_u32 v{ad}, s{r.sRC+rot}, v{r.TRC}"
            else:
                hm = m if kind in "AB" else n % 2
                slot = (sl + r.S0) % r.NS
                off = slot * r.SLOT + hm * 12288; pg = int(off >= 61440)
                ad = r.TRA + 4 * pg + tc % 4; off += ks * 1024 - 61440 * pg; hs = 6144
            if pre: out.append(pre)
            for h in range(2):
                out.append(f"ds_read_b64_tr_b16 {vr(b+4*fi+2*h, 2)}, v{ad} offset:{off+h*hs} ; @fr{gi}")
        return out
    start = []; done = []
    for gi, (kind, n, _, tc0) in enumerate(groups):
        b = r.FR + 12 * (gi % 2)
        start.append(S.n())
        for t in tset(kind, tc0):
            for fi, (m, tc, ks) in enumerate(frags_of(gi)):
                acc = vr(accb(kind, m, tc) + 4 * t); s = 3 * n + ks
                breg = xreg(r, s, t) if kind in "ABC" else hreg(r, s, t)
                S.mfma(f"{MF} {acc}, {vr(b+4*fi)}, {breg}, {'0' if s == 0 else acc}")
        done.append(S.n())
    NG = len(groups); F0 = S.n()
    ffn_main.ideal = [16 * (done[g] - start[g]) for g in range(NG)]; ffn_main.start = start
    RING, NR = r.ACC, 12
    fr = [(tc, q) for tc in range(4) for q in range(18)]
    for k, (tc, q) in enumerate(fr):
        acc = vr(accb("D", 0, 4 + tc) + 12)
        S.mfma(f"{MF} {acc}, {vr(RING + 4 * (k % NR))}, {hreg(r, q, 3)}, {'0' if q == 0 else acc}")
    END = S.n()
    G = lambda *g: start[gidx[g]]
    first_use, last_use = {}, {}
    for gi, g in enumerate(groups):
        sl = slab_of(g); first_use.setdefault(sl, gi); last_use[sl] = gi
    bar_at = {}
    for sl, gi in first_use.items():
        if gi == 0: continue
        key = gi - 1
        if sl in (13, 15, 17): key = first_use[sl - 1] - 1
        if sl in merge: key = first_use[merge[sl]] - 1
        if key < 0: continue
        bar_at.setdefault(key, []).append(sl)
    bars = sorted(bar_at)
    def free_slot(sl):
        return min(start[b] for b in bars if b >= last_use[sl]) + 1
    def tagof(sl): return f"slab{sl}" if isinstance(sl, int) else sl
    a("WAITVM slab0" + "".join(f" WAITVM slab{k}" for k, v in merge.items() if v == 0) + "\ns_barrier")
    a(st.text("C0"))
    for t in frag_reads(0): a(t)
    for gi, g in enumerate(groups):
        kind, n, m, tc = g
        w = f"WAITLG fr{gi}"
        if kind == "A" and (gi < 8 or m + tc == 0): w += f" WAITVM x{3*n + max(f[2] for f in frags_of(gi))}"
        if kind == "D" and tc == 0: w += f" WAITVM h{3*n+2 if n != 3 else 9}"
        for sl in bar_at.get(gi, []): w += f" WAITVM {tagof(sl)}"
        S.fix(start[gi], w)
        if gi in bar_at: S.fix(start[gi], "s_barrier")
        if fine and gi < 155:
            if gi: S.fix(start[gi], f"v_writelane_b32 v{r.TRA+8+(gi-1)//64}, s74, {(gi-1)%64}")
            S.fix(start[gi], "s_memtime s[74:75]")
        if gi + 1 < NG:
            k = 0
            for t in frag_reads(gi + 1):
                S.add("rd", start[gi] + 1 + k, min(start[gi] + 9, done[gi] - 1), t)
                if t.startswith("ds_"): k += 1
    for k, (tc, q) in enumerate(fr):
        slot = (13 + 2 * (q // 6) + r.S0) % r.NS
        off = slot * r.SLOT + ((q // 3) % 2) * 12288; pg = int(off >= 61440); off += (q % 3) * 1024 - 61440 * pg
        for h in range(2):
            e = F0 + k - NR + 1 if k >= NR else F0 - 60
            S.add("rf", e, F0 + 2 * (k // 2) - rfd, f"ds_read_b64_tr_b16 {vr(RING + 4*(k % NR) + 2*h, 2)}, v{r.TRA + 4*pg + tc} offset:{off + 6144*h} ; @ff{k//2}")
        if k % 2 == 0: S.fix(F0 + k, f"WAITLG ff{k//2}", free=True)
    bslot = {sl: start[k] for k, l in bar_at.items() for sl in l}
    for sl_, nm in ((G("B", 0, 0, 0), "B"), (G("D", 0, 0, 0), "D"), (F0, "F")):
        t = st.text(nm)
        if t: S.fix(sl_, t)
    def epi_gu(kind, tc, deadline):
        e = done[gidx[(kind, 5, 1, tc)]] + 8
        h = tc % 2
        stg = r.STG if kind != "B" else r.XV + 16 * (tc // 2)
        if kind != "C" and h == 1:
            S.add("ep", e, None, f"s_add_u32 s{r.sT+4}, s{r.sH}, {4096 * (tc // 2 + (2 if kind == 'B' else 0))}")
        for t in range(4):
            g, u = accb(kind, 0, tc) + 4 * t, accb(kind, 1, tc) + 4 * t
            for i in range(4): S.add("ep", e, deadline, f"v_mul_f32 v{g+i}, v{g+i}, v{u+i}")
            d = stg + 4 * t + 2 * h
            S.add("ep", e, deadline, f"v_cvt_pk_bf16_f32 v{d}, v{g}, v{g+1}")
            S.add("ep", e, deadline, f"v_cvt_pk_bf16_f32 v{d+1}, v{g+2}, v{g+3}")
            if kind == "C":
                S.add("ep", e, None, f"buffer_store_dwordx2 {vr(d,2)}, v{r.L8}, {srd(r.SW)}, s{r.sHC} offen offset:{1024*t} {hst} ; @stC", 2)
            elif h == 1:
                S.add("ep", e, None, f"buffer_store_dwordx4 {vr(stg+4*t)}, v{r.L16}, {srd(r.SW)}, s{r.sT+4} offen offset:{1024*t} {hst} ; @st{kind}{tc//2}", 2)
        return e
    for tc in range(4): epi_gu("A", tc, G("B", 0, 0, tc) - 2)
    e = epi_gu("C", 0, G("D", 0, 0, 0) - 2); tC = e + 25 + lat
    T4 = r.sT + 4; w = r.sWv
    pre = lines(f"""s_lshl_b32 s{T4}, s{r.sTB}, 2
    s_add_u32 s{T4}, s{T4}, s{r.sJ}
    s_lshl_b32 s{T4}, s{T4}, 2
    s_add_u32 s{T4}, s{T4}, s{w}
    s_mul_i32 s{T4}, s{T4}, {64*2560}
    s_add_u32 s{r.sQ}, s{T4}, {WS['PART'][0]}
    s_mul_i32 s{T4}, s{r.sKG}, 2560
    s_add_u32 s{r.sP}, s{r.sQ}, s{T4}
    s_lshl_b32 s{T4}, s{T4}, 3
    s_add_u32 s{r.sQ}, s{r.sQ}, s{T4}
    s_lshr_b32 s{r.sU1}, s{r.sKG}, 2
    s_mul_i32 s{r.sUs}, s{r.sU1}, 81920
    s_sub_u32 s{r.sUo}, 81920, s{r.sUs}
    s_lshr_b32 s{T4}, s{w}, 1
    s_mul_i32 s{r.sUc}, s{T4}, 81920
    s_lshl_b32 s{r.sF6}, s{r.sU1}, 7
    s_add_u32 s{r.sF6}, s{r.sF6}, s{r.sF5}
    s_and_b32 s{r.sTok}, s{r.sKG}, 3""")
    for t in range(4): pre += lines(f"s_xor_b32 s{T4}, s{r.sTok}, {3 ^ t}\ns_mul_i32 s{T4}, s{T4}, 20480\ns_add_u32 s{r.sPt+t}, s{T4}, s{r.sP}")
    pre += lines(f"s_lshl_b32 s{T4}, s{r.sTB}, 4\ns_add_u32 s{r.sTok}, s{r.sTok}, s{T4}\ns_lshl_b32 s{T4}, s{w}, 2\ns_add_u32 s{r.sTok}, s{r.sTok}, s{T4}")
    for t in pre: S.add("ep", G("B", 2, 0, 0), None, t)
    dls = [G("D", 0, 0, 2) - 2, G("D", 0, 0, 8) - 2, G("D", 3, 0, 0) - 4, G("D", 3, 0, 0) - 4]
    eb = [epi_gu("B", tc, dls[tc]) for tc in range(4)]
    tB0, tB1 = eb[1] + 25 + lat, eb[3] + 25 + lat
    def epi_d(tc, tag, dl=None):
        e = done[gidx[("D", 5, 0, tc)]] + 8
        h = tc % 2; su = r.sUc if tc == 8 else r.sUo if tc < 4 else r.sUs
        for t in tset("D", tc):
            g = accb("D", 0, tc) + 4 * t
            d = r.STG + 4 * t + 2 * h
            S.add("ep", e, dl, f"v_cvt_pk_bf16_f32 v{d}, v{g}, v{g+1}")
            S.add("ep", e, dl, f"v_cvt_pk_bf16_f32 v{d+1}, v{g+2}, v{g+3}")
            if tc == 8 or h == 1: S.add("ep", e, None, f"s_add_u32 s{T4}, s{r.sPt+t}, s{su}")
            if tc == 8:
                S.add("ep", e, None, f"buffer_store_dwordx2 {vr(d,2)}, v{r.L8}, {srd(r.SW)}, s{T4} offen offset:2048 {pst} ; @{tag}", 2)
            elif h == 1:
                S.add("ep", e, None, f"buffer_store_dwordx4 {vr(r.STG+4*t)}, v{r.L16}, {srd(r.SW)}, s{T4} offen offset:{1024*((tc//2)%2)} {pst} ; @{tag}", 2)
        return e
    tl = G("D", 1, 0, 5)
    for tc in (0, 1, 2, 3, 8): e = epi_d(tc, "sp0", tl - 1 if tc < 2 else F0 - 62)
    tP0 = e + 12 + p0[0]
    epi_d(4, "sp1"); epi_d(5, "sp1")
    r.vB, r.vHc, r.vSS, r.vI, r.vRs, r.vMu = r.ACC + 128, r.ACC + 60, r.ACC + 112, r.ACC + 120, r.ACC + 126, r.ACC + 127
    own = ["WAITVM stat"] + [f"v_add_f32 v{r.vSS}, v{r.vSS}, v{r.vSS+k}" for k in range(1, 8)]
    own += lines(f"v_mov_b32 v{r.vRs}, 0x3727c5ac\nv_fmac_f32 v{r.vRs}, 0x3ae38e39, v{r.vSS}\nv_rcp_f32 v{r.vRs}, v{r.vRs}")
    for k in range(10):
        own += lines(f"v_lshlrev_b32 v{r.vB+2*k}, 16, v{r.vHc+16*(k//4)+k%4}\nv_and_b32 v{r.vB+2*k+1}, 0xffff0000, v{r.vHc+16*(k//4)+k%4}\nv_add_f32 v{r.vB+2*k}, v{r.vB+2*k}, v{r.vMu}\nv_add_f32 v{r.vB+2*k+1}, v{r.vB+2*k+1}, v{r.vMu}")
    I = r.vI
    own += lines(f"""v_lshrrev_b32 v{I}, 6, v{r.L16}
    v_and_b32 v{I}, 12, v{I}
    v_bfe_u32 v{I+1}, v{r.L16}, 4, 4
    v_sub_u32 v{I}, v{I+1}, v{I}
    v_and_b32 v{I+1}, 16, v{r.L16}
    v_mov_b32 v{I+4}, 0x3f80
    v_lshlrev_b32 v{I+1}, v{I+1}, v{I+4}
    v_lshrrev_b32 v{I}, 1, v{I}
    v_cmp_eq_u32 vcc, 0, v{I}
    v_mov_b32 v{I+4}, 0
    v_mov_b32 v{I+5}, 0
    v_cndmask_b32 v{I+2}, 0, v{I+1}, vcc
    v_cmp_eq_u32 vcc, 1, v{I}
    v_mov_b32 v{I}, 0
    v_bfe_u32 v{r.vSS}, v{r.L16}, 4, 4
    v_cndmask_b32 v{I+3}, 0, v{I+1}, vcc
    v_mov_b32 v{I+1}, 0
    v_mul_u32_u24 v{r.vSS}, 1152, v{r.vSS}
    v_lshrrev_b32 v{r.vSS+2}, 8, v{r.L16}
    v_lshl_add_u32 v{r.vSS+1}, v{r.vSS+2}, 3, v{r.vSS}
    v_and_b32 v{r.vSS+3}, 1, v{r.vSS+2}
    v_lshl_add_u32 v{r.vSS}, v{r.vSS+3}, 5, v{r.vSS}
    v_lshrrev_b32 v{r.vSS+2}, 1, v{r.vSS+2}
    v_lshl_add_u32 v{r.vSS}, v{r.vSS+2}, 4, v{r.vSS}""")
    for t in own: S.add("e2", tl, F0 - 2, t)
    epi_d(6, "sp1"); e = epi_d(7, "sp1")
    vm = []
    def put(ops, e, d):
        for t, c in ops: vm.append([e, d, t, c])
    def xl(s): return x_loads(r, s)
    def hl(q):
        rot, s = kq(q)
        put(frag_loads(r, lambda t: hreg(r, q, t), r.sHL if rot is None else r.sRH + rot, s, f"h{q}", hld, r.sT + 3), hfree(q), hneed(q))
    def slab(n): put(slab_ops(r, n), max(slabat.get(n, 0), free_slot(n - r.NS) if n >= r.NS else 0), bslot[n])
    def sgn(stage, tag, e, sflag):
        put([(f"WAITVM {tag}\nbuffer_atomic_add v0, v{r.AT}, {srd(r.SW)}, s{sflag} offen offset:{128*stage} sc1", 2)], e, None)
    def chkflag(stage, e, tag, filler):
        put([(poll_issue(r.FL, r.AT, r.SW, (f"s{r.sF4}", 128*stage), tag), 2)], e, None)
        filler()
        c1, c2 = poll_check(r.FL, r.AT, r.SW, r.sT + 5, (f"s{r.sF4}", 128*stage), 0 if nochk else 4, tag, slow)
        vm.append([("after", tag, chk), None, c1, 2]); vm.append([("gap", 3), None, c2, 2])
    hfree = lambda q: done[gidx[("B", ((q if q < 10 else q - 2) + 2) // 3, 1, 3)]]
    hneed = lambda q: G("D", q // 3, 0, 0)
    nxt = npre
    for s in range(nx0, 3): put(xl(s), 0, start[(8 * s - 2) // 3 + (s == 2)])
    for n in range(1, 6):
        for s in range(3 * n, 3 * n + 3): put(xl(s), 0, G("A", n, 0, 0))
        if nxt <= min(n + 2, 5): slab(nxt); nxt += 1
    def tch(k):
        if touch.get(k):
            put([(t, 2) for t in touch[k]], tat, None); vm.append([("gap", tgap), None, "", 0])
    tch("ffnx")
    if not wcpre: put(wc_ops(r), 0, bslot["wc"])
    for n in range(nxt, tafter + 1): slab(n)
    tch("ffn")
    for n in range(tafter + 1, 11): slab(n)
    sgn(0, "stC", tC, r.sF4)
    slab(11)
    dc = dc_ops(r)
    if dcat == 'early': put(dc, free_slot("wc"), bslot["dc"])
    chkflag(0, ("after", "stC_sig", fcd), "fC", lambda: slab(12))
    for q in range(0, 4): hl(q)
    slab(13)
    for q in range(4, 7): hl(q)
    slab(14)
    for q in range(7, 10): hl(q)
    slab(15); slab(16)
    if dcat == 'mid': put(dc, free_slot("wc"), bslot["dc"])
    sgn(1, "stB0", tB0, r.sF4)
    sgn(2, "stB1", tB1, r.sF4)
    chkflag(1, hneed(12) - 12 * pace - lead - chk, "fB0", lambda: slab(17))
    hl(12)
    def f():
        for q in (13, 14): hl(q)
    chkflag(2, hneed(15) - 12 * pace - lead - chk, "fB1", f)
    for q in range(15, 18): hl(q)
    if dcat == 'late': put(dc, free_slot("wc"), bslot["dc"])
    T = r.sT
    put([(f"v_bfe_u32 v{r.DVW}, v{r.L16}, 4, 4\ns_lshl_b32 s{T}, s{r.sTok}, 6", 2), (f"v_lshlrev_b32 v{r.DVW}, 2, v{r.DVW}\ns_add_u32 s{T+1}, s{T}, {WS['MU'][0]}", 2),
         (f"buffer_load_dword v{r.vMu}, v{r.DVW}, {srd(r.SW)}, s{T+1} offen sc1 ; @stat @half", 2),
         (f"v_lshlrev_b32 v{r.DVW}, 3, v{r.DVW}\ns_lshl_b32 s{T}, s{T}, 3", 2), (f"s_add_u32 s{T}, s{T}, {WS['SS'][0]}", 1),
         (f"buffer_load_dwordx4 {vr(r.vSS)}, v{r.DVW}, {srd(r.SW)}, s{T} offen sc1 ; @stat", 2),
         (f"buffer_load_dwordx4 {vr(r.vSS+4)}, v{r.DVW}, {srd(r.SW)}, s{T} offen offset:16 sc1 ; @stat", 2)], G("D", 3, 0, 0), None)
    put([(f"s_lshl_b32 s{T}, s{r.sJ}, 1\ns_add_u32 s{T}, s{T}, s{r.sU1}", 2), (f"s_lshl_b32 s{T}, s{T}, 13\ns_add_u32 s{T}, s{T}, s{r.sXt+3}", 2),
         (f"buffer_load_dwordx4 {vr(r.vHc)}, v{r.L16}, {srd(r.SW)}, s{T} offen sc1 ; @stat", 2), (f"s_add_u32 s{T}, s{T}, 4096", 1),
         (f"buffer_load_dwordx4 {vr(r.vHc+16)}, v{r.L16}, {srd(r.SW)}, s{T} offen sc1 ; @stat", 2),
         (f"s_sub_u32 s{T}, s{r.sHC}, s{r.sHL}\ns_add_u32 s{T}, s{T}, s{r.sXt+3}", 2),
         (f"buffer_load_dwordx2 {vr(r.vHc+32,2)}, v{r.L8}, {srd(r.SW)}, s{T} offen sc1 ; @stat @half", 2)], G("D", 3, 0, 0), tl - 1)
    sgn(0, "sp0", tP0, r.sF5)
    put([(poll_issue(r.FL, r.AT, r.SW, (f"s{r.sF5}", 0), "f50"), 2)], tP0 + p0[1], None)
    c1, c2 = poll_check(r.FL, r.AT, r.SW, T + 5, (f"s{r.sF5}", 0), 8, "f50", slow)
    vm.append([F0 + p0[2], None, c1, 2]); vm.append([("gap", 2), None, c2, 2])
    l0 = [f"s_lshr_b32 s{T}, s{r.sUo}, 3", f"s_add_u32 s{T}, s{T}, s{r.sQ}"]
    for k in range(4):
        for p in range(2): l0.append(f"buffer_load_dwordx4 {preg(2*k+p)}, v{r.L16}, {srd(r.SW)}, s{T} offen offset:{1024*p} sc1 ; @pa{k} @half")
        if k < 3: l0.append(f"s_add_u32 s{T}, s{T}, 2560")
    l0.append(f"s_cmp_eq_u32 s{r.sUc}, s{r.sUs}\ns_cselect_b32 s{T}, s{r.sQ}, 0x40000000\ns_cselect_b32 s{T+1}, 0, 0x40000000")
    for k in range(8):
        l0.append(f"buffer_load_dwordx2 {half(preg(14+k//2), k%2)}, v{r.L8}, {srd(r.SW)}, s{T} offen offset:2048 sc1 ; @pc @flag")
        if k < 7: l0.append(f"s_add_u32 s{T}, s{T}, 2560")
    put([(t, 1) for t in l0], 0, None)
    S.fix(F0 + s1, "WAITVM sp1\n" + poll_issue(r.STG + 12, r.AT, r.SW, (f"s{r.sF6}", 128), "f51", 1) + "\n" + st.text("s5"))
    cur = 0; tagslot = {}
    for e, d, t, c in vm:
        if isinstance(e, tuple):
            e = tagslot[e[1]] + e[2] if e[0] == "after" else cur + e[1]
        cur = max(cur, e)
        if d is not None and cur > d - 30 and "buffer" in t: print(f"   tight: {t[-30:]!r} at {cur} deadline {d}")
        if d is not None: cur = min(cur, d)
        if not t: continue
        S.add("vm", cur if any(k in t for k in ("buffer_", "global_", "WAIT", "cbranch")) else 0, d, t, c)
        for tg in re.findall(r"@(\S+)", t): tagslot[tg] = cur
        if t.startswith("WAITVM"): tagslot[t.split()[1] + ("_sig" if "atomic" in t else "_chk")] = cur
        if "buffer_load" in t:
            cur += 1 if "@flag" in t else (pace + 1) // 2 if "@half" in t else 4 * pace if "@quarter" in t else pace
    if verbose: print("  vm timeline:", "A0 C%d B%d D%d E%d end%d |" % (G("C",0,0,0), G("B",0,0,0), G("D",0,0,0), F0, END), " ".join(f"{k}:{v}" for k, v in sorted(tagslot.items(), key=lambda kv: kv[1])))
    late = S.emit(a, ["rd", "ep", "vm", "rf", "e2"], vmcost, range(F0 - 8, END))
    if late: print("  late fillers:", late)

def ffn_tail(a, r, st, slow, pOut, ost=""):
    T = r.sT; w = r.sWv
    MF16 = "v_mfma_f32_16x16x16_bf16"
    a(st.text("E"))
    acc = [r.ACC + b + 12 for b in (48, 64, 80, 96)]; accC = r.ACC + 48
    Sa, Sb, I16 = vr(r.vI + 2), vr(r.vI), vr(r.vI + 2, 2)
    vO, vOC, F2 = r.vSS, r.vSS + 1, r.STG + 12
    f6 = (f"s{r.sF6}", 128)
    areg = preg
    mk_srd(a, r.SO, pOut, SZ['out'])
    a(f"""s_mul_i32 s{T+2}, s{r.sTok}, {16*1152}
    s_lshl_b32 s{T}, s{r.sJ}, 5
    s_add_u32 s{T+1}, s{T+1}, s{T}
    s_add_u32 s{T+1}, s{T+1}, s{T+2}
    s_lshl_b32 s{T}, s{r.sJ}, 1
    s_add_u32 s{T}, s{T}, s{r.sU1}
    s_lshl_b32 s{T}, s{T}, 7
    s_add_u32 s{T+2}, s{T+2}, s{T}""")
    for m in range(1, 4): a(f"s_xor_b32 s{T}, s{r.sKG}, {m}\ns_mul_i32 s{T}, s{T}, 2560\ns_add_u32 s{r.sPt+m}, s{T}, s{r.sQ}")
    def add(k, p):
        for h, S_ in enumerate((Sa, Sb)): a(f"{MF} {vr(acc[2*p+h])}, {S_}, {areg(2*k+p)}, {vr(acc[2*p+h])}")
    B = r.vB
    def stage0():
        a("WAITVM pc")
        for k in range(8): a(f"{MF16} {vr(accC)}, {I16}, {half(areg(14+k//2), k%2)}, {vr(accC) if k else 0}")
        for k in range(4): add(k, 0); add(k, 1)
        for e in range(4): a(f"v_fmac_f32 v{B+16+e}, v{accC+e}, v{r.vRs}")
        a(f"v_cvt_pk_bf16_f32 v{B+16}, v{B+16}, v{B+17}\nv_cvt_pk_bf16_f32 v{B+17}, v{B+18}, v{B+19}")
    c1, c2 = poll_check(F2, r.AT, r.SW, T + 5, f6, 4, "f51", slow)
    a(c1); a(f"s_add_u32 s{T+5}, s{T+5}, 1"); a(c2)
    a(st.text("e5"))
    for p in range(2):
        for m in range(1, 4): a(f"buffer_load_dwordx4 {areg(6+2*m+p)}, v{r.L16}, {srd(r.SW)}, s{r.sPt+m} offen offset:{1024*p} sc1 ; @pb{p}")
    stage0()
    a(f"buffer_store_dwordx2 {vr(B+16,2)}, v{vOC}, {srd(r.SO)}, s{T+1} offen offset:1024 {ost}")
    for p in range(2):
        a(f"WAITVM pb{p}")
        for m in range(1, 4): add(3 + m, p)
    for p in range(2):
        b = B + 8 * p
        for e in range(8): a(f"v_fmac_f32 v{b+e}, v{acc[2*p+e//4]+e%4}, v{r.vRs}")
        for e in (0, 2, 1, 3): a(f"v_cvt_pk_bf16_f32 v{r.STG+4*p+e}, v{b+2*e}, v{b+2*e+1}")
        b = r.STG + 4 * p
        a(f"v_permlane16_swap_b32 v{b}, v{b+2}\nv_permlane16_swap_b32 v{b+1}, v{b+3}")
        a(f"buffer_store_dwordx4 {vr(b)}, v{vO}, {srd(r.SO)}, s{T+2} offen offset:{64*p} {ost}")

def k_ffn(name="ffn_kernel", stamps=False, **kw):
    a = Asm(); r = ffn_regs(); slow = []
    st = Stamps(stamps, kid=2)
    a(f"s_cmp_ge_u32 s2, 256\ns_cbranch_scc1 {name}_end")
    a(st.text("start"))
    a(f"s_load_dwordx4 s[4:7], s[0:1], {ARG['wg']}\ns_load_dwordx4 s[8:11], s[0:1], {ARG['wd']}\ns_load_dwordx2 s[68:69], s[0:1], {ARG['ws']}")
    a(f"v_lshrrev_b32 v1, 6, v0\nv_readfirstlane_b32 s{r.sWv}, v1")
    a("v_and_b32 v1, 63, v0")
    ffn_setup1(a, r); ffn_setup2(a, r)
    a("v_mov_b32 v0, 1\ns_waitcnt lgkmcnt(0)")
    ffn_srds(a, r, 4, 8, 68)
    for n in range(5):
        for t, c in slab_ops(r, n): a(t)
    for t, c in wc_ops(r): a(t)
    a("s_waitcnt vmcnt(0)")
    for s in range(3):
        for t, c in frag_loads(r, lambda t: xreg(r, s, t), r.sX, s, f"x{s}", "sc1", r.sT + 3): a(t)
    ffn_main(a, r, st, slow, **kw)
    ffn_tail(a, r, st, slow, 10)
    if stamps:
        a("s_waitcnt vmcnt(0)"); a(st.text("end")); st.flush(a, r.SW, 2)
        if kw.get("fine"):
            a(f"s_lshl_b32 s4, s2, 2\ns_add_u32 s4, s4, s3\ns_lshl_b32 s4, s4, 10\ns_add_u32 s4, s4, {WS['STAMP'][0] + MB}\nbuffer_store_dwordx4 v[{r.TRA+8}:{r.TRA+11}], v{r.L16}, {srd(r.SW)}, s4 offen")
    a(f"{name}_end:\ns_endpgm")
    for s in slow: a(s)
    return (name, 256, 256, 159744), kernel_text(name, a), st.names

if __name__ == "__main__":
    k = k_ffn(stamps=True, verbose=True)
    open("ffn.s", "w").write(file_text([k[0]], [k[1]]))
```

```python
from common import *
import attn, ffn, sys
NAME = "sequential_preLN__linear_kernel_hedgehog__glu_gated_bilinear__prompt_kernel"

def k_mega(name=NAME, stamps=False, w2=(0, 1), w2b=(), w3a=(2,), w3b=(3,), ost='', codepf=True, touch=dict(c8='gG', smq='uU', ffn='d'), hop=1, hopb=False, akw={}, a2kw={}, bkw={}, amp=None,
           only=("start", "c0", "kvg", "kvp", "o", "e2", "hc", "e3", "D", "E", "end"), **kw):
    a = Asm(); r = attn.a_regs(); f = ffn.ffn_regs(); slow = []
    st = Stamps(stamps or amp is not None, kid=0, only=only)
    a(f"s_cmp_ge_u32 s2, 256\ns_cbranch_scc1 L_end")
    a(st.text("start"))
    if codepf:
        a(f"""s_getpc_b64 s[72:73]
        s_lshr_b32 s74, s2, 3
        s_lshl_b32 s74, s74, 11
        v_and_b32 v1, 15, v0
        v_lshlrev_b32 v1, 7, v1
        v_add_u32 v1, s74, v1
        v_min_u32 v1, L_code_end-{name}-64, v1
        global_load_dword v255, v1, s[72:73]""")
    r.touch = touch
    h = attn.phase_a(a, r, st, slow, hop=hop, **akw)
    attn.phase_a2(a, r, st, slow, h, attn.b_dma_ops(r, slow), **a2kw)
    c1, c2 = Cap(), Cap()
    ffn.ffn_setup1(c1, f, r.L, r.T, r.T + 1); ffn.ffn_srds(c1, f, 4, 8)
    ffn.ffn_setup2(c2, f, r.L, r.T, r.T + 1); c2("v_mov_b32 v0, 1")
    def ops(l):
        o = []
        for n in l: o += [t for t, c in (ffn.wc_ops(f) if n == "wc" else ffn.slab_ops(f, n))]
        return o
    assert set(w2) <= {0, 1}
    pre = list(w2) + list(w2b) + list(w3a) + list(w3b)
    npre = len([n for n in pre if n != "wc"])
    attn.phase_b(a, r, f, st, slow, (c1.items, c2.items), ops(w2), ops(w2b), ops(w3a), ops(w3b), **bkw)
    T = f.sT
    if hopb: a(hop_dispatch(f.sWv, "b") + "\nL_mainb:\ns_mov_b64 exec, -1")
    a(f"""s_lshl_b32 s{T}, s{f.sTB}, 2
    s_add_u32 s{T}, s{T}, s{f.sWv}
    s_lshl_b32 s{T}, s{T}, 9
    s_add_u32 s{T}, s{T}, {WS['FLAG'][0] + F_E3*128}
    v_lshlrev_b32 v1, 3, v{f.L16}
    s_mov_b32 s{T+1}, 0
    s_mov_b64 exec, 15
    L_e3:
    v_mov_b32 v{f.FL}, 0
    buffer_atomic_add v{f.FL}, v1, {srd(f.SW)}, s{T} offen sc0 sc1
    s_add_u32 s{T+1}, s{T+1}, 1
    s_waitcnt vmcnt(0)
    v_cmp_gt_u32 vcc, 8, v{f.FL}
    s_cmp_gt_u32 s{T+1}, 100000
    s_cbranch_scc1 L_e3ok
    s_cbranch_vccnz L_e3
    L_e3ok:
    s_mov_b64 exec, -1""")
    a(st.text("e3"))
    for s in range(kw.setdefault('nx0', 3)):
        for t, c in ffn.x_loads(f, s): a(t)
    ffn.ffn_main(a, f, st, slow, npre=npre, wcpre=("wc" in pre), touch={k: attn.touches(r, k) for k in ('ffn', 'ffnx')}, **kw)
    ffn.ffn_tail(a, f, st, slow, 10, ost)
    if amp is not None:
        a("s_waitcnt vmcnt(0)"); a(st.text("end"))
        i, j, e = [st.base + 2 * st.names.index(n) for n in (amp[0], amp[1], "end")]
        a(f"s_waitcnt lgkmcnt(0)\ns_sub_u32 s4, s{j}, s{i}\ns_min_u32 s4, s4, 20000\ns_mul_i32 s4, s4, 10")
        a(f"L_amp:\ns_memrealtime s[6:7]\ns_waitcnt lgkmcnt(0)\ns_sub_u32 s5, s6, s{e}\ns_cmp_lt_u32 s5, s4\ns_cbranch_scc1 L_amp")
    if stamps:
        a("s_waitcnt vmcnt(0)"); a(st.text("end")); st.flush(a, f.SW, 2)
        if kw.get("fine"):
            a(f"s_lshl_b32 s4, s2, 2\ns_add_u32 s4, s4, s3\ns_lshl_b32 s4, s4, 10\ns_add_u32 s4, s4, {WS['STAMP'][0] + MB}\nbuffer_store_dwordx4 v[{f.TRA+8}:{f.TRA+11}], v{f.L16}, {srd(f.SW)}, s4 offen")
    a("L_end:\ns_endpgm")
    for s in slow: a(s)
    a("L_code_end:")
    return (name, 256, 256, 163840), kernel_text(name, a, hop=bool(hop), split='L_mainb' if hopb else None), st.names

HEAD = open("sequential_preLN__linear_kernel_hedgehog__glu_gated_bilinear__prompt.s.ref").read().split("; Override")[0] if __name__ == "__main__" else ""
def single_file(k):
    n, g, b, lds = k[0]
    return HEAD + f"; @launch grid=({g},1,1) block=({b},1,1) lds={lds}\n" + '.amdgcn_target "amdgcn-amd-amdhsa--gfx950"\n.text\n' + k[1][0] + '.section .rodata,"a"\n' + k[1][1]

if __name__ == "__main__":
    cfg = eval(sys.argv[2]) if len(sys.argv) > 2 else {}
    k = k_mega(**cfg)
    open(sys.argv[1] if len(sys.argv) > 1 else "mega.s", "w").write(single_file(k))
```

```python
from common import *
from common import _lab
MF16 = "v_mfma_f32_16x16x16_bf16"
OOB = 0x40000000
NLEAD = 10

WKV, XR, ZERO, PHI, DUMMY = 0, 92160, 157696, 158592, 161600
FK, VI = 0, 20480
WO, WO8, KVI = 0, 73728, 158592
XRES, XRES8 = 14336, 2560
QOFF = (4096, 6656, 9216, 11776, 0)

def a_regs():
    r = R()
    r.SX, r.SQ, r.SP, r.SO, r.SW, r.SDB = 12, 16, 20, 24, 28, 32
    r.sWv = 3
    r.sHP, r.sTB, r.sRot, r.sC, r.sXb, r.sWb, r.sXm, r.sWm = 36, 37, 38, 39, 40, 41, 42, 43
    r.sT = 44
    r.sU = 48
    r.sF1, r.sKVP, r.sG, r.sPS = 52, 53, 54, 55
    r.sM = 56
    r.sMX, r.sO0, r.sO1, r.sHv, r.sLd, r.sRS, r.sRP = 64, 65, 66, 76, 77, 73, 74
    r.sB, r.sTT, r.sBT = 67, 72, 68
    r.L = 1; r.J = 2; r.C = 3
    r.XD = 4; r.WD = 6; r.XRD = 9; r.TW = 11
    r.AT = 15; r.FL = 16; r.ONE = 17; r.T = 18
    r.ONES = 24
    r.WF = 28
    r.WB = 68
    r.AK = 108; r.AS = 168; r.RS = 184; r.NM = 186
    r.PK = 188; r.FQ = 208
    names = "AV AM AF AV3 AF3 PS0 PS1 PS2 BP MX C1 TQ TQM PL KW K4a TG TG1 TG2 DUM".split()
    for k, n in enumerate(names): setattr(r, n, 228 + k)
    r.U = 248
    r.K4b, r.OS0, r.OS1 = 252, 253, 254
    r.npre_w = 12
    r.touch = {}
    r.aX = 0; r.aPH = 144; r.aP = 176; r.aSEL = 240
    return r

def xa(r, p, t): return vr(r.aX + 8 * p + 4 * t, 4, "a")

def touches(r, where):
    P = dict(g=(4, 0), u=(6, 0), G=(4, 1), U=(6, 1), d=(8, 2))
    return [f"buffer_load_dword v{r.DUM}, v{r.WB+36}, {srd(r.SO)}, 0 offen" if c == "o" else
            f"global_load_dword v{r.DUM}, v{r.TG+P[c][1]}, s[{P[c][0]}:{P[c][0]+1}]" for c in r.touch.get(where, "")]

def hop_here(a, w):
    a(hop_dispatch(w)); a.raw(".p2align 12"); a("L_main:\ns_mov_b64 exec, -1\ns_nop 1")

def phase_a(a, r, st, slow, LA=2, A=2, gaps=([0, 10, 13, 16], [8, 11, 16]), exp='', hop=0, qw=180, rot=(1, 0, 1), pdelay=600, rp8=False, et=(-1, ''), rplate=False, clrat=1):
    T, U, V = r.sT, r.sU, r.T; w = r.sWv; WB = r.WB
    la = A.bit_length() - 1
    a(f"""v_lshrrev_b32 v{V}, 6, v0
    v_and_b32 v{r.L}, 63, v0
    v_readfirstlane_b32 s{w}, v{V}
    v_bfe_u32 v{r.C}, v0, 4, 2
    s_and_b32 s{T}, s2, {16//A - 1}
    s_lshl_b32 s{T}, s{T}, {la}
    s_bfe_u32 s{T+1}, s2, {hex(la << 16 | 3)}
    s_add_u32 s{r.sHP}, s{T}, s{T+1}
    s_lshr_b32 s{r.sTB}, s2, {3 + la}
    s_bfe_u32 s{T}, s2, {hex((la - 1) << 16 | (4 - la))}
    s_lshl_b32 s{T}, s{T}, {5 - la}
    s_add_u32 s{r.sTB}, s{r.sTB}, s{T}
    s_mul_i32 s{T}, s{r.sTB}, {rot[0]}
    s_mul_i32 s{T+1}, s{T+1}, {rot[1]}
    s_add_u32 s{T}, s{T}, s{T+1}
    s_lshr_b32 s{T+1}, s{r.sHP}, {la}
    s_mul_i32 s{T+1}, s{T+1}, {rot[2]}
    s_add_u32 s{T}, s{T}, s{T+1}
    s_mul_i32 s{T+1}, s{T}, 57
    s_lshr_b32 s{T+1}, s{T+1}, 9
    s_mul_i32 s{T+1}, s{T+1}, 9
    s_sub_u32 s{r.sRot}, s{T}, s{T+1}
    s_mov_b32 s{r.sC}, s{r.sRot}
    v_lshrrev_b32 v{V}, 3, v{r.L}
    v_and_b32 v{V+1}, 7, v{r.L}
    v_xor_b32 v{V+1}, v{V+1}, v{r.C}
    v_mul_u32_u24 v{V+2}, 1152, v{V}
    v_lshl_add_u32 v{r.XD}, v{V+1}, 4, v{V+2}
    v_xor_b32 v{r.XD+1}, 64, v{r.XD}
    v_add_u32 v{r.XD+1}, {8*1152-1024}, v{r.XD+1}
    s_lshl_b32 s{T}, s{r.sTB}, 2
    s_add_u32 s{T}, s{T}, s{w}
    s_mul_i32 s{r.sXb}, s{T}, {32*1152}
    s_lshl_b32 s{r.sXm}, s{w}, 14
    s_add_u32 s{r.sXm}, s{r.sXm}, {XR}
    s_lshr_b32 s{T}, s{r.sHP}, 3
    s_xor_b32 s{T}, s{T}, s{r.sHP}
    s_and_b32 s{r.sHv}, s{T}, 1
    s_or_b32 s{T}, s{r.sHv}, s{w}
    s_lshl_b32 s{T+1}, s{r.sTB}, 3
    s_lshr_b32 s{T+2}, s{r.sHP}, 1
    s_add_u32 s{T+1}, s{T+1}, s{T+2}
    s_cmp_lg_u32 s{T}, 0
    s_cselect_b32 s{r.sG}, 72, s{T+1}
    s_waitcnt lgkmcnt(0)""")
    a(st.text("ka"))
    mk_srd(a, r.SX, 4, SZ['x']); mk_srd(a, r.SO, 10, SZ['wo'])
    a(f"""s_cmp_ge_u32 s{r.sG}, 72
    s_cbranch_scc1 L_wb1
    s_lshr_b32 s{U}, s{r.sG}, 1
    s_mul_i32 s{U}, s{U}, 18
    s_and_b32 s{U+1}, s{r.sG}, 1
    s_lshl_b32 s{U+1}, s{U+1}, 2
    s_add_u32 s{U}, s{U}, s{U+1}
    s_sub_u32 s{U+1}, s{r.sG}, 64
    s_mul_i32 s{U+1}, s{U+1}, 72
    s_add_u32 s{U+1}, s{U+1}, 16
    v_and_b32 v{V+1}, 4, v{V}
    v_add_u32 v{V+1}, v{V+1}, v{V}
    v_mul_u32_u24 v{V+2}, 18, v{r.C}
    v_and_b32 v{V+3}, 1, v{V}
    v_add_u32 v{V+2}, v{V+2}, v{V+3}
    s_cmp_lt_u32 s{r.sG}, 64
    s_cselect_b32 s{U}, s{U}, s{U+1}
    s_cselect_b64 vcc, -1, 0
    s_mul_i32 s{U}, s{U}, 1152
    v_cndmask_b32 v{V+1}, v{V+2}, v{V+1}, vcc
    v_mul_u32_u24 v{V+1}, 1152, v{V+1}
    v_and_b32 v{V+2}, 7, v{r.L}
    v_lshl_add_u32 v{V+1}, v{V+2}, 4, v{V+1}""")
    for i in range(9):
        a(f"buffer_load_dwordx4 {vr(WB+4*i)}, v{V+1}, {srd(r.SO)}, s{U} offen offset:{128*i} ; @cond")
    W8 = r.PK
    a(f"""v_bfe_u32 v{V+1}, v{r.L}, 1, 2
    v_bfe_u32 v{V+2}, v{r.L}, 2, 1
    v_lshl_add_u32 v{V+2}, v{V+2}, 4, v{V+1}
    v_cndmask_b32 v{V+1}, v{V+2}, v{V+1}, vcc
    v_mul_u32_u24 v{V+1}, 1152, v{V+1}
    v_lshl_add_u32 v{V+1}, v{V}, 4, v{V+1}
    s_cselect_b32 s{U+1}, 8, 36
    s_mul_i32 s{U+1}, s{U+1}, 1152
    s_add_u32 s{U+1}, s{U+1}, s{U}
    buffer_load_dwordx4 {vr(W8)}, v{V+1}, {srd(r.SO)}, s{U} offen offset:1024 ; @cond
    buffer_load_dwordx4 {vr(W8+4)}, v{V+1}, {srd(r.SO)}, s{U+1} offen offset:1024 ; @cond
    L_wb1:""")
    def x_dma(n, k=0):
        m0 = f"s_add_u32 m0, s{r.sXm}, {4096*(n%4)}\n"
        o = [f"s_lshl_b32 s{T+k}, s{r.sC}, 7\ns_add_u32 s{T+k}, s{T+k}, s{r.sXb}", ("" if k else m0) + f"s_add_u32 s{T+k+1}, s{T+k}, {16*1152-2048}"]
        for i in range(4):
            o.append((m0 if k else "") + f"buffer_load_dwordx4 v{r.XD+i%2}, {srd(r.SX)}, s{T+k+i//2} offen offset:{1024*i} lds ; @c{n}")
        return o
    def w3(tag, m0=""):
        o = [m0 + f"buffer_load_dwordx4 v{r.WD+p}, {srd(r.SQ)}, s{T} offen offset:{1024*p} lds ; @{tag}" for p in range(2)]
        o.append(m0 + f"s_mov_b32 exec_hi, 0\nbuffer_load_dwordx4 v{r.WD+2}, {srd(r.SQ)}, s{T} offen offset:2048 lds ; @{tag}\ns_mov_b64 exec, -1")
        return o
    def w_dma(n, each=False):
        m0 = f"s_add_u32 m0, s{r.sWm}, {WKV + 10240*n}\n"
        o = [("" if each else m0) + f"s_mul_i32 s{T}, s{r.sC}, {64*3456}", f"s_add_u32 s{T}, s{T}, s{r.sWb}\ns_add_u32 s{r.sC}, s{r.sC}, 1"]
        return o + w3(f"c{n}", m0 if each else "") + [f"s_cmp_eq_u32 s{r.sC}, 9\ns_cselect_b32 s{r.sC}, 0, s{r.sC}"]
    emit(a, x_dma(0))
    mk_srd(a, r.SQ, 6, SZ['wqkv'])
    a(f"s_movk_i32 s{U}, 3456\ns_movk_i32 s{U+1}, 1152")
    for p in range(3):
        if p: a(f"v_add_u32 v{V}, {64*p}, v{r.L}")
        src = V if p else r.L
        a(f"""v_mul_u32_u24 v{V+1}, 205, v{src}
        v_lshrrev_b32 v{V+1}, 10, v{V+1}
        v_mad_i32_i24 v{V}, v{V+1}, -5, v{r.L}
        v_lshlrev_b32 v{V}, 4, v{V}
        v_and_b32 v{r.U+p}, 1, v{V+1}
        v_mad_u32_u24 v{V}, v{r.U+p}, s{U+1}, v{V}
        v_bfe_u32 v{V+2}, v{V+1}, 1, 2
        v_and_or_b32 v{V+1}, v{V+1}, 56, v{V+2}
        v_mad_u32_u24 v{r.WD+p}, v{V+1}, s{U}, v{V}""")
    a(f"""s_lshr_b32 s{T}, s{w}, 1
    s_mul_i32 s{T}, s{T}, {32*3456}
    s_and_b32 s{T+1}, s{w}, 1
    s_mul_i32 s{T+1}, s{T+1}, {4*3456}
    s_add_u32 s{T}, s{T}, s{T+1}
    s_mul_i32 s{T+1}, s{r.sHP}, 72
    s_and_b32 s{T+1}, s{T+1}, -16
    s_add_u32 s{T}, s{T}, s{T+1}
    s_add_u32 s{r.sWb}, s{T}, 1152
    s_mul_i32 s{r.sWm}, s{w}, 2560""")
    emit(a, w_dma(0))
    a(st.text("c0i"))
    mk_srd(a, r.SW, 70, 64 * MB); mk_srd(a, r.SP, 8, SZ['wphi']); mk_srd(a, r.SDB, 68, 256)
    a(f"""s_load_dwordx8 s[4:11], s[0:1], {ARG['wg']}
    s_sub_u32 s{U+1}, s{r.sTB}, 6
    s_xor_b32 s{U}, s{w}, 1
    s_or_b32 s{U}, s{U}, s{r.sHP}
    s_cselect_b32 s{r.sLd}, -1, s{U+1}
    s_lshl_b32 s{U}, s{r.sLd}, 10
    s_add_u32 s{U}, s{U}, {WS['FLAG'][0]}
    s_cmp_lt_u32 s{r.sLd}, {NLEAD}
    s_cselect_b32 s{U}, s{U}, {OOB}
    v_lshlrev_b32 v{r.OS0}, 4, v{r.L}
    v_mov_b32 v{r.AS}, 0
    v_mov_b32 v{r.AS+1}, 0
    v_mov_b32 v{r.AS+2}, 0
    v_mov_b32 v{r.AS+3}, 0
    buffer_store_dwordx4 {vr(r.AS)}, v{r.OS0}, {srd(r.SW)}, s{U} offen sc1 ; @clr
    v_lshlrev_b32 v{V}, 2, v0
    s_mul_i32 s{U}, s{r.sHP}, 1296
    buffer_load_dword v{WB+36}, v{V}, {srd(r.SP)}, s{U} offen ; @phi
    buffer_load_dword v{WB+37}, v{V}, {srd(r.SP)}, s{U} offen offset:1024 ; @phi
    v_and_b32 v{r.J}, 15, v0
    v_bfe_u32 v{V}, v0, 1, 3
    v_xor_b32 v{V}, v{V}, v{r.C}
    v_lshlrev_b32 v{V+1}, 7, v{r.J}
    v_add_u32 v{V+1}, s{r.sXm}, v{V+1}
    v_lshl_add_u32 v{r.XRD}, v{V}, 4, v{V+1}
    v_xor_b32 v{r.XRD+1}, 64, v{r.XRD}
    v_lshrrev_b32 v{V}, 2, v{r.L}
    v_mul_u32_u24 v{V}, 160, v{V}
    s_and_b32 s{U}, s{r.sHP}, 1
    s_lshl_b32 s{U}, s{U}, 3
    v_add_u32 v{V}, s{U}, v{V}
    v_add_u32 v{r.TQM}, {XR + 64}, v{V}
    v_and_b32 v{V+1}, 3, v{r.L}
    v_lshl_add_u32 v{r.TW}, v{V+1}, 3, v{V}
    v_and_b32 v{V+1}, 1, v{r.L}
    v_mul_u32_u24 v{V+1}, 48, v{V+1}
    v_add3_u32 v{r.TW+1}, v{V}, v{V+1}, 64
    v_add_u32 v{r.TW+2}, 51200, v{r.TW}
    v_add_u32 v{r.TW+3}, 51200, v{r.TW+1}
    v_lshlrev_b32 v{V}, 4, v0
    v_add_u32 v{V}, {ZERO}, v{V}
    ds_write_b128 v{V}, {vr(r.AS)}""")
    for i in range(4): a(f"v_mov_b32 v{r.ONES+i}, {0 if 'z' in exp else 0x3f803f80}")
    if hop == 1: hop_here(a, w)
    for n in range(1, LA): emit(a, x_dma(n) + w_dma(n))
    if hop == 2: hop_here(a, w)
    a(st.text("pre"))
    def early(which):
        o = []
        if "q" in which:
            assert A == 2
            o += lines(f"""s_lshr_b32 s{U}, s2, 3
            s_lshl_b32 s{U}, s{U}, 2
            s_add_u32 s{U}, s{U}, s{w}
            s_mul_i32 s{U}, s{U}, 9
            v_min_u32 v{V}, 8, v{r.L}
            v_add_u32 v{V}, s{U}, v{V}
            v_lshrrev_b32 v{V+1}, 1, v{V}
            v_mul_u32_u24 v{V+1}, {3456-256}, v{V+1}
            v_lshl_add_u32 v{V}, v{V}, 7, v{V+1}
            s_and_b32 s{U}, s2, 7
            s_lshl_b32 s{U}, s{U}, 7
            buffer_load_dword v{r.DUM}, v{V}, {srd(r.SQ)}, s{U} offen""")
        if "w" in which:
            o += lines(f"""s_lshl_b32 s{U}, s2, 2
            s_add_u32 s{U}, s{U}, s{w}
            s_mul_i32 s{U}, s{U}, 648
            v_min_u32 v{V}, 5, v{r.L}
            v_lshlrev_b32 v{V}, 7, v{V}
            buffer_load_dword v{r.DUM}, v{V}, {srd(r.SO)}, s{U} offen""")
        return o
    if et[0] < 0: emit(a, early(et[1]))
    F = {}
    f = ["WAITVM phi"]
    for i in range(2):
        f += lines(f"""v_add_u32 v{V}, {256*i}, v0
        v_mul_u32_u24 v{V+1}, 7282, v{V}
        v_lshrrev_b32 v{V+1}, 16, v{V+1}
        v_add_lshl_u32 v{V+1}, v{V+1}, v{V}, 2
        v_add_u32 v{V+1}, {PHI}, v{V+1}
        v_xor_b32 v{V+2}, 0x80008000, v{WB+36+i}""")
        if i: f += lines(f"v_cmp_gt_u32 vcc, 324, v{V}\nv_mov_b32 v{V+3}, {DUMMY}\nv_mov_b32 v{r.ONE}, 1\nv_cndmask_b32 v{V+1}, v{V+3}, v{V+1}, vcc")
        f += lines(f"ds_write_b32 v{V+1}, v{WB+36+i}\nds_write_b32 v{V+1}, v{V+2} offset:1440")
    f += lines(f"v_cmp_eq_u32 vcc, 0, v{r.L}\nv_mov_b32 v{V}, {OOB}") + [f"s_cmp_lt_u32 s{r.sLd}, {NLEAD}\ns_cselect_b32 s{U}, 0, {OOB}", f"v_cndmask_b32 v{r.AT}, v{V}, 0, vcc",
          f"buffer_atomic_add v{r.ONE}, v{r.AT}, {srd(r.SDB)}, s{U} offen sc1"]
    F[1] = f
    wbt = f"s_cmp_ge_u32 s{r.sG}, 72\ns_cbranch_scc1 L_wb2\nv_mov_b32 v{V}, 0\nv_mov_b32 v{V+1}, 0\n"
    for i in range(36): wbt += f"v_dot2_f32_bf16 v{V+i%2}, v{WB+i}, v{r.ONES}, v{V+i%2}\n"
    wbt += f"""v_add_f32 v{V}, v{V}, v{V+1}
    v_add_f32_dpp v{V}, v{V}, v{V} quad_perm:[1,0,3,2] row_mask:0xf bank_mask:0xf
    v_add_f32_dpp v{V}, v{V}, v{V} quad_perm:[2,3,0,1] row_mask:0xf bank_mask:0xf
    v_add_f32_dpp v{V}, v{V}, v{V} row_half_mirror row_mask:0xf bank_mask:0xf
    v_mul_f32 v{V}, 0x3ae38e39, v{V}
    v_cvt_pk_bf16_f32 v{V}, v{V}, v{V}
    v_and_b32 v{V+1}, 6, v{r.L}
    v_lshlrev_b32 v{V+1}, 4, v{V+1}
    ds_bpermute_b32 v{V+2}, v{V+1}, v{V}
    ds_bpermute_b32 v{V+3}, v{V+1}, v{V} offset:128
    v_and_b32 v{V+1}, 1, v{r.L}
    v_cmp_eq_u32 vcc, 1, v{V+1}
    v_lshrrev_b32 v{V+1}, 3, v{r.L}
    v_mul_u32_u24 v{V+1}, {18432-128}, v{V+1}
    v_lshl_add_u32 v{V+1}, v{r.L}, 4, v{V+1}
    s_lshr_b32 s{U}, s{r.sG}, 2
    s_lshl_b32 s{U}, s{U}, 2
    s_add_u32 s{U}, s{U}, s{r.sG}
    s_lshl_b32 s{U}, s{U}, 7
    s_add_u32 s{U}, s{U}, {WS['W8'][0]}
    s_waitcnt lgkmcnt(0)
    """ + "".join(f"v_cndmask_b32 v{W8+k}, v{W8+k}, v{V+2+k//4}, vcc\n" for k in range(8)) + f"""
    buffer_store_dwordx4 {vr(W8)}, v{V+1}, {srd(r.SW)}, s{U} offen sc1 ; @cond
    buffer_store_dwordx4 {vr(W8+4)}, v{V+1}, {srd(r.SW)}, s{U} offen offset:512 sc1 ; @cond
    L_wb2:"""
    F[2] = [wbt]
    f = []
    for hh, base in enumerate((0, 16, 32)):
        f += lines(f"""v_lshrrev_b32 v{V}, 2, v{r.L}
        v_add_u32 v{V}, {base}, v{V}
        v_and_b32 v{V+2}, 1, v{r.L}
        v_mul_u32_u24 v{V+2}, 1440, v{V+2}
        v_mad_u32_u24 v{V+1}, v{V}, 40, v{V+2}
        v_bfe_u32 v{V+2}, v{r.L}, 1, 1
        v_mul_u32_u24 v{V+2}, 18, v{V+2}
        v_sub_u32 v{V}, v{V}, v{V+2}
        v_cmp_gt_u32 vcc, 18, v{V}
        v_add_u32 v{V+1}, {PHI}, v{V+1}
        v_mov_b32 v{V+2}, {ZERO}
        v_cndmask_b32 v{V+1}, v{V+2}, v{V+1}, vcc""")
        f += [f"ds_read_b64_tr_b16 {vr(r.aPH + 6*T2 + 2*hh, 2, 'a')}, v{V+1} offset:{8*T2}" for T2 in range(5)]
    F[2] = f[:17] + F[2]; F[3] = f[17:]
    M = r.sM
    F[4] = lines(f"""v_and_b32 v{V}, 3, v{r.J}
    v_cmp_eq_u32 s[{M}:{M+1}], 1, v{V}
    v_cmp_eq_u32 s[{M+2}:{M+3}], 2, v{V}
    v_cmp_eq_u32 s[{M+4}:{M+5}], 3, v{V}
    v_cmp_eq_u32 s[{M+6}:{M+7}], 1, v{r.C}
    v_lshrrev_b32 v{V}, 2, v{r.J}
    v_lshl_add_u32 v{V}, v{V}, 4, v{r.J}
    v_lshlrev_b32 v{r.BP}, 2, v{V}
    s_lshl_b32 s{U}, s{r.sTB}, 2
    s_add_u32 s{U}, s{U}, s{w}
    s_lshl_b32 s{U+1}, s{U}, 7
    s_add_u32 s{U+1}, s{U+1}, {WS['MUX'][0]}""") + [f"s_cmp_eq_u32 s{r.sHP}, 0\ns_cselect_b32 s{r.sMX}, s{U+1}, {OOB}"] + lines(f"""v_lshlrev_b32 v{V}, 2, v{r.J}
    v_lshl_add_u32 v{r.MX}, v{r.C}, 28, v{V}
    s_mul_i32 s{U}, s{U}, {2*18*1024}
    s_add_u32 s{U}, s{U}, {WS['O'][0]}
    s_lshl_b32 s{U+1}, s{r.sHP}, 10
    s_add_u32 s{r.sO0}, s{U+1}, s{U}
    s_lshr_b32 s{U+1}, s{r.sHP}, 3
    s_lshl_b32 s{U+1}, s{U+1}, 10
    s_add_u32 s{U}, s{U}, s{U+1}
    s_and_b32 s{U+1}, s{r.sHP}, 1
    s_lshl_b32 s{U+1}, s{U+1}, 9
    s_add_u32 s{U}, s{U}, s{U+1}
    s_bfe_u32 s{U+1}, s{r.sHP}, 0x20001
    s_lshl_b32 s{U+1}, s{U+1}, 7
    s_add_u32 s{U}, s{U}, s{U+1}
    s_add_u32 s{r.sO1}, s{U}, 16384
    v_lshlrev_b32 v{V+1}, 3, v{r.J}
    v_lshl_add_u32 v{V+1}, v{r.C}, 1, v{V+1}
    v_and_b32 v{V}, 1, v{r.C}
    v_lshl_add_u32 v{r.OS1}, v{V}, 30, v{V+1}
    s_lshl_b32 s{U}, s{w}, 5
    v_add_u32 v{V}, s{U}, v{r.J}
    v_mul_u32_u24 v{r.AV}, 96, v{V}
    v_add_u32 v{V+1}, 3, v{r.C}
    v_and_b32 v{V+1}, 3, v{V+1}
    v_lshl_add_u32 v{r.AM}, v{V+1}, 3, v{r.AV}
    v_lshl_add_u32 v{r.AV}, v{r.C}, 3, v{r.AV}
    v_mul_u32_u24 v{r.AF}, 160, v{V}
    v_cmp_eq_u32 vcc, 2, v{r.C}
    v_mad_u32_u24 v{r.AF}, v{r.C}, 40, v{r.AF}
    v_mov_b32 v{V+1}, 0x3f80
    v_cndmask_b32 v{r.C1}, 0, v{V+1}, vcc""")
    F[5] = lines(f"""v_lshrrev_b32 v{V}, 2, v{r.L}
    v_and_b32 v{V+1}, 3, v{r.L}
    v_mul_u32_u24 v{r.AV3}, 96, v{V}
    v_lshl_add_u32 v{r.AV3}, v{V+1}, 3, v{r.AV3}
    s_min_u32 s{U}, s{w}, 2
    s_lshl_b32 s{U}, s{U}, 5
    v_add_u32 v{r.AV3}, s{U}, v{r.AV3}
    s_and_b32 s{U+1}, s{w}, 1
    s_lshl_b32 s{U}, s{U+1}, 3
    s_and_b32 s{U+2}, s{r.sHP}, 1
    s_sub_u32 s{U}, s{U}, s{U+2}
    s_lshl_b32 s{U}, s{U}, 3
    v_add_u32 v{r.AF3}, s{U}, v{r.TW}
    v_add_u32 v{r.TQ}, {XR}, v{r.TW}
    s_mul_i32 s{U+2}, s{U+1}, 1280
    v_mul_u32_u24 v{V}, 160, v{r.C}
    v_add_u32 v{V}, s{U+2}, v{V}
    s_lshl_b32 s{U+2}, s{U+1}, 1
    v_add_u32 v{V+1}, s{U+2}, v{r.J}
    v_subrev_u32 v{V+2}, s{U+2}, v{r.J}
    s_lshl_b32 s{U+3}, s{U+1}, 4
    s_xor_b32 s{U+3}, s{U+3}, 16
    v_cmp_gt_u32 vcc, 2, v{V+2}
    v_add_u32 v{V+2}, s{U+3}, v{V+2}
    v_mov_b32 v{V+3}, {OOB >> 3}
    v_cndmask_b32 v{V+2}, v{V+3}, v{V+2}, vcc
    v_subrev_u32 v{V+3}, 4, v{r.J}
    v_cmp_gt_u32 vcc, 2, v{V+3}
    v_add_u32 v{V+3}, 18, v{V+3}
    s_lshl_b32 s{U+2}, s{r.sHP}, 16
    v_cndmask_b32 v{V+2}, v{V+2}, v{V+3}, vcc""") + [f"s_cmp_lt_u32 s{w}, 2\ns_cselect_b64 vcc, -1, 0"] + lines(f"""v_cndmask_b32 v{V+1}, v{V+2}, v{V+1}, vcc
    v_lshl_add_u32 v{r.PS1}, v{V+1}, 3, v{V}
    v_lshrrev_b32 v{V+1}, 1, v{r.C}
    v_cmp_le_u32 vcc, s{U+1}, v{V+1}
    v_mov_b32 v{V+3}, {OOB}
    s_add_u32 s{r.sKVP}, s{U+2}, {WS['KVP'][0]}
    v_cndmask_b32 v{r.PS0}, v{V+3}, v{r.PS1}, vcc
    v_cmp_ge_u32 vcc, s{U+1}, v{V+1}
    s_lshl_b32 s{U+2}, s{r.sTB}, 12
    s_add_u32 s{r.sPS}, s{U+2}, s{r.sKVP}
    v_cndmask_b32 v{r.PS2}, v{V+3}, v{r.PS1}, vcc
    s_lshl_b32 s{U}, s{r.sHP}, 7
    s_add_u32 s{U}, s{U}, {WS['FLAG'][0] + F_E1*128}""") + [f"s_cmp_eq_u32 s{w}, 0\ns_cselect_b32 s{r.sF1}, s{U}, {OOB}",
          f"s_cmp_ge_u32 s{r.sG}, 72\ns_cbranch_scc1 L_wb3\nbuffer_atomic_add v{r.ONE}, v{r.AT}, {srd(r.SDB)}, 0 offen offset:128 sc1 ; @cond\nL_wb3:"]
    f = lines(f"v_and_b32 v{V}, 1, v{r.J}\nv_lshlrev_b32 v{V}, 4, v{V}\nv_mov_b32 v{V+1}, 0x3f80\nv_lshlrev_b32 v{V}, v{V}, v{V+1}\nv_bfe_u32 v{V+1}, v{r.J}, 1, 2")
    for e in range(4):
        f += lines(f"v_cmp_eq_u32 vcc, {e}, v{V+1}\nv_cndmask_b32 v{V+2}, 0, v{V}, vcc\nv_accvgpr_write_b32 a{r.aSEL+e}, v{V+2}")
    f += lines(f"""v_lshlrev_b32 v{r.PL}, 12, v{r.C}
    v_lshl_add_u32 v{r.PL}, v{r.J}, 4, v{r.PL}
    s_lshl_b32 s{U}, s{w}, 8
    s_add_u32 s{r.sKVP}, s{r.sKVP}, s{U}
    v_and_b32 v{V}, 1, v{r.C}
    v_lshlrev_b32 v{V}, 3, v{V}
    v_lshl_add_u32 v{V}, v{r.J}, 4, v{V}
    s_add_u32 s{U}, s{U}, {KVI}
    v_add_u32 v{r.KW}, s{U}, v{V}
    v_mul_u32_u24 v{V+1}, 800, v{r.C}
    v_add_u32 v{V+1}, {KVI}, v{V+1}
    v_and_b32 v{V+2}, 7, v{r.J}
    v_lshl_add_u32 v{V+2}, v{V+2}, 3, v{V+1}
    v_and_b32 v{V+3}, 3, v{r.J}
    v_lshl_add_u32 v{V+3}, v{V+3}, 3, v{V+1}
    v_lshrrev_b32 v{V+1}, 3, v{r.J}
    v_lshrrev_b32 v{V}, 1, v{r.C}
    v_cmp_eq_u32 vcc, v{V+1}, v{V}
    v_mov_b32 v{V+1}, {ZERO}
    v_mov_b32 v{r.FQ+9}, 0
    v_cndmask_b32 v{r.K4a}, v{V+1}, v{V+2}, vcc
    v_cndmask_b32 v{r.K4b}, v{V+1}, v{V+3}, vcc
    v_mov_b32 v{r.FQ+19}, 0""")
    F[6] = f
    F[7] = lines(f"""s_lshr_b32 s{U}, s2, 3
    s_lshl_b32 s{U}, s{U}, 2
    s_add_u32 s{U}, s{U}, s{w}
    s_and_b32 s{U+1}, s2, 7
    s_mul_i32 s{U+3}, s{U+1}, 1152
    s_mul_i32 s{U+2}, s{U}, 18
    v_min_u32 v{V}, 17, v{r.L}
    v_add_u32 v{V}, s{U+2}, v{V}
    v_lshrrev_b32 v{V+1}, 2, v{V}
    v_mul_u32_u24 v{V+1}, {9216-1024}, v{V+1}
    v_lshl_add_u32 v{V+1}, v{V}, 8, v{V+1}
    v_add_u32 v{r.TG}, s{U+3}, v{V+1}
    v_add_u32 v{r.TG+1}, 128, v{r.TG}
    s_mul_i32 s{U+2}, s{U}, 36
    v_min_u32 v{V}, 35, v{r.L}
    v_add_u32 v{V}, s{U+2}, v{V}
    v_lshrrev_b32 v{V+1}, 3, v{V}
    v_add_u32 v{V}, v{V}, v{V+1}
    s_mul_i32 s{U+3}, s{U+1}, {576*1152}
    v_lshlrev_b32 v{r.WB+36}, 7, v{V}
    v_lshl_add_u32 v{r.TG+2}, v{V}, 7, s{U+3}""")
    RA, RB, RD = r.WB + 26, r.WB + 27, r.WB + 28
    F[8] = lines(f"""s_lshr_b32 s{U}, s2, 3
    s_lshl_b32 s{U}, s{U}, 2
    s_add_u32 s{U}, s{U}, s{w}
    s_min_u32 s{U}, s{U}, 107
    s_mul_i32 s{U+1}, s{U}, 57
    s_lshr_b32 s{U+1}, s{U+1}, 11
    s_mul_i32 s{U+2}, s{U+1}, 36
    s_sub_u32 s{U}, s{U}, s{U+2}
    s_and_b32 s{U+2}, s2, 7
    s_mul_i32 s{U+3}, s{U+2}, {4*55296}
    s_mul_i32 s{r.sRS}, s{U+1}, 18432
    s_add_u32 s{r.sRS}, s{r.sRS}, s{U+3}
    s_lshl_b32 s{U+3}, s{U}, 9
    s_add_u32 s{r.sRS}, s{r.sRS}, s{U+3}
    s_add_u32 s{r.sRS}, s{r.sRS}, {WS['RP'][0]}
    v_mul_u32_u24 v{RB}, 55296, v{r.C}
    v_lshl_add_u32 v{RB}, v{r.J}, 4, v{RB}
    s_lshl_b32 s{U}, s{U}, 4
    v_lshrrev_b32 v{RA}, 1, v{r.J}
    v_add_u32 v{RA}, s{U}, v{RA}""") + [f"s_cmp_eq_u32 s{U+1}, 0\ns_cselect_b64 s[{r.sRP}:{r.sRP+1}], s[4:5], s[6:7]",
          f"s_cmp_eq_u32 s{U+1}, 2\ns_cselect_b64 s[{r.sRP}:{r.sRP+1}], s[8:9], s[{r.sRP}:{r.sRP+1}]\ns_cselect_b32 s{U}, 1, 8\ns_cselect_b32 s{U+3}, 576, 1"] + lines(f"""s_mul_i32 s{U+2}, s{U+2}, s{U+3}
    v_mul_u32_u24 v{RA}, s{U}, v{RA}
    v_add_u32 v{RA}, s{U+2}, v{RA}
    v_mul_u32_u24 v{RA}, 1152, v{RA}
    v_lshl_add_u32 v{RA}, v{r.C}, 5, v{RA}
    v_and_b32 v{RD}, 1, v{r.J}
    v_lshl_add_u32 v{RA}, v{RD}, 4, v{RA}
    s_mul_i32 s{U}, s{U}, {8*1152}
    global_load_dwordx4 {vr(RD)}, v{RA}, s[{r.sRP}:{r.sRP+1}] offset:1024 ; @rp
    v_add_u32 v{RA}, s{U}, v{RA}
    global_load_dwordx4 {vr(RD+4)}, v{RA}, s[{r.sRP}:{r.sRP+1}] offset:1024 ; @rp""")
    rpst = ["WAITVM rp"] + [f"buffer_store_dwordx4 {vr(RD+4*k)}, v{RB}, {srd(r.SW)}, s{r.sRS} offen offset:{256*k} sc1" for k in range(2)]
    TB = (0, 32, 80, 120)
    def wf(p, T_): return r.WF + 20 * (p % 2) + 4 * T_
    def ak(T_, t): return r.AK + 12 * T_ + 4 * t
    def reads_kv(p):
        n, ks = p // 2, p % 2
        if 'r' in exp: return []
        o = [f"ds_read_b128 {xa(r, p, t)}, v{r.XRD+ks} offset:{4096*(n%4) + 2048*t}" for t in range(2)]
        for T_ in (0, 1, 4, 2, 3):
            for h in range(2):
                off = WKV + 5120 * p + 2560 * h; pg = int(off >= 51200); off -= 51200 * pg
                ad = r.TW + 2 * pg + (T_ == 4)
                o.append(f"ds_read_b64_tr_b16 {vr(wf(p,T_)+2*h,2)}, v{ad} offset:{off + (TB[T_] if T_ < 4 else 0)}")
        return o
    def mf_kv(p):
        o = []
        if 'm' in exp and p < 17: return ["s_nop 0"] * 19
        for g in (1, 0):
            for t in range(2):
                if 0 < p < 17 and "sg"[g] in exp: continue
                acc = vr(r.AS + 8 * g + 4 * t); x = xa(r, p, t)
                o.append(f"{MF} {acc}, {x if g else vr(r.ONES)}, {x}, {'0' if p == 0 else acc}")
        for T_ in (0, 1, 4, 2, 3):
            for t in (2, 0, 1):
                if 0 < p < 17 and t == 2 and 'c' in exp: continue
                acc = vr(ak(T_, t)); b = xa(r, p, t) if t < 2 else vr(r.ONES)
                o.append(f"{MF} {acc}, {vr(wf(p,T_))}, {b}, {'0' if p == 0 else acc}")
        return o
    QA = (20, 21, 22, 23, 78)
    def q_dma(i): return [f"s_add_u32 m0, s{r.sXm}, {QOFF[i]}"] + [x.replace(f", s{T} offen", f", s{QA[i]} offen") for x in w3(f"wq{i}")]
    qsw = [f"s_movk_i32 s{T}, {4*3456-1152}"] + [f"v_mad_u32_u24 v{r.WD+p}, v{r.U+p}, s{T}, v{r.WD+p}" for p in range(3)]
    PC = Pacer(); PC.due = pdelay
    PC.add(touches(r, 'c8'), 60)
    PC.add(qsw + [x for i in range(5) for x in q_dma(i)], lambda x: qw // 2 if "exec" in x else qw)
    clr2 = lines(f"""s_mul_i32 s{U}, s2, 640
    s_add_u32 s{U}, s{U}, {WS['FLAG'][0] + F_E3*128}
    v_add_u32 v{V+1}, 24, v0
    v_lshrrev_b32 v{V+1}, 6, v{V+1}
    v_lshl_add_u32 v{V}, v{V+1}, 28, v{r.OS0}
    v_mov_b32 v{r.FQ}, 0
    v_mov_b32 v{r.FQ+1}, 0
    v_mov_b32 v{r.FQ+2}, 0
    v_mov_b32 v{r.FQ+3}, 0
    buffer_store_dwordx4 {vr(r.FQ)}, v{V}, {srd(r.SW)}, s{U} offen sc1""")
    F[6], F[7], F[8] = F[7], F[8], F[6]
    qa = lines(f"s_and_b32 s{U}, s{w}, 1\ns_mul_i32 s{U}, s{U}, {32*3456}\ns_mul_i32 s{U+1}, s{r.sHP}, 72\ns_and_b32 s{U+1}, s{U+1}, -16\ns_add_u32 s{U}, s{U}, s{U+1}\ns_lshr_b32 s{U+1}, s{w}, 1\ns_add_u32 s{U+1}, s{U+1}, s{r.sRot}")
    for k in range(5):
        qa += [f"s_add_u32 s{U+2}, s{U+1}, {2*k}" if k < 4 else f"s_add_u32 s{U+2}, s{r.sRot}, 8", f"s_sub_u32 s{U+3}, s{U+2}, 9\ns_cselect_b32 s{U+2}, s{U+2}, s{U+3}",
               f"s_mul_i32 s{U+2}, s{U+2}, {64*3456}", f"s_add_u32 s{QA[k]}, s{U+2}, s{U}"]
    F[6] = [poll_issue(r.FL, None, r.SDB, ("0", 0), "fclr")] + F[6] + qa
    F[clrat] = F[clrat] + clr2
    if rp8: F[7], F[8] = F[8], F[7]
    assert LA == 2 or not touches(r, 'c8') or pdelay >= 620
    for n in range(9):
        if n + LA < 9:
            xd, wd_ = x_dma(n + LA, 2), w_dma(n + LA, True)
            prep = [wd_[0], f"s_add_u32 s{T}, s{T}, s{r.sWb}"]
            d1 = (prep if n == 0 else []) + [wd_[2], xd[0], xd[1], xd[2], lines(xd[3])[1], wd_[3]]
            d2 = [xd[4], wd_[4], f"s_add_u32 s{r.sC}, s{r.sC}, 1", wd_[5]] + prep + [xd[5]]
            g1, g2 = gaps
            if 'd' in exp: d1, d2 = [f"buffer_load_dword v{r.DUM}, off, {srd(r.SX)}, 0 ; @c{n+LA}"], []
            d1, d2 = flat(d1), flat(d2)
            pk1 = lambda m, *st_: pack(m, st_[0], (d1, g1), *st_[1:])
            pk2 = lambda m, *st_: pack(m, st_[0], (d2, g2), *st_[1:])
        else: pk1 = pk2 = PC.mfma
        f = F.get(n, [])
        f1, f2 = f[:len(f)//2], f[len(f)//2:]
        if n == et[0]: f2 = f2 + early(et[1])
        a("s_waitcnt lgkmcnt(0)")
        if n == 8:
            emit(a, pk1(mf_kv(15), [], f1))
            a("WAITVM c8\ns_barrier"); a(st.text("c8"))
            emit(a, reads_kv(16)); PC.t += 200
        else:
            a(f"WAITVM c{n}\ns_barrier")
            if n == 0: a(st.text("c0"))
            if n == 4: a(st.text("c4"))
            emit(a, pk1(mf_kv(2*n-1) if n else [], reads_kv(2*n), f1))
            if n and pack.left: print("   left", n, pack.left)
        a("s_waitcnt lgkmcnt(0)")
        emit(a, pk2(mf_kv(2*n), reads_kv(2*n+1), f2))
        if pack.left: print("   left", n, pack.left)
    a("s_waitcnt lgkmcnt(0)")
    assert sum("@wq4" in x for g, _ in PC.q for x in g) == 3
    s1 = []
    for t in range(2):
        g = r.AS + 8 + 4 * t
        s1 += [f"v_cndmask_b32 v{g}, v{g}, v{g+e}, s[{M+2*e-2}:{M+2*e-1}]" for e in range(1, 4)] + [f"ds_bpermute_b32 v{g}, v{r.BP}, v{g}"]
    s1 += [f"v_mul_f32 v{r.AS+4*t}, 0x3ae38e39, v{r.AS+4*t}" for t in range(2)]
    s1 += [f"v_mov_b32 v{V+t}, 0x3727c5ac" for t in range(2)]
    s1 += [f"v_fma_f32 v{V+t}, -v{r.AS+4*t}, v{r.AS+4*t}, v{V+t}" for t in range(2)]
    s1 += ["s_waitcnt lgkmcnt(0)"]
    for op in (lambda t: f"v_fmac_f32 v{V+t}, 0x3ae38e39, v{r.AS+8+4*t}", lambda t: f"v_max_f32 v{V+t}, 0x3727c5ac, v{V+t}",
               lambda t: f"v_rsq_f32 v{r.RS+t}, v{V+t}", lambda t: f"v_mul_f32 v{r.NM+t}, -v{r.AS+4*t}, v{r.RS+t}"):
        s1 += [op(t) for t in range(2)]
    m = mf_kv(17)
    emit(a, PC.mfma(m[:5], []) + pack(m[5:], s1)); PC.t += 16 * 14
    late = [f"buffer_store_dword v{r.AS+4*t}, v{r.MX}, {srd(r.SW)}, s{r.sMX} offen offset:{64*t} sc1" for t in range(2)]
    a(st.text("kvg"))
    def pk(t, T_): return r.PK + 10 * t + 2 * T_
    def normalize(tiles, accf, t, packed=True):
        o = []
        for T_, dst in tiles:
            g, cs = accf(T_, t), accf(T_, 2)
            if not packed:
                for e in range(4): o += [f"v_mul_f32 v{g+e}, v{g+e}, v{r.RS+t}", f"v_fmac_f32 v{g+e}, v{cs+e}, v{r.NM+t}"]
                for e in (0, 2): o.append(f"v_cvt_pk_bf16_f32 v{pk(t,dst)+e//2}, v{g+e}, v{g+e+1}")
                continue
            for e in (0, 2): o.append(f"v_pk_mul_f32 {vr(g+e,2)}, {vr(g+e,2)}, {vr(r.RS,2)} op_sel:[0,{t}] op_sel_hi:[1,{t}]")
            for e in (0, 2): o.append(f"v_pk_fma_f32 {vr(g+e,2)}, {vr(cs+e,2)}, {vr(r.NM,2)}, {vr(g+e,2)} op_sel:[0,{t},0] op_sel_hi:[1,{t},1]")
            for e in (0, 2): o.append(f"v_cvt_pk_bf16_f32 v{pk(t,dst)+e//2}, v{g+e}, v{g+e+1}")
        return o
    P = r.WF
    def stage2():
        o = [f"{MF16} {vr(P+20*t+4*T2)}, {vr(r.aPH+6*T2+4,2,'a')}, {vr(pk(t,2),2)}, 0" for t in range(2) for T2 in range(5)]
        return o + [f"{MF} {vr(P+20*t+4*T2)}, {vr(r.aPH+6*T2,4,'a')}, {vr(pk(t,0))}, {vr(P+20*t+4*T2)}" for t in range(2) for T2 in range(5)]
    def softmax(t, wr=None):
        p = P + 20 * t; m = (V, r.U)[t]; f = r.FQ + 10 * t
        o = lines(f"v_max3_f32 v{m}, v{p}, v{p+1}, v{p+2}\nv_max3_f32 v{m+1}, v{p+3}, v{p+4}, v{p+5}")
        for i in range(3): o += lines(f"v_max3_f32 v{m}, v{m}, v{p+6+4*i}, v{p+7+4*i}\nv_max3_f32 v{m+1}, v{m+1}, v{p+8+4*i}, v{p+9+4*i}")
        o += lines(f"v_max_f32 v{m}, v{m}, v{m+1}\nv_mov_b32 v{m+1}, 0x3fb8aa3b\nv_mul_f32 v{m}, 0xbfb8aa3b, v{m}")
        for i in range(9): o.append(f"v_pk_fma_f32 {vr(p+2*i,2)}, {vr(p+2*i,2)}, {vr(m,2)}, {vr(m,2)} op_sel:[0,1,0] op_sel_hi:[1,1,0]")
        o += [f"v_exp_f32 v{p+i}, v{p+i}" for i in range(18)]
        o += lines(f"v_pk_add_f32 {vr(m,2)}, {vr(p,2)}, {vr(p+2,2)}\nv_pk_add_f32 {vr(m+2,2)}, {vr(p+4,2)}, {vr(p+6,2)}")
        for i in range(4, 9): o.append(f"v_pk_add_f32 {vr(m+2*(i%2),2)}, {vr(m+2*(i%2),2)}, {vr(p+2*i,2)}")
        o += lines(f"v_pk_add_f32 {vr(m,2)}, {vr(m,2)}, {vr(m+2,2)}\nv_add_f32 v{m}, v{m}, v{m+1}\nv_rcp_f32 v{m}, v{m}")
        for i in range(9):
            o += [f"v_pk_mul_f32 {vr(p+2*i,2)}, {vr(p+2*i,2)}, {vr(m,2)} op_sel_hi:[1,0]", f"v_cvt_pk_bf16_f32 v{f+i}, v{p+2*i}, v{p+2*i+1}"]
            if wr and (i % 2 or i == 8): o.append(wr[i // 2])
        return o
    KT = [(0, 0), (1, 1), (4, 2)]; VT = [(2, 3), (3, 4)]
    def vimg(t):
        return lines(f"""ds_write_b64 v{r.AV}, {vr(pk(t,3),2)} offset:{VI + 16*96*t}
        ds_write_b64 v{r.AV}, {vr(pk(t,4),2)} offset:{VI + 16*96*t + 32}
        v_cndmask_b32 v{r.AS+8+2*t}, v{r.C1}, v{pk(t,2)}, s[{M+6}:{M+7}]
        v_cndmask_b32 v{r.AS+9+2*t}, 0, v{pk(t,2)+1}, s[{M+6}:{M+7}]
        ds_write_b64 v{r.AM}, {vr(r.AS+8+2*t,2)} offset:{VI + 16*96*t + 64}""")
    fw = lambda t: [f"ds_write_b64 v{r.AF}, {vr(r.FQ+10*t+2*i,2)} offset:{FK + 16*160*t + 8*i}" for i in range(5)]
    emit(a, PC.valu(normalize(KT, ak, 0) + normalize(KT, ak, 1)))
    emit(a, PC.mfma(stage2(), normalize(VT, ak, 0, False) + normalize(VT, ak, 1, False)))
    a(st.text("ks2"))
    emit(a, PC.valu(spread(softmax(0), vimg(0) + vimg(1), touches(r, 'kvg'))))
    a(st.text("ksm0"))
    sm = softmax(1, fw(1))
    emit(a, PC.valu(spread(sm[:48], fw(0), [] if rplate else ["", ""] + rpst) + sm[48:]) + PC.flush("@wq1"))
    c1, c2 = poll_check(r.FL, None, r.SDB, r.sU + 2, ("0", 0), NLEAD, "fclr", slow)
    a(st.text("smk")); a("WAITVM wq1\ns_waitcnt lgkmcnt(0)\ns_barrier")
    F3 = r.WF; A3 = r.AK
    for ks in range(4):
        for h in range(2):
            a(f"ds_read_b64_tr_b16 {vr(F3+16*ks+2*h,2)}, v{r.AV3} offset:{VI + (32*ks+16*h)*96} ; @s3{ks}")
        for i in range(3):
            for h in range(2):
                a(f"ds_read_b64_tr_b16 {vr(F3+16*ks+4+4*i+2*h,2)}, v{r.AF3} offset:{FK + (32*ks+16*h)*160 + 32*i} ; @s3{ks}")
        if ks:
            a(f"WAITLG s3{ks-1}")
            for i in range(3):
                acc = vr(A3 + 4 * i); k = ks - 1
                a(f"{MF} {acc}, {vr(F3+16*k+4+4*i)}, {vr(F3+16*k)}, {'0' if k == 0 else acc}")
    a("WAITLG s33")
    for i in range(3): a(f"{MF} {vr(A3+4*i)}, {vr(F3+52+4*i)}, {vr(F3+48)}, {vr(A3+4*i)}")
    return dict(normalize=normalize, stage2=stage2, softmax=softmax, pk=pk, PC=PC, clrchk=[c1, c2], first=[x + (' ; @kvp' if 'buffer' in x else '') for x in rpst] if rplate else [], late=late)

def phase_a2(a, r, st, slow, h, wo_ops=(), sigat=3, pollat=6, chkat=8, wow=70, ppw=50):
    T, V = r.sT, r.T; w = r.sWv
    def qf(n, ks, T_): return r.WF + 24 * (n % 2) + 12 * ks + 4 * T_
    def aq(T_, t): return r.AK + 12 * (T_ + 1) + 4 * t
    def reads_q(n):
        o = []
        for ks in range(2):
            p = 2 * n + ks
            base = 16384 * (p % 4) + QOFF[p // 4]
            for T_ in range(3):
                for hh in range(2):
                    o.append(f"ds_read_b64_tr_b16 {vr(qf(n,ks,T_)+2*hh,2)}, v{r.TQ if T_ < 2 else r.TQM} offset:{base + 80*hh + (32*T_ if T_ < 2 else 0)} ; @q{n}")
        return o
    def mf_q(n):
        o = []
        for t in (2, 0, 1):
            for T_ in range(3):
                for ks in range(2):
                    acc = vr(aq(T_, t)); b = xa(r, 2*n+ks, t) if t < 2 else vr(r.ONES)
                    o.append(f"{MF} {acc}, {vr(qf(n,ks,T_))}, {b}, {'0' if n+ks == 0 else acc}")
        return o
    rq = reads_q(0)
    emit(a, rq[:8])
    for i in range(3):
        g = r.AK + 4 * i
        a(f"v_cvt_pk_bf16_f32 v{g}, v{g}, v{g+1}\nv_cvt_pk_bf16_f32 v{g+1}, v{g+2}, v{g+3}")
        a(f"buffer_store_dwordx2 {vr(g,2)}, v{r.PS0+i}, {srd(r.SW)}, s{r.sPS} offen offset:{640*i} sc1 ; @kvp")
    emit(a, touches(r, 'kvp'))
    a(st.text("kvp"))
    emit(a, rq[8:])
    a("s_barrier")
    wo_ops = list(wo_ops); has_b = bool(wo_ops)
    assert sigat <= 3
    f1 = (f"s{r.sF1}", 0)
    def pp_loads():
        o = [f"s_mov_b32 s{T}, s{r.sKVP}", f"v_lshrrev_b32 v{r.XRD}, 3, v{r.J}", f"v_lshl_add_u32 v{r.XRD}, v{r.XRD}, 28, v{r.PL}"]
        for m in range(4):
            for i in range(4):
                pre = f"s_cmp_eq_u32 s{w}, 0\ns_cselect_b32 s{T+1}, s{T}, {OOB}\n" if i == 3 else ""
                o.append(pre + f"buffer_load_dwordx4 {vr(r.aP+16*i+4*m,4,'a')}, v{r.PL if i < 3 else r.XRD}, {srd(r.SW)}, s{T + (i == 3)} offen offset:{1024*i} sc1 ; @pp{m}")
            if m < 3: o.append(f"s_add_u32 s{T}, s{T}, 16384")
        return o
    def check():
        a(f"s_cmp_eq_u32 s{w}, 0\ns_cselect_b32 s{T+1}, 16, 0")
        emit(a, poll_check(r.U, r.AT, r.SW, T + 2, f1, f"s{T+1}", "f1", slow))
        a("WAITVM wq4\ns_barrier"); a(st.text("e1"))
    PC = h["PC"]; PC.t += 600
    k = max(n for n, x in enumerate(wo_ops) if "buffer_" in x) + 1 if has_b else 0
    rest, PC.q = PC.q, []
    PC.add(h["first"], 40); PC.q += rest
    PC.add(wo_ops[:k], wow); PC.add(h["late"], 20); post = flat(wo_ops[k:])
    def go():
        check(); rest, PC.q = PC.q, []; PC.due = PC.t
        if pack.verbose: print("   groups left at check:", len(rest))
        PC.add(pp_loads(), ppw); PC.q += rest; PC.add(touches(r, 'pp'), 0)
    for n in range(9):
        a(f"WAITLG q{n}"); a(st.text(f"q{n}"))
        rd = reads_q(n + 1) if n < 8 else []
        if n == sigat:
            emit(a, PC.flush("@wq3") + h["clrchk"])
            a("WAITVM kvp WAITVM wq3\ns_barrier")
            a(f"buffer_atomic_add v{r.ONE}, v{r.AT}, {srd(r.SW)}, s{r.sF1} offen sc1")
        if n == pollat: a(poll_issue(r.U, r.AT, r.SW, f1, "f1"))
        if n == chkat: go()
        elif n == 7 < chkat: a("WAITVM wq4\ns_barrier")
        emit(a, PC.mfma(mf_q(n), rd))
        if pack.left: print("   qleft", n, pack.left)
    QT = [(0, 0), (1, 1), (2, 2)]
    a(st.text("qg"))
    if chkat == 9: go()
    emit(a, PC.valu(h["normalize"](QT, aq, 0) + h["normalize"](QT, aq, 1)))
    if PC.q and pack.verbose: print("   pacer groups left at stage2:", len(PC.q))
    emit(a, PC.mfma(h["stage2"](), []))
    a(st.text("qs2"))
    emit(a, PC.valu(h["softmax"](0)) + PC.flush() + touches(r, 'sm1') + h["softmax"](1) + touches(r, 'smq'))
    a(st.text("smq"))
    A4 = r.AK
    for m in range(4):
        a(f"WAITVM pp{m}")
        mf = [f"{MF} {vr(A4+4*i)}, {vr(r.aSEL,4,'a')}, {vr(r.aP+16*i+4*m,4,'a')}, {'0' if m == 0 else vr(A4+4*i)}" for i in range(4)]
        k = 8 if m < 3 else len(post)
        emit(a, pack(mf, post[:k])); post = post[k:]
    for i in range(4):
        g = A4 + 4 * i
        a(f"v_cvt_pk_bf16_f32 v{g}, v{g}, v{g+1}\nv_cvt_pk_bf16_f32 v{g+1}, v{g+2}, v{g+3}\nds_write_b64 v{r.KW}, {vr(g,2)} offset:{1024*i}")
    a(("WAITVM wo\n" if has_b else "") + "s_waitcnt lgkmcnt(0)\ns_barrier")
    a(st.text("kvi"))
    K4 = r.WF; O4 = r.WF + 32
    for T_ in (2, 0, 1):
        for gg in range(5):
            a(f"ds_read_b64 {vr(K4+10*T_+2*gg,2)}, v{r.K4a if T_ < 2 else r.K4b} offset:{160*gg + 64*T_} ; @k4{T_}")
    accf = lambda t, T_: vr(O4 + 12 * t + 4 * T_)
    for T_ in (2, 0, 1):
        a(f"WAITLG k4{T_}")
        for t in range(2): a(f"{MF16} {accf(t,T_)}, {vr(K4+10*T_+8,2)}, {vr(r.FQ+10*t+8,2)}, 0")
    mf = []
    for T_ in (2, 0, 1):
        for t in range(2):
            acc = accf(t, T_); f = r.FQ + 10 * t; k = K4 + 10 * T_
            mf += [f"{MF} {acc}, {vr(k)}, {vr(f)}, {acc}", f"{MF} {acc}, {vr(k+4)}, {vr(f+4)}, {acc}"]
    emit(a, pack(mf, b_reads(r)[:r.npre_w] if has_b else []))
    for t in range(2): a(f"v_add_f32 v{O4+12*t+10}, 0x358637bd, v{O4+12*t+10}")
    for t in range(2): a(f"v_rcp_f32 v{O4+12*t+10}, v{O4+12*t+10}")
    pm = lambda o, i: f"v_pk_mul_f32 {vr(o+2*i,2)}, {vr(o+2*i,2)}, {vr(o+10,2)} op_sel_hi:[1,0]"
    for t in range(2):
        o = O4 + 12 * t
        a(pm(o, 4)); a(pm(o, 0)); a(pm(o, 1))
        a(f"v_cvt_pk_bf16_f32 v{o+8}, v{o+8}, v{o+9}\nv_cvt_pk_bf16_f32 v{o}, v{o}, v{o+1}\nv_cvt_pk_bf16_f32 v{o+1}, v{o+2}, v{o+3}")
        a(f"buffer_store_dword v{o+8}, v{r.OS1}, {srd(r.SW)}, s{r.sO1} offen sc1 ; @ost")
        if t == 0: a(f"s_add_u32 s{r.sO1}, s{r.sO1}, {18*1024}")
    for t in range(2):
        o = O4 + 12 * t
        a(pm(o, 2)); a(pm(o, 3))
        a(f"v_cvt_pk_bf16_f32 v{o+2}, v{o+4}, v{o+5}\nv_cvt_pk_bf16_f32 v{o+3}, v{o+6}, v{o+7}")
        a(f"buffer_store_dwordx4 {vr(o)}, v{r.OS0}, {srd(r.SW)}, s{r.sO0} offen sc1 ; @ost")
        if t == 0: a(f"s_add_u32 s{r.sO0}, s{r.sO0}, {18*1024}")
    emit(a, touches(r, 'o'))
    a(st.text("o"))

def b_dma_ops(r, slow):
    T = r.sBT; w = r.sWv
    D0, D1 = r.WD, r.WD + 1; V = r.WB + 26
    o = []
    o.append(poll_issue(V + 5, None, r.SDB, ("0", 128), "fwb"))
    o.append(f"s_lshr_b32 s{r.sB}, s2, 5\ns_and_b32 s{T}, s2, 7\ns_lshl_b32 s{T}, s{T}, 4")
    o.append(f"s_bfe_u32 s{T+1}, s2, 0x20003\ns_lshl_b32 s{T+1}, s{T+1}, 2\ns_add_u32 s{T}, s{T}, s{T+1}\ns_add_u32 s{r.sTT}, s{T}, s{w}")
    o.append(f"v_bfe_u32 v{V}, v{r.L}, 1, 2\nv_xor_b32 v{V}, v{V}, v{r.C}")
    o.append(f"v_and_b32 v{V+1}, 1, v{r.L}\nv_lshlrev_b32 v{V+1}, 4, v{V+1}")
    o.append(f"v_lshl_add_u32 v{V}, v{V}, 5, v{V+1}\nv_lshrrev_b32 v{V+1}, 3, v{r.L}")
    o.append(f"v_mul_u32_u24 v{V+2}, 1152, v{V+1}\nv_add_u32 v{D0}, v{V+2}, v{V}")
    o.append(f"s_and_b32 s{T}, s{w}, 1\ns_lshr_b32 s{T+1}, s{w}, 1\ns_mul_i32 s{T+2}, s{T}, 18")
    o.append(f"s_lshl_b32 s{T+3}, s{T+1}, 3\ns_add_u32 s{T+2}, s{T+2}, s{T+3}\ns_mul_i32 s73, s{T+2}, 1152")
    o.append(f"s_mul_i32 s{T}, s{T}, 144\ns_mul_i32 s{T+1}, s{T+1}, 36\ns_add_u32 s{T}, s{T}, s{T+1}")
    o.append(f"s_add_u32 s{T}, s{T}, 16\ns_mul_i32 s74, s{T}, 1152\ns_lshl_b32 s{T}, s{r.sB}, 7")
    o.append(f"s_add_u32 s{T+2}, s73, s{T}\ns_add_u32 s{T+3}, s74, s{T}\ns_mul_i32 s75, s{w}, 18432")
    tail = lambda src, d: [f"v_lshrrev_b32 v{d}, 2, v{src}\nv_mul_u32_u24 v{d}, 72, v{d}", f"v_bfe_u32 v{V+3}, v{src}, 1, 1\nv_mul_u32_u24 v{V+3}, 18, v{V+3}",
                           f"v_add_u32 v{d}, v{d}, v{V+3}\nv_and_b32 v{V+3}, 1, v{src}", f"v_add_u32 v{d}, v{d}, v{V+3}"]
    for s_ in range(18):
        if s_ % 4 == 0: o.append(f"s_add_u32 m0, s75, {WO + 1024*s_}")
        if s_ == 16:
            o += tail(V + 1, D1); o.append(f"v_mul_u32_u24 v{D1}, 1152, v{D1}\nv_add_u32 v{D1}, v{D1}, v{V}")
        imm = 1024 * (s_ % 4)
        c = (36 * s_ if s_ < 16 else 288 * (s_ - 16)) * 1152 - imm
        o.append(f"s_add_u32 s{T}, s{T+2 if s_ < 16 else T+3}, {c}\nbuffer_load_dwordx4 v{D0 if s_ < 16 else D1}, {srd(r.SO)}, s{T} offen offset:{imm} lds ; @wo")
    o.append(f"v_and_b32 v{V}, 7, v{r.L}\ns_lshl_b32 s{T}, s{r.sB}, 4\ns_add_u32 s{T}, s{T}, 1024")
    o.append(f"v_lshl_add_u32 v{D0}, v{V}, 4, v{V+2}\nv_mul_u32_u24 v{D1}, 1152, v{r.J}")
    o.append(f"v_lshl_add_u32 v{D1}, v{r.C}, 28, v{D1}\ns_mul_i32 s{T+1}, s{r.sTT}, {16*1152}")
    o.append(f"s_add_u32 s{T+3}, s{T+1}, s{T}\ns_lshl_b32 s{T}, s{r.sB}, 7\ns_add_u32 s{T+1}, s{T+1}, s{T}")
    o.append(f"s_add_u32 m0, s{r.sXm}, {XRES}\ns_add_u32 s{T+2}, s{T+1}, {8*1152-1024}")
    o.append(f"buffer_load_dwordx4 v{D0}, {srd(r.SX)}, s{T+1} offen lds ; @wo")
    o.append(f"buffer_load_dwordx4 v{D0}, {srd(r.SX)}, s{T+2} offen offset:1024 lds ; @wo")
    o.append(f"s_add_u32 m0, s{r.sXm}, {XRES8}")
    o.append(f"buffer_load_dwordx4 v{D1}, {srd(r.SX)}, s{T+3} offen lds ; @wo")
    c1, c2 = poll_check(V + 5, None, r.SDB, T + 2, ("0", 128), 72, "fwb", slow)
    o += [c1, f"s_mul_i32 s{T}, s{w}, 5120\ns_min_u32 s{T}, s{T}, {13*1024}\ns_mul_i32 s{T+1}, s{r.sB}, 18432", c2]
    o.append(f"s_add_u32 m0, s{T}, {WO8}\ns_add_u32 s{T+1}, s{T+1}, s{T}\ns_add_u32 s{T+1}, s{T+1}, {WS['W8'][0]}")
    for k in range(5):
        if k == 4: o.append(f"s_add_u32 m0, s{T}, {WO8 + 4096}\ns_add_u32 s{T+1}, s{T+1}, 4096")
        o.append(f"buffer_load_dwordx4 v{r.OS0}, {srd(r.SW)}, s{T+1} offen offset:{1024*(k%4)} sc1 lds ; @wo")
    TA, T4, TB = r.TW, r.XD, r.XD + 1
    o.append(f"""v_lshlrev_b32 v{V}, 7, v{r.J}
    v_lshl_add_u32 v{V}, v{r.C}, 3, v{V}
    v_add_u32 v{D0}, s{r.sXm}, v{V}
    v_and_b32 v{V+2}, 1, v{r.C}
    v_lshlrev_b32 v{V+1}, 4, v{r.J}
    v_lshl_add_u32 v{V+1}, v{V+2}, 3, v{V+1}
    v_add_u32 v{D1}, s{r.sXm}, v{V+1}
    v_bfe_u32 v{V}, v{r.L}, 2, 3
    v_and_b32 v{V+1}, 3, v{r.L}
    v_lshlrev_b32 v{V+1}, 3, v{V+1}
    v_lshl_add_u32 v{V+1}, v{V}, 7, v{V+1}
    v_lshrrev_b32 v{V+2}, 5, v{r.L}
    v_mul_u32_u24 v{V+3}, 18432, v{V+2}
    v_add_u32 v{V+1}, v{V+1}, v{V+3}
    v_lshrrev_b32 v{V+3}, 1, v{V}""")
    for tc in range(4): o.append(f"v_xor_b32 v{V+4}, {tc}, v{V+3}\nv_lshl_add_u32 v{TA+tc}, v{V+4}, 5, v{V+1}")
    o.append(f"v_lshlrev_b32 v{T4}, 3, v{r.L}\nv_add_u32 v{T4}, {WO8}, v{T4}")
    return o

def b_wfr(s_, T_):
    i = 5 * s_ + T_
    return (4 * i, "a") if i < 64 else (24 + 4 * (i - 64), "v")
def b_reads(r):
    o = []
    for s_ in range(18):
        for T_ in range(5):
            b, k = b_wfr(s_, T_)
            for h in range(2):
                off = WO + 1024 * s_ + 36864 * h if T_ < 4 else 1024 * s_ + 512 * h
                o.append(f"ds_read_b64_tr_b16 {vr(b+2*h,2,k)}, v{r.TW+T_ if T_ < 4 else r.XD} offset:{off}")
    return o

def phase_b(a, r, f, st, slow, setup, w2_ops=(), w2b_ops=(), w3a_ops=(), w3b_ops=(), sig2=45, poll2=90, w2gap=3, npre_o=10):
    T = r.sBT; w = r.sWv; V = r.T
    WFV, OF, AC, XR_ = 24, 128, 200, 220
    def wfr(s_, T_):
        i = 5 * s_ + T_
        return (4 * i, "a") if i < 64 else (WFV + 4 * (i - 64), "v")
    sF2s, sF2, sOb = 76, 77, 78
    TA = r.TW
    T4, TB = r.XD, r.XD + 1
    for T_ in range(4): a(f"ds_read_b64 {vr(XR_+2*T_,2)}, v{r.WD} offset:{XRES + 32*T_} ; @xr")
    a(f"ds_read_b64 {vr(XR_+8,2)}, v{r.WD+1} offset:{XRES8} ; @xr")
    reads = b_reads(r)[r.npre_w:]
    own = lines(f"""s_lshl_b32 s{T}, s{r.sTB}, 2
    s_add_u32 s{T}, s{T}, s{w}
    s_lshl_b32 s{T}, s{T}, 7
    s_add_u32 s{sF2s}, s{T}, {WS['FLAG'][0] + F_E2*128}""")
    own2 = lines(f"""s_lshr_b32 s{T}, s{r.sTT}, 1
    s_lshl_b32 s{T}, s{T}, 7
    s_add_u32 s{sF2}, s{T}, {WS['FLAG'][0] + F_E2*128}
    s_mul_i32 s{T}, s{r.sTT}, {18*1024}
    s_add_u32 s{sOb}, s{T}, {WS['O'][0]}
    s_lshl_b32 s{T}, s{r.sTT}, 6
    s_add_u32 s{T}, s{T}, {WS['MUX'][0]}""")
    unp = [x for i in range(10) for x in (f"v_lshlrev_b32 v{AC+2*i}, 16, v{XR_+i}", f"v_and_b32 v{AC+2*i+1}, 0xffff0000, v{XR_+i}")]
    dm = flat(w2_ops); mixed = []; side = own2 + unp
    for x in dm:
        mixed.append(x)
        if "buffer" in x:
            for _ in range(w2gap): mixed.append(side.pop(0) if side else "")
    fill = own + list(setup[0]) + ["WAITLG xr\ns_barrier"] + mixed + side + list(setup[1][:2])
    for k, x in enumerate(reads):
        a(x)
        if k == sig2: a(f"WAITVM ost\nbuffer_atomic_add v{r.ONE}, v{r.AT}, {srd(r.SW)}, s{sF2s} offen sc1")
        if k == poll2: a(poll_issue(r.FL, r.AT, r.SW, (f"s{sF2}", 0), "f2"))
        if fill: a(fill.pop(0))
    emit(a, fill)
    a(f"v_lshlrev_b32 v{V}, 2, v{r.J}\ns_waitcnt lgkmcnt(0)\ns_barrier")
    a(st.text("brd"))
    emit(a, poll_check(r.FL, r.AT, r.SW, T + 2, (f"s{sF2}", 0), 16, "f2", slow))
    a(st.text("e2"))
    a(f"s_mov_b32 exec_lo, 0\nbuffer_load_dword v{AC+16}, v{V}, {srd(r.SW)}, s{T} offen sc1 ; @o0\ns_mov_b64 exec, -1")
    ol = []
    for s_ in range(18):
        pre = f"s_add_u32 s{sOb}, s{sOb}, 4096\n" if s_ % 4 == 0 and s_ else ""
        if s_ < 16:
            ol.append(pre + f"buffer_load_dwordx4 {vr(OF+4*s_)}, v{f.L16}, {srd(r.SW)}, s{sOb} offen offset:{1024*(s_%4)} sc1 ; @o{s_}")
        else:
            ol.append(pre + "\n".join(f"buffer_load_dwordx2 {vr(OF+4*s_+2*h,2)}, v{f.L8}, {srd(r.SW)}, s{sOb} offen offset:{1024*(s_%4)+512*h} sc1 ; @o{s_}" for h in range(2)))
    emit(a, ol[:npre_o] + touches(r, 'ol'))
    sHa, sHb, sSS = sF2s, sF2, 79
    c3 = Cap()
    c3(f"""s_lshr_b32 s{T}, s{r.sTT}, 2
    s_mul_i32 s{T}, s{T}, {72*1024}
    s_lshl_b32 s{T+1}, s{w}, 10
    s_add_u32 s{T}, s{T}, s{T+1}
    s_add_u32 s{T}, s{T}, {WS['HC'][0]}
    s_lshl_b32 s{T+1}, s{r.sB}, 13
    s_add_u32 s{sHa}, s{T}, s{T+1}
    s_lshr_b32 s{T+1}, s{r.sB}, 2
    s_lshl_b32 s{T+1}, s{T+1}, 12
    s_add_u32 s{T}, s{T}, s{T+1}
    s_and_b32 s{T+1}, s{r.sB}, 3
    s_lshl_b32 s{T+1}, s{T+1}, 8
    s_add_u32 s{T}, s{T}, s{T+1}
    s_add_u32 s{sHb}, s{T}, {16*4096}
    s_lshl_b32 s{T}, s{r.sTT}, 10
    s_lshl_b32 s{T+1}, s{r.sB}, 7
    s_add_u32 s{T}, s{T}, s{T+1}
    s_add_u32 s{sSS}, s{T}, {WS['SS'][0]}
    s_lshl_b32 s{T}, s{r.sTT}, 6
    s_add_u32 s{T}, s{T}, {WS['MU'][0]}
    s_cmp_eq_u32 s{r.sB}, 0
    s_cselect_b32 s{T}, s{T}, {OOB}
    s_lshl_b32 s{T+1}, s{r.sTT}, 7
    s_add_u32 s{T+1}, s{T+1}, {WS['FLAG'][0] + F_E3*128}
    s_add_u32 s{T+2}, s{sHa}, 4096
    v_lshl_add_u32 v{V}, v{r.C}, 28, v{V}
    v_cmp_gt_u32 vcc, 32, v{r.L}""")
    shadow = list(setup[1][2:]) + c3.items
    fill = flat(w2b_ops); rest = ol[npre_o:]
    for s_ in range(18):
        a(f"WAITVM o{s_}")
        mf = []
        for T_ in ((0, 1, 2, 3, 4) if s_ < 17 else (4, 0, 1, 2, 3)):
            b, k = wfr(s_, T_); acc = vr(AC + 4 * T_)
            mf.append(f"{MF} {acc}, {vr(b,4,k)}, {vr(OF+4*s_)}, {acc}")
        ex = []
        if rest: ex = flat([rest.pop(0)])
        else:
            while fill:
                ex.append(fill.pop(0))
                if "buffer" in ex[-1]: break
        k = -(-len(shadow) // (17 - s_)) if s_ < 17 else 0
        emit(a, pack(mf, ex, shadow[:k])); shadow = shadow[k:]
        if pack.left: print("   bleft", s_, pack.left)
    w3a_ops = fill + list(w3a_ops)
    M, Q = V + 2, V + 4
    a(f"""v_mov_b32 v{M+1}, v{AC+16}
    v_mov_b32 v{M}, v{AC+16}
    v_permlane32_swap_b32 v{M+1}, v{M}""")
    for i in (8, 9, 0, 1, 2, 3, 4, 5, 6, 7):
        a(f"v_pk_add_f32 {vr(AC+2*i,2)}, {vr(AC+2*i,2)}, {vr(M,2)} op_sel_hi:[1,0] neg_lo:[0,1] neg_hi:[0,1]")
    for i in range(10): a(f"v_cvt_pk_bf16_f32 v{XR_+i}, v{AC+2*i}, v{AC+2*i+1}")
    a(f"""buffer_store_dwordx4 {vr(XR_)}, v{f.L16}, {srd(r.SW)}, s{sHa} offen sc1 ; @hst
    buffer_store_dwordx4 {vr(XR_+4)}, v{f.L16}, {srd(r.SW)}, s{T+2} offen sc1 ; @hst
    s_mov_b32 exec_hi, 0
    buffer_store_dwordx2 {vr(XR_+8,2)}, v{f.L8}, {srd(r.SW)}, s{sHb} offen sc1 ; @hst
    s_mov_b64 exec, -1
    v_pk_mul_f32 {vr(Q,2)}, {vr(AC+16,2)}, {vr(AC+16,2)}
    v_pk_fma_f32 {vr(Q,2)}, {vr(AC+18,2)}, {vr(AC+18,2)}, {vr(Q,2)}
    v_cndmask_b32 v{Q}, 0, v{Q}, vcc
    v_cndmask_b32 v{Q+1}, 0, v{Q+1}, vcc""")
    for i in range(8): a(f"v_pk_fma_f32 {vr(Q,2)}, {vr(AC+2*i,2)}, {vr(AC+2*i,2)}, {vr(Q,2)}")
    a(f"""v_add_f32 v{Q}, v{Q}, v{Q+1}
    v_mov_b32 v{Q+1}, v{Q}
    v_permlane32_swap_b32 v{Q}, v{Q+1}
    v_add_f32 v{Q}, v{Q}, v{Q+1}
    v_mov_b32 v{Q+1}, v{Q}
    v_permlane16_swap_b32 v{Q}, v{Q+1}
    v_add_f32 v{Q}, v{Q}, v{Q+1}
    buffer_store_dword v{M}, v{V}, {srd(r.SW)}, s{T} offen sc1 ; @sst
    v_lshrrev_b32 v{V+1}, 1, v{f.L8}
    s_mov_b32 exec_hi, 0
    buffer_store_dword v{Q}, v{V+1}, {srd(r.SW)}, s{sSS} offen sc1 ; @sst
    s_mov_b64 exec, -1""")
    a(st.text("hc"))
    emit(a, w3a_ops + touches(r, 'hc'))
    a(f"WAITVM hst\nbuffer_atomic_add v{r.ONE}, v{r.AT}, {srd(r.SW)}, s{T+1} offen sc1")
    a(st.text("s3"))
    emit(a, w3b_ops)

def k_attn_a(name="attna_kernel", stamps=False, akw={}, **kw):
    a = Asm(); r = a_regs(); slow = []
    st = Stamps(stamps, kid=0)
    a(f"s_cmp_ge_u32 s2, 256\ns_cbranch_scc1 {name}_end")
    a(st.text("start"))
    h = phase_a(a, r, st, slow, **akw)
    phase_a2(a, r, st, slow, h, b_dma_ops(r, slow), **kw)
    if stamps:
        a("s_waitcnt vmcnt(0)"); st.flush(a, r.SW, 2)
    a(f"{name}_end:\ns_endpgm")
    for s in slow: a(s)
    return (name, 256, 256, 163840), kernel_text(name, a, force_vgpr=512), st.names

if __name__ == "__main__":
    k = k_attn_a(stamps=True)
    open("attna.s", "w").write(file_text([k[0]], [k[1]]))
```

```python
from common import *

def ffn_regs():
    r = R()
    r.ACC = 4; r.FR = 164; r.XV = 188; r.STG = 220; r.TRA = 236; r.TRC = 248
    r.DVW = 249; r.DVD = 250; r.DC = 251; r.L16 = 252; r.L8 = 253; r.AT = 254; r.FL = 255
    r.SG, r.SU, r.SD, r.SC, r.SW = 12, 16, 20, 24, 28
    r.SO = 12
    r.sWv = 3
    r.sW, r.sWC, r.sMC, r.sM0, r.sX, r.sH, r.sHC, r.sHL, r.sD, r.sDC, r.sF4, r.sF5, r.sP = 32, 33, 34, 35, 36, 37, 38, 39, 40, 41, 42, 43, 44
    r.sRD, r.sRH, r.sRC = 45, 49, 53
    r.sT = 57
    r.sKG, r.sJ, r.sTB = 64, 65, 66
    r.sXt = 24; r.sPt = 67; r.sUo, r.sUs, r.sUc = 71, 72, 73; r.sQ, r.sF6, r.sTok, r.sU1 = 76, 77, 78, 79
    r.DVS = r.DC
    r.SLOT = 24576; r.NS = 5; r.XB = 0; r.SB = 36864; r.S0 = 3
    return r

def ffn_setup1(a, r, v1=1, v2=2, v3=3):
    a(f"""v_bfe_u32 v{v2}, v{v1}, 1, 2
    v_bfe_u32 v{v3}, v{v1}, 4, 2
    v_xor_b32 v{v2}, v{v2}, v{v3}
    v_and_b32 v{v3}, 1, v{v1}
    v_lshlrev_b32 v{v3}, 4, v{v3}
    v_lshl_add_u32 v{v2}, v{v2}, 5, v{v3}
    v_lshrrev_b32 v{r.FL}, 3, v{v1}
    v_mul_u32_u24 v{r.DVW}, 9216, v{r.FL}
    v_add_u32 v{r.DVW}, v{r.DVW}, v{v2}
    v_mul_u32_u24 v{r.DVD}, 1152, v{r.FL}
    v_add_u32 v{r.DVD}, v{r.DVD}, v{v2}""")
    T = r.sT; w = r.sWv
    a(f"""s_and_b32 s{r.sKG}, s2, 7
    s_bfe_u32 s{r.sJ}, s2, 0x20003
    s_lshr_b32 s{r.sTB}, s2, 5
    s_mul_i32 s{T}, s{r.sKG}, 1152
    s_lshl_b32 s{T+1}, s{r.sJ}, 8
    s_add_u32 s{r.sW}, s{T}, s{T+1}
    s_mul_i32 s{T+2}, s{w}, {8*9216}
    s_add_u32 s{r.sW}, s{r.sW}, s{T+2}
    s_mul_i32 s{r.sM0}, s{w}, 3072""")

def ffn_setup2(a, r, v1=1, v2=2, v3=3):
    T = r.sT; w = r.sWv
    a(f"""v_lshlrev_b32 v{r.L16}, 4, v{v1}
    v_lshlrev_b32 v{r.L8}, 3, v{v1}
    v_cmp_eq_u32 vcc, 0, v{v1}
    v_lshrrev_b32 v{v2}, 2, v{v1}
    v_and_b32 v{v3}, 3, v{v1}
    v_lshlrev_b32 v{v3}, 3, v{v3}
    v_mov_b32 v{r.FL}, 0x40000000
    v_cndmask_b32 v{r.AT}, v{r.FL}, 0, vcc
    v_lshl_add_u32 v{r.TRC}, v{v2}, 5, v{v3}
    v_and_b32 v{r.FL}, 7, v{v2}
    v_lshl_add_u32 v{v3}, v{r.FL}, 7, v{v3}
    v_lshrrev_b32 v{r.FL}, 3, v{v2}
    v_mul_u32_u24 v{r.FL}, 3072, v{r.FL}
    v_add_u32 v{v3}, v{v3}, v{r.FL}
    v_add_u32 v{v3}, {r.SB}, v{v3}
    v_bfe_u32 v{v2}, v{v2}, 1, 2""")
    for tc in range(4):
        a(f"v_xor_b32 v{r.FL}, {tc}, v{v2}\nv_lshl_add_u32 v{r.TRA+tc}, v{r.FL}, 5, v{v3}\nv_add_u32 v{r.TRA+4+tc}, 61440, v{r.TRA+tc}")
    a(f"""s_lshl_b32 s{T+1}, s{r.sJ}, 8
    s_lshl_b32 s{T+3}, s{r.sKG}, 2
    s_add_u32 s{T+3}, s{T+3}, s{r.sJ}
    s_mul_i32 s{T+3}, s{T+3}, 55296
    s_add_u32 s{T+3}, s{T+3}, {WS['RP'][0]}
    s_add_u32 s{r.sDC}, s{T+3}, 36864
    s_mul_i32 s{r.sMC}, s{w}, 9216
    s_add_u32 s{r.sWC}, s{T+3}, s{r.sMC}
    s_mul_i32 s{T}, s{r.sKG}, {576*1152}
    s_mul_i32 s{T+2}, s{w}, {8*1152}
    s_add_u32 s{r.sD}, s{T}, s{T+1}
    s_add_u32 s{r.sD}, s{r.sD}, s{T+2}
    s_lshl_b32 s{T+4}, s{r.sTB}, 2
    s_add_u32 s{T+4}, s{T+4}, s{w}
    s_mul_i32 s{T+5}, s{T+4}, {72*1024}
    s_add_u32 s{r.sX}, s{T+5}, {WS['HC'][0]}
    s_mul_i32 s{T}, s{r.sKG}, {32*72*1024}
    s_add_u32 s{T}, s{T}, s{T+5}
    s_add_u32 s{r.sHL}, s{T}, {WS['HH'][0]}
    s_lshl_b32 s{T+1}, s{r.sJ}, 14
    s_add_u32 s{r.sH}, s{r.sHL}, s{T+1}
    s_lshr_b32 s{T+1}, s{r.sJ}, 1
    s_lshl_b32 s{T+1}, s{T+1}, 12
    s_and_b32 s{T+2}, s{r.sJ}, 1
    s_lshl_b32 s{T+2}, s{T+2}, 9
    s_add_u32 s{T+1}, s{T+1}, s{T+2}
    s_add_u32 s{T+1}, s{T+1}, {16*4096}
    s_add_u32 s{r.sHC}, s{r.sHL}, s{T+1}
    s_lshl_b32 s{T}, s{r.sKG}, 5
    s_add_u32 s{T}, s{T}, s{T+4}
    s_mul_i32 s{T}, s{T}, 384
    s_add_u32 s{r.sF4}, s{T}, {WS['FLAG'][0] + F_E4*128}
    s_lshl_b32 s{T}, s{r.sTB}, 2
    s_add_u32 s{T}, s{T}, s{r.sJ}
    s_lshl_b32 s{T+1}, s{T}, 2
    s_add_u32 s{T+1}, s{T+1}, s{w}
    s_mul_i32 s{T+1}, s{T+1}, 384
    s_add_u32 s{r.sF5}, s{T+1}, {WS['FLAG'][0] + F_E5*128}""")
    a(f"""s_lshr_b32 s{T}, s{r.sKG}, 2
    s_lshl_b32 s{T}, s{T}, 7
    v_add_u32 v{r.DVS}, s{T}, v{r.DVD}
    s_xor_b32 s{T}, s{T}, 128
    v_add_u32 v{r.DVD}, s{T}, v{r.DVD}
    s_and_b32 s{T+1}, s{r.sKG}, 3""")
    for t in range(4):
        a(f"s_xor_b32 s{T}, s{T+1}, {3 ^ t}\ns_lshl_b32 s{T}, s{T}, 10\ns_add_u32 s{r.sXt+t}, s{T}, s{r.sX}")
    for i in range(4):
        a(f"""s_add_u32 s{T}, s{r.sJ}, {i}
        s_and_b32 s{T}, s{T}, 3
        s_mul_i32 s{r.sRD+i}, s{T}, {4*32*1152}
        s_add_u32 s{r.sRD+i}, s{r.sRD+i}, s{r.sD}
        s_lshl_b32 s{r.sRH+i}, s{T}, 14
        s_add_u32 s{r.sRH+i}, s{r.sRH+i}, s{r.sHL}
        s_lshl_b32 s{r.sRC+i}, s{T}, 12""")

def ffn_srds(a, r, pW, pD, pWS=None):
    mk_srd(a, r.SG, pW, SZ['wg']); mk_srd(a, r.SU, pW + 2, SZ['wu']); mk_srd(a, r.SD, pD, SZ['wd'])
    if pWS: mk_srd(a, r.SW, pWS, 64 * MB)

def kq(q):
    if q < 8: return None, 4 * (q // 2) + q % 2
    if q < 10: return None, 16 + q - 8
    if q < 12: return 0, 2 + q - 10
    if q < 15: return q - 11, 2
    return q - 14, 3

def slab_ops(r, n):
    ops = []; T = r.sT
    slot = (n + r.S0) % r.NS
    if n < 12:
        col = 0 if n < 6 else 128
        for ks in range(3):
            ops.append((f"s_add_u32 s{T+ks}, s{r.sW}, {(3*(n%6)+ks)*32*9216 + col - 1024*ks}", 1))
        for m, S in enumerate((r.SG, r.SU)):
            ops.append((f"s_add_u32 m0, s{r.sM0}, {r.SB + slot*r.SLOT + m*12288}", 1))
            for ks in range(3):
                ops.append((f"buffer_load_dwordx4 v{r.DVW}, {srd(S)}, s{T+ks} offen offset:{1024*ks} lds ; @slab{n}", 2))
    else:
        col = 0; dv = r.DVS if n % 2 else r.DVD
        for m in range(2):
            ops.append((f"s_add_u32 m0, s{r.sM0}, {r.SB + slot*r.SLOT + m*12288}", 1))
            for ks in range(3):
                q = 6 * ((n - 12) // 2) + 3 * m + ks
                rot, s = kq(q)
                b = r.sD if rot is None else r.sRD + rot
                c = s * 32 * 1152 + col - 1024 * ks
                assert c >= 0
                ops.append((f"s_add_u32 s{T}, s{b}, {c}", 1))
                ops.append((f"buffer_load_dwordx4 v{dv}, {srd(r.SD)}, s{T} offen offset:{1024*ks} lds ; @slab{n}", 2))
    return ops

def lin_ops(r, sg, sm, n, tag):
    ops = []
    for i in range(n):
        if i % 4 == 0:
            ops.append((f"s_add_u32 m0, s{sm}, {1024*i}", 1)); ops.append((f"s_add_u32 s{r.sT}, s{sg}, {1024*i}", 1))
        ops.append((f"buffer_load_dwordx4 v{r.L16}, {srd(r.SW)}, s{r.sT} offen offset:{1024*(i%4)} sc1 lds ; @{tag}", 2))
    return ops
def wc_ops(r): return lin_ops(r, r.sWC, r.sMC, 9, "wc")
def dc_ops(r):
    T = r.sT
    return [(f"s_mul_i32 s{T}, s{r.sWv}, 5120\ns_min_u32 s{T}, s{T}, {13*1024}", 2), (f"s_add_u32 s{r.sDC}, s{r.sDC}, s{T}\ns_add_u32 s{r.sMC}, s{T}, {r.XB}", 2)] + lin_ops(r, r.sDC, r.sMC, 5, "dc")

def xreg(r, s, t):
    return vr(r.XV + 16 * s + 4 * t) if s < 2 else vr(16 * (s - 2) + 4 * t, 4, "a")
def hreg(r, q, t):
    if q in (10, 11): return vr(r.XV + 16 * (q - 10) + 4 * t)
    return vr(16 * (q if q < 10 else q - 2) + 4 * t, 4, "a")
def preg(k): return vr(16 * (k // 3) + 4 * (k % 3), 4, 'a')
def half(reg, h):
    m = re.match(r"([va])\[(\d+):", reg); b = int(m.group(2)) + 2 * h
    return f"{m.group(1)}[{b}:{b+1}]"
def x_loads(r, s):
    ops = []; tmp = r.sT + 3
    for t in range(4):
        so = f"s{r.sXt+t}"
        if s: ops.append((f"s_add_u32 s{tmp}, s{r.sXt+t}, {4096*s}", 1)); so = f"s{tmp}"
        if s < 16: ops.append((f"buffer_load_dwordx4 {xreg(r,s,t)}, v{r.L16}, {srd(r.SW)}, {so} offen sc1 ; @x{s}", 2))
        else:
            for h in range(2): ops.append((f"buffer_load_dwordx2 {half(xreg(r,s,t), h)}, v{r.L8}, {srd(r.SW)}, {so} offen offset:{512*h} sc1 ; @x{s} @half", 2))
    return ops
def frag_loads(r, regf, sbase, s, tag, fl, tmp):
    ops = [(f"s_add_u32 s{tmp}, s{sbase}, {4096*s}", 1)]
    for t in range(4):
        if s < 16 or s is None:
            ops.append((f"buffer_load_dwordx4 {regf(t)}, v{r.L16}, {srd(r.SW)}, s{tmp} offen offset:{1024*t} {fl} ; @{tag}", 2))
        else:
            for h in range(2):
                ops.append((f"buffer_load_dwordx2 {half(regf(t), h)}, v{r.L8}, {srd(r.SW)}, s{tmp} offen offset:{1024*t+512*h} {fl} ; @{tag} @half", 2))
    return ops

def ffn_main(a, r, st, slow, cap=2, pace=5, lat=80, chk=55, lead=50, hst='sc1', pst='sc1', hld='sc1', nochk=False, fine=False, npre=5, wcpre=True, verbose=False, touch={}, tgap=120, kfirst=True, nx0=1, merge={1: 0, 3: 2, 5: 4, 'dc': 12}, slabat={}, dcat='early', fcd=30, vmcost=2, tafter=8, tat=625, p0=(90, 30, 16), s1=35, rfd=7, sflag=None, s17late=False, xgap=100):
    S = Sched(cap)
    groups = []
    for n in range(6):
        for tc in range(4):
            for m in range(2): groups.append(("A", n, m, tc))
    for n in range(6):
        for m in range(2): groups.append(("C", n, m, 0))
    for n in range(6):
        for tc in range(4):
            for m in range(2): groups.append(("B", n, m, tc))
    for n in range(6):
        for tc in (0, 1, 2, 3, 8, 4): groups.append(("D", n, 0, tc))
    for tc in (5, 6, 7):
        for n in range(6): groups.append(("D", n, 0, tc))
    gidx = {g: i for i, g in enumerate(groups)}
    def tset(kind, tc): return range(3) if kind == "D" and 4 <= tc < 8 else range(4)
    def accb(kind, m, tc):
        if kind in "AB": return r.ACC + 32 * tc + 16 * m
        if kind == "C": return r.ACC + 128 + 16 * m
        return r.ACC + (128, 144, 0, 16, 48, 64, 80, 96, 32)[tc]
    def slab_of(g):
        kind, n, m, tc = g
        if kind == "A": return n
        if kind == "B": return 6 + n
        if kind == "C": return "wc"
        return 12 + 2 * (n // 2) + tc // 4 if tc < 8 else "dc"
    def frags_of(gi):
        kind, n, m, tc = groups[gi]
        if gi < 8 and kfirst:
            return [(i % 2, (i // 2) % 4, i // 8) for i in range(3 * gi, 3 * gi + 3)]
        return [(m, tc, ks) for ks in range(3)]
    def frag_reads(gi):
        kind, n, _, _ = g = groups[gi]
        b = r.FR + 12 * (gi % 2); out = []
        sl = slab_of(g)
        for fi, (m, tc, ks) in enumerate(frags_of(gi)):
            pre = ""
            if sl == "wc": ad, off, hs = r.TRC, m * 18432 + (3 * n + ks) * 1024, 512
            elif sl == "dc":
                rot, s = kq(3 * n + ks); ad, off, hs = r.TRC, s * 1024, 512
                if rot is not None:
                    ad = 1 + ks; pre = f"v_add_u32 v{ad}, s{r.sRC+rot}, v{r.TRC}"
            else:
                hm = m if kind in "AB" else n % 2
                slot = (sl + r.S0) % r.NS
                off = slot * r.SLOT + hm * 12288; pg = int(off >= 61440)
                ad = r.TRA + 4 * pg + tc % 4; off += ks * 1024 - 61440 * pg; hs = 6144
            if pre: out.append(pre)
            for h in range(2):
                out.append(f"ds_read_b64_tr_b16 {vr(b+4*fi+2*h, 2)}, v{ad} offset:{off+h*hs} ; @fr{gi}")
        return out
    start = []; done = []
    for gi, (kind, n, _, tc0) in enumerate(groups):
        b = r.FR + 12 * (gi % 2)
        start.append(S.n())
        for t in tset(kind, tc0):
            for fi, (m, tc, ks) in enumerate(frags_of(gi)):
                acc = vr(accb(kind, m, tc) + 4 * t); s = 3 * n + ks
                breg = xreg(r, s, t) if kind in "ABC" else hreg(r, s, t)
                S.mfma(f"{MF} {acc}, {vr(b+4*fi)}, {breg}, {'0' if s == 0 else acc}")
        done.append(S.n())
    NG = len(groups); F0 = S.n()
    ffn_main.ideal = [16 * (done[g] - start[g]) for g in range(NG)]; ffn_main.start = start
    RING, NR = r.ACC, 12
    fr = [(tc, q) for tc in range(4) for q in range(18)]
    for k, (tc, q) in enumerate(fr):
        acc = vr(accb("D", 0, 4 + tc) + 12)
        S.mfma(f"{MF} {acc}, {vr(RING + 4 * (k % NR))}, {hreg(r, q, 3)}, {'0' if q == 0 else acc}")
    END = S.n()
    G = lambda *g: start[gidx[g]]
    first_use, last_use = {}, {}
    for gi, g in enumerate(groups):
        sl = slab_of(g); first_use.setdefault(sl, gi); last_use[sl] = gi
    bar_at = {}
    for sl, gi in first_use.items():
        if gi == 0: continue
        key = gi - 1
        if sl in (13, 15) or (sl == 17 and not s17late): key = first_use[sl - 1] - 1
        if sl in merge: key = first_use[merge[sl]] - 1
        if key < 0: continue
        bar_at.setdefault(key, []).append(sl)
    bars = sorted(bar_at)
    def free_slot(sl):
        return min(start[b] for b in bars if b >= last_use[sl]) + 1
    def tagof(sl): return f"slab{sl}" if isinstance(sl, int) else sl
    a("WAITVM slab0" + "".join(f" WAITVM slab{k}" for k, v in merge.items() if v == 0) + "\ns_barrier")
    a(st.text("C0"))
    for t in frag_reads(0): a(t)
    for gi, g in enumerate(groups):
        kind, n, m, tc = g
        w = f"WAITLG fr{gi}"
        if kind == "A" and (gi < 8 or m + tc == 0): w += f" WAITVM x{3*n + max(f[2] for f in frags_of(gi))}"
        if kind == "D" and tc == 0: w += f" WAITVM h{3*n+2 if n != 3 else 9}"
        for sl in bar_at.get(gi, []): w += f" WAITVM {tagof(sl)}"
        S.fix(start[gi], w)
        if gi in bar_at: S.fix(start[gi], "s_barrier")
        if fine and gi < 155:
            if gi: S.fix(start[gi], f"v_writelane_b32 v{r.TRA+8+(gi-1)//64}, s74, {(gi-1)%64}")
            S.fix(start[gi], "s_memtime s[74:75]")
        if gi + 1 < NG:
            k = 0
            for t in frag_reads(gi + 1):
                S.add("rd", start[gi] + 1 + k, min(start[gi] + 9, done[gi] - 1), t)
                if t.startswith("ds_"): k += 1
    for k, (tc, q) in enumerate(fr):
        slot = (13 + 2 * (q // 6) + r.S0) % r.NS
        off = slot * r.SLOT + ((q // 3) % 2) * 12288; pg = int(off >= 61440); off += (q % 3) * 1024 - 61440 * pg
        for h in range(2):
            e = F0 + k - NR + 1 if k >= NR else F0 - 60
            S.add("rf", e, F0 + 2 * (k // 2) - rfd, f"ds_read_b64_tr_b16 {vr(RING + 4*(k % NR) + 2*h, 2)}, v{r.TRA + 4*pg + tc} offset:{off + 6144*h} ; @ff{k//2}")
        if k % 2 == 0: S.fix(F0 + k, f"WAITLG ff{k//2}", free=True)
    bslot = {sl: start[k] for k, l in bar_at.items() for sl in l}
    for sl_, nm in ((G("B", 0, 0, 0), "B"), (G("D", 0, 0, 0), "D"), (F0, "F")):
        t = st.text(nm)
        if t: S.fix(sl_, t)
    def epi_gu(kind, tc, deadline):
        e = done[gidx[(kind, 5, 1, tc)]] + 8
        h = tc % 2
        stg = r.STG if kind != "B" else r.XV + 16 * (tc // 2)
        if kind != "C" and h == 1:
            S.add("ep", e, None, f"s_add_u32 s{r.sT+4}, s{r.sH}, {4096 * (tc // 2 + (2 if kind == 'B' else 0))}")
        for t in range(4):
            g, u = accb(kind, 0, tc) + 4 * t, accb(kind, 1, tc) + 4 * t
            for i in range(4): S.add("ep", e, deadline, f"v_mul_f32 v{g+i}, v{g+i}, v{u+i}")
            d = stg + 4 * t + 2 * h
            S.add("ep", e, deadline, f"v_cvt_pk_bf16_f32 v{d}, v{g}, v{g+1}")
            S.add("ep", e, deadline, f"v_cvt_pk_bf16_f32 v{d+1}, v{g+2}, v{g+3}")
            if kind == "C":
                S.add("ep", e, None, f"buffer_store_dwordx2 {vr(d,2)}, v{r.L8}, {srd(r.SW)}, s{r.sHC} offen offset:{1024*t} {hst} ; @stC", 2)
            elif h == 1:
                S.add("ep", e, None, f"buffer_store_dwordx4 {vr(stg+4*t)}, v{r.L16}, {srd(r.SW)}, s{r.sT+4} offen offset:{1024*t} {hst} ; @st{kind}{tc//2}", 2)
        return e
    for tc in range(4): epi_gu("A", tc, G("B", 0, 0, tc) - 2)
    e = epi_gu("C", 0, G("D", 0, 0, 0) - 2); tC = e + 25 + lat
    T4 = r.sT + 4; w = r.sWv
    pre = lines(f"""s_lshl_b32 s{T4}, s{r.sTB}, 2
    s_add_u32 s{T4}, s{T4}, s{r.sJ}
    s_lshl_b32 s{T4}, s{T4}, 2
    s_add_u32 s{T4}, s{T4}, s{w}
    s_mul_i32 s{T4}, s{T4}, {64*2560}
    s_add_u32 s{r.sQ}, s{T4}, {WS['PART'][0]}
    s_mul_i32 s{T4}, s{r.sKG}, 2560
    s_add_u32 s{r.sP}, s{r.sQ}, s{T4}
    s_lshl_b32 s{T4}, s{T4}, 3
    s_add_u32 s{r.sQ}, s{r.sQ}, s{T4}
    s_lshr_b32 s{r.sU1}, s{r.sKG}, 2
    s_mul_i32 s{r.sUs}, s{r.sU1}, 81920
    s_sub_u32 s{r.sUo}, 81920, s{r.sUs}
    s_lshr_b32 s{T4}, s{w}, 1
    s_mul_i32 s{r.sUc}, s{T4}, 81920
    s_lshl_b32 s{r.sF6}, s{r.sU1}, 7
    s_add_u32 s{r.sF6}, s{r.sF6}, s{r.sF5}
    s_and_b32 s{r.sTok}, s{r.sKG}, 3""")
    for t in range(4): pre += lines(f"s_xor_b32 s{T4}, s{r.sTok}, {3 ^ t}\ns_mul_i32 s{T4}, s{T4}, 20480\ns_add_u32 s{r.sPt+t}, s{T4}, s{r.sP}")
    pre += lines(f"s_lshl_b32 s{T4}, s{r.sTB}, 4\ns_add_u32 s{r.sTok}, s{r.sTok}, s{T4}\ns_lshl_b32 s{T4}, s{w}, 2\ns_add_u32 s{r.sTok}, s{r.sTok}, s{T4}")
    for t in pre: S.add("ep", G("B", 2, 0, 0), G("B", 3, 0, 0) - 1, t)
    dls = [G("D", 0, 0, 2) - 2, G("D", 0, 0, 8) - 2, G("D", 3, 0, 0) - 4, G("D", 3, 0, 0) - 4]
    eb = [epi_gu("B", tc, dls[tc]) for tc in range(4)]
    tB0, tB1 = eb[1] + 25 + lat, eb[3] + 25 + lat
    def epi_d(tc, tag, dl=None):
        e = done[gidx[("D", 5, 0, tc)]] + 8
        h = tc % 2; su = r.sUc if tc == 8 else r.sUo if tc < 4 else r.sUs
        for t in tset("D", tc):
            g = accb("D", 0, tc) + 4 * t
            d = r.STG + 4 * t + 2 * h
            S.add("ep", e, dl, f"v_cvt_pk_bf16_f32 v{d}, v{g}, v{g+1}")
            S.add("ep", e, dl, f"v_cvt_pk_bf16_f32 v{d+1}, v{g+2}, v{g+3}")
            if tc == 8 or h == 1: S.add("ep", e, None, f"s_add_u32 s{T4}, s{r.sPt+t}, s{su}")
            if tc == 8:
                S.add("ep", e, None, f"buffer_store_dwordx2 {vr(d,2)}, v{r.L8}, {srd(r.SW)}, s{T4} offen offset:2048 {pst} ; @{tag}", 2)
            elif h == 1:
                S.add("ep", e, None, f"buffer_store_dwordx4 {vr(r.STG+4*t)}, v{r.L16}, {srd(r.SW)}, s{T4} offen offset:{1024*((tc//2)%2)} {pst} ; @{tag}", 2)
        return e
    tl = G("D", 1, 0, 5)
    for tc in (0, 1, 2, 3, 8): e = epi_d(tc, "sp0", tl - 1 if tc < 2 else F0 - 62)
    tP0 = e + 12 + p0[0]
    epi_d(4, "sp1"); epi_d(5, "sp1")
    r.vB, r.vHc, r.vSS, r.vI, r.vRs, r.vMu = r.ACC + 128, r.ACC + 60, r.ACC + 112, r.ACC + 120, r.ACC + 126, r.ACC + 127
    Q = r.vSS
    own = ["WAITVM stat"] + lines(f"v_add_f32 v{Q}, v{Q}, v{Q+1}\nv_mov_b32 v{Q+1}, v{Q}\nv_permlane32_swap_b32 v{Q}, v{Q+1}\nv_add_f32 v{Q}, v{Q}, v{Q+1}\nv_mov_b32 v{Q+1}, v{Q}\nv_permlane16_swap_b32 v{Q}, v{Q+1}\nv_add_f32 v{Q}, v{Q}, v{Q+1}")
    own += lines(f"v_mov_b32 v{r.vRs}, 0x3727c5ac\nv_fmac_f32 v{r.vRs}, 0x3ae38e39, v{r.vSS}\nv_rcp_f32 v{r.vRs}, v{r.vRs}")
    for k in range(10):
        own += lines(f"v_lshlrev_b32 v{r.vB+2*k}, 16, v{r.vHc+16*(k//4)+k%4}\nv_and_b32 v{r.vB+2*k+1}, 0xffff0000, v{r.vHc+16*(k//4)+k%4}\nv_add_f32 v{r.vB+2*k}, v{r.vB+2*k}, v{r.vMu}\nv_add_f32 v{r.vB+2*k+1}, v{r.vB+2*k+1}, v{r.vMu}")
    I = r.vI
    own += lines(f"""v_lshrrev_b32 v{I}, 6, v{r.L16}
    v_and_b32 v{I}, 12, v{I}
    v_bfe_u32 v{I+1}, v{r.L16}, 4, 4
    v_sub_u32 v{I}, v{I+1}, v{I}
    v_and_b32 v{I+1}, 16, v{r.L16}
    v_mov_b32 v{I+4}, 0x3f80
    v_lshlrev_b32 v{I+1}, v{I+1}, v{I+4}
    v_lshrrev_b32 v{I}, 1, v{I}
    v_cmp_eq_u32 vcc, 0, v{I}
    v_mov_b32 v{I+4}, 0
    v_mov_b32 v{I+5}, 0
    v_cndmask_b32 v{I+2}, 0, v{I+1}, vcc
    v_cmp_eq_u32 vcc, 1, v{I}
    v_mov_b32 v{I}, 0
    v_bfe_u32 v{r.vSS}, v{r.L16}, 4, 4
    v_cndmask_b32 v{I+3}, 0, v{I+1}, vcc
    v_mov_b32 v{I+1}, 0
    v_mul_u32_u24 v{r.vSS}, 1152, v{r.vSS}
    v_lshrrev_b32 v{r.vSS+2}, 8, v{r.L16}
    v_lshl_add_u32 v{r.vSS+1}, v{r.vSS+2}, 3, v{r.vSS}
    v_and_b32 v{r.vSS+3}, 1, v{r.vSS+2}
    v_lshl_add_u32 v{r.vSS}, v{r.vSS+3}, 5, v{r.vSS}
    v_lshrrev_b32 v{r.vSS+2}, 1, v{r.vSS+2}
    v_lshl_add_u32 v{r.vSS}, v{r.vSS+2}, 4, v{r.vSS}""")
    for t in own: S.add("e2", tl, F0 - 2, t)
    epi_d(6, "sp1"); e = epi_d(7, "sp1")
    vm = []
    def put(ops, e, d):
        for t, c in ops: vm.append([e, d, t, c])
    def xl(s): return x_loads(r, s)
    def hl(q):
        rot, s = kq(q)
        put(frag_loads(r, lambda t: hreg(r, q, t), r.sHL if rot is None else r.sRH + rot, s, f"h{q}", hld, r.sT + 3), hfree(q), hneed(q))
    def slab(n): put(slab_ops(r, n), max(slabat.get(n, 0), free_slot(n - r.NS) if n >= r.NS else 0), bslot[n])
    def sgn(stage, tag, e, sflag):
        put([(f"WAITVM {tag}\nbuffer_atomic_add v0, v{r.AT}, {srd(r.SW)}, s{sflag} offen offset:{128*stage} sc1", 2)], e, None)
    def chkflag(stage, e, tag, filler):
        put([(poll_issue(r.FL, r.AT, r.SW, (f"s{r.sF4}", 128*stage), tag), 2)], e, None)
        filler()
        c1, c2 = poll_check(r.FL, r.AT, r.SW, r.sT + 5, (f"s{r.sF4}", 128*stage), 0 if nochk else 4, tag, slow)
        vm.append([("after", tag, chk), None, c1, 2]); vm.append([("gap", 3), None, c2, 2])
    hfree = lambda q: done[gidx[("B", ((q if q < 10 else q - 2) + 2) // 3, 1, 3)]]
    hneed = lambda q: G("D", q // 3, 0, 0)
    nxt = npre
    for s in range(nx0, 3): put(xl(s), 0, start[(8 * s - 2) // 3 + (s == 2)])
    for n in range(1, 6):
        for s in range(3 * n, 3 * n + 3): put(xl(s), 0, G("A", n, 0, 0))
        if nxt <= min(n + 2, 5): slab(nxt); nxt += 1
    put([(f"WAITVM sst\nbuffer_atomic_add v0, v{r.AT}, {srd(r.SW)}, s{sflag} offen offset:4 sc1", 2)], 0, None)
    def tch(k, at, gap):
        if touch.get(k):
            put([(t, 2) for t in touch[k]], at, None); vm.append([("gap", gap), None, "", 0])
    if not wcpre: put(wc_ops(r), 0, bslot["wc"])
    tch("ffnx", 0, xgap)
    for n in range(nxt, tafter + 1): slab(n)
    tch("ffn", tat, tgap)
    for n in range(tafter + 1, 11): slab(n)
    sgn(0, "stC", tC, r.sF4)
    slab(11)
    dc = dc_ops(r)
    if dcat == 'early': put(dc, free_slot("wc"), bslot["dc"])
    chkflag(0, ("after", "stC_sig", fcd), "fC", lambda: slab(12))
    for q in range(0, 4): hl(q)
    slab(13)
    for q in range(4, 7): hl(q)
    T = r.sT; fs = (f"s{r.sX}", 4)
    put([(f"s_lshl_b32 s{r.sX}, s{r.sTok}, 7\ns_add_u32 s{r.sX}, s{r.sX}, {WS['FLAG'][0] + F_E3*128}\n" + poll_issue(r.FL, None, r.SW, fs, "fS"), 2)], G("B", 3, 0, 0), None)
    slab(14)
    hl(7)
    c1, c2 = poll_check(r.FL, None, r.SW, T + 5, fs, 8, "fS", slow)
    vm.append([("after", "fS", 40), None, c1, 2]); vm.append([("gap", 3), None, c2, 2])
    for q in range(8, 10): hl(q)
    slab(15); slab(16)
    if dcat == 'mid': put(dc, free_slot("wc"), bslot["dc"])
    sgn(1, "stB0", tB0, r.sF4)
    sgn(2, "stB1", tB1, r.sF4)
    chkflag(1, hneed(12) - 12 * pace - lead - chk, "fB0", (lambda: None) if s17late else (lambda: slab(17)))
    hl(12)
    def f():
        for q in (13, 14): hl(q)
        if s17late: slab(17)
    chkflag(2, hneed(15) - 12 * pace - lead - chk, "fB1", f)
    for q in range(15, 18): hl(q)
    if dcat == 'late': put(dc, free_slot("wc"), bslot["dc"])
    T = r.sT
    put([(f"v_bfe_u32 v{r.DVW}, v{r.L16}, 4, 4\ns_lshl_b32 s{T}, s{r.sTok}, 6", 2), (f"v_lshlrev_b32 v{r.DVW}, 2, v{r.DVW}\ns_add_u32 s{T+1}, s{T}, {WS['MU'][0]}", 2),
         (f"buffer_load_dword v{r.vMu}, v{r.DVW}, {srd(r.SW)}, s{T+1} offen sc1 ; @stat @half", 2),
         (f"v_and_b32 v{r.vSS+2}, 0x300, v{r.L16}\ns_lshl_b32 s{T}, s{T}, 4", 2), (f"v_add_u32 v{r.DVW}, v{r.DVW}, v{r.vSS+2}\ns_add_u32 s{T}, s{T}, {WS['SS'][0]}", 1),
         (f"buffer_load_dword v{r.vSS}, v{r.DVW}, {srd(r.SW)}, s{T} offen sc1 ; @stat @half", 2),
         (f"buffer_load_dword v{r.vSS+1}, v{r.DVW}, {srd(r.SW)}, s{T} offen offset:128 sc1 ; @stat @half", 2)], G("D", 3, 0, 0), None)
    put([(f"s_lshl_b32 s{T}, s{r.sJ}, 1\ns_add_u32 s{T}, s{T}, s{r.sU1}", 2), (f"s_lshl_b32 s{T}, s{T}, 13\ns_add_u32 s{T}, s{T}, s{r.sXt+3}", 2),
         (f"buffer_load_dwordx4 {vr(r.vHc)}, v{r.L16}, {srd(r.SW)}, s{T} offen sc1 ; @stat", 2), (f"s_add_u32 s{T}, s{T}, 4096", 1),
         (f"buffer_load_dwordx4 {vr(r.vHc+16)}, v{r.L16}, {srd(r.SW)}, s{T} offen sc1 ; @stat", 2),
         (f"s_sub_u32 s{T}, s{r.sHC}, s{r.sHL}\ns_add_u32 s{T}, s{T}, s{r.sXt+3}", 2),
         (f"buffer_load_dwordx2 {vr(r.vHc+32,2)}, v{r.L8}, {srd(r.SW)}, s{T} offen sc1 ; @stat @half", 2)], G("D", 3, 0, 0), tl - 1)
    sgn(0, "sp0", tP0, r.sF5)
    put([(poll_issue(r.FL, r.AT, r.SW, (f"s{r.sF5}", 0), "f50"), 2)], tP0 + p0[1], None)
    c1, c2 = poll_check(r.FL, r.AT, r.SW, T + 5, (f"s{r.sF5}", 0), 8, "f50", slow)
    vm.append([F0 + p0[2], None, c1, 2]); vm.append([("gap", 2), None, c2, 2])
    l0 = [f"s_lshr_b32 s{T}, s{r.sUo}, 3", f"s_add_u32 s{T}, s{T}, s{r.sQ}"]
    for k in range(4):
        for p in range(2): l0.append(f"buffer_load_dwordx4 {preg(2*k+p)}, v{r.L16}, {srd(r.SW)}, s{T} offen offset:{1024*p} sc1 ; @pa{k} @half")
        if k < 3: l0.append(f"s_add_u32 s{T}, s{T}, 2560")
    l0.append(f"s_cmp_eq_u32 s{r.sUc}, s{r.sUs}\ns_cselect_b32 s{T}, s{r.sQ}, 0x40000000\ns_cselect_b32 s{T+1}, 0, 0x40000000")
    for k in range(8):
        l0.append(f"buffer_load_dwordx2 {half(preg(14+k//2), k%2)}, v{r.L8}, {srd(r.SW)}, s{T} offen offset:2048 sc1 ; @pc @flag")
        if k < 7: l0.append(f"s_add_u32 s{T}, s{T}, 2560")
    put([(t, 1) for t in l0], 0, None)
    S.fix(F0 + s1, "WAITVM sp1\n" + poll_issue(r.STG + 12, r.AT, r.SW, (f"s{r.sF6}", 128), "f51", 1) + "\n" + st.text("s5"))
    cur = 0; tagslot = {}
    for e, d, t, c in vm:
        if isinstance(e, tuple):
            e = tagslot[e[1]] + e[2] if e[0] == "after" else cur + e[1]
        cur = max(cur, e)
        if d is not None and cur > d - 30 and "buffer" in t: print(f"   tight: {t[-30:]!r} at {cur} deadline {d}")
        if d is not None: cur = min(cur, d)
        if not t: continue
        S.add("vm", cur if any(k in t for k in ("buffer_", "global_", "WAIT", "cbranch")) else 0, d, t, c)
        for tg in re.findall(r"@(\S+)", t): tagslot[tg] = cur
        if t.startswith("WAITVM"): tagslot[t.split()[1] + ("_sig" if "atomic" in t else "_chk")] = cur
        if "buffer_load" in t:
            cur += 1 if "@flag" in t else (pace + 1) // 2 if "@half" in t else 4 * pace if "@quarter" in t else pace
    if verbose: print("  vm timeline:", "A0 C%d B%d D%d E%d end%d |" % (G("C",0,0,0), G("B",0,0,0), G("D",0,0,0), F0, END), " ".join(f"{k}:{v}" for k, v in sorted(tagslot.items(), key=lambda kv: kv[1])))
    late = S.emit(a, ["rd", "ep", "vm", "rf", "e2"], vmcost, range(F0 - 8, END))
    if late: print("  late fillers:", late)

def ffn_tail(a, r, st, slow, pOut, ost=""):
    T = r.sT; w = r.sWv
    MF16 = "v_mfma_f32_16x16x16_bf16"
    a(st.text("E"))
    acc = [r.ACC + b + 12 for b in (48, 64, 80, 96)]; accC = r.ACC + 48
    Sa, Sb, I16 = vr(r.vI + 2), vr(r.vI), vr(r.vI + 2, 2)
    vO, vOC, F2 = r.vSS, r.vSS + 1, r.STG + 12
    f6 = (f"s{r.sF6}", 128)
    areg = preg
    mk_srd(a, r.SO, pOut, SZ['out'])
    a(f"""s_mul_i32 s{T+2}, s{r.sTok}, {16*1152}
    s_lshl_b32 s{T}, s{r.sJ}, 5
    s_add_u32 s{T+1}, s{T+1}, s{T}
    s_add_u32 s{T+1}, s{T+1}, s{T+2}
    s_lshl_b32 s{T}, s{r.sJ}, 1
    s_add_u32 s{T}, s{T}, s{r.sU1}
    s_lshl_b32 s{T}, s{T}, 7
    s_add_u32 s{T+2}, s{T+2}, s{T}""")
    for m in range(1, 4): a(f"s_xor_b32 s{T}, s{r.sKG}, {m}\ns_mul_i32 s{T}, s{T}, 2560\ns_add_u32 s{r.sPt+m}, s{T}, s{r.sQ}")
    def add(k, p):
        for h, S_ in enumerate((Sa, Sb)): a(f"{MF} {vr(acc[2*p+h])}, {S_}, {areg(2*k+p)}, {vr(acc[2*p+h])}")
    B = r.vB
    def stage0():
        a("WAITVM pc")
        for k in range(8): a(f"{MF16} {vr(accC)}, {I16}, {half(areg(14+k//2), k%2)}, {vr(accC) if k else 0}")
        for k in range(4): add(k, 0); add(k, 1)
        for e in range(4): a(f"v_fmac_f32 v{B+16+e}, v{accC+e}, v{r.vRs}")
        a(f"v_cvt_pk_bf16_f32 v{B+16}, v{B+16}, v{B+17}\nv_cvt_pk_bf16_f32 v{B+17}, v{B+18}, v{B+19}")
    c1, c2 = poll_check(F2, r.AT, r.SW, T + 5, f6, 4, "f51", slow)
    a(c1); a(f"s_add_u32 s{T+5}, s{T+5}, 1"); a(c2)
    a(st.text("e5"))
    for p in range(2):
        for m in range(1, 4): a(f"buffer_load_dwordx4 {areg(6+2*m+p)}, v{r.L16}, {srd(r.SW)}, s{r.sPt+m} offen offset:{1024*p} sc1 ; @pb{p}")
    stage0()
    a(f"buffer_store_dwordx2 {vr(B+16,2)}, v{vOC}, {srd(r.SO)}, s{T+1} offen offset:1024 {ost}")
    for p in range(2):
        a(f"WAITVM pb{p}")
        for m in range(1, 4): add(3 + m, p)
    for p in range(2):
        b = B + 8 * p
        for e in range(8): a(f"v_fmac_f32 v{b+e}, v{acc[2*p+e//4]+e%4}, v{r.vRs}")
        for e in (0, 2, 1, 3): a(f"v_cvt_pk_bf16_f32 v{r.STG+4*p+e}, v{b+2*e}, v{b+2*e+1}")
        b = r.STG + 4 * p
        a(f"v_permlane16_swap_b32 v{b}, v{b+2}\nv_permlane16_swap_b32 v{b+1}, v{b+3}")
        a(f"buffer_store_dwordx4 {vr(b)}, v{vO}, {srd(r.SO)}, s{T+2} offen offset:{64*p} {ost}")

def k_ffn(name="ffn_kernel", stamps=False, **kw):
    a = Asm(); r = ffn_regs(); slow = []
    st = Stamps(stamps, kid=2)
    a(f"s_cmp_ge_u32 s2, 256\ns_cbranch_scc1 {name}_end")
    a(st.text("start"))
    a(f"s_load_dwordx4 s[4:7], s[0:1], {ARG['wg']}\ns_load_dwordx4 s[8:11], s[0:1], {ARG['wd']}\ns_load_dwordx2 s[68:69], s[0:1], {ARG['ws']}")
    a(f"v_lshrrev_b32 v1, 6, v0\nv_readfirstlane_b32 s{r.sWv}, v1")
    a("v_and_b32 v1, 63, v0")
    ffn_setup1(a, r); ffn_setup2(a, r)
    a("v_mov_b32 v0, 1\ns_waitcnt lgkmcnt(0)")
    ffn_srds(a, r, 4, 8, 68)
    for n in range(5):
        for t, c in slab_ops(r, n): a(t)
    for t, c in wc_ops(r): a(t)
    a("s_waitcnt vmcnt(0)")
    for s in range(3):
        for t, c in frag_loads(r, lambda t: xreg(r, s, t), r.sX, s, f"x{s}", "sc1", r.sT + 3): a(t)
    ffn_main(a, r, st, slow, **kw)
    ffn_tail(a, r, st, slow, 10)
    if stamps:
        a("s_waitcnt vmcnt(0)"); a(st.text("end")); st.flush(a, r.SW, 2)
        if kw.get("fine"):
            a(f"s_lshl_b32 s4, s2, 2\ns_add_u32 s4, s4, s3\ns_lshl_b32 s4, s4, 10\ns_add_u32 s4, s4, {WS['STAMP'][0] + MB}\nbuffer_store_dwordx4 v[{r.TRA+8}:{r.TRA+11}], v{r.L16}, {srd(r.SW)}, s4 offen")
    a(f"{name}_end:\ns_endpgm")
    for s in slow: a(s)
    return (name, 256, 256, 159744), kernel_text(name, a), st.names

if __name__ == "__main__":
    k = k_ffn(stamps=True, verbose=True)
    open("ffn.s", "w").write(file_text([k[0]], [k[1]]))
```

```python
from common import *
import attn, ffn, sys
NAME = "sequential_preLN__linear_kernel_hedgehog__glu_gated_bilinear__prompt_kernel"

def k_mega(name=NAME, stamps=False, w2=(0, 1), w2b=(), w3a=(2,), w3b=(), ost='', prebar=False, e3bar=False, codepf=True, touch=dict(c8='gG', pp='uU', ffn='d'), hop=1, hopb=False, akw={}, a2kw={}, bkw={}, amp=None,
           only=("start", "c0", "kvg", "kvp", "o", "e2", "hc", "e3", "D", "E", "end"), **kw):
    a = Asm(); r = attn.a_regs(); f = ffn.ffn_regs(); slow = []
    st = Stamps(stamps or amp is not None, kid=0, only=only)
    a(st.text("start"))
    a(f"s_load_dwordx8 s[4:11], s[0:1], 0\ns_load_dwordx4 s[68:71], s[0:1], {ARG['dbg']}")
    a(f"s_cmp_ge_u32 s2, 256\ns_cbranch_scc1 L_end")
    if codepf:
        a(f"""s_getpc_b64 s[72:73]
        s_lshr_b32 s74, s2, 3
        s_lshl_b32 s74, s74, 11
        v_and_b32 v1, 15, v0
        v_lshlrev_b32 v1, 7, v1
        v_add_u32 v1, s74, v1
        v_min_u32 v1, L_code_end-{name}-64, v1
        global_load_dword v255, v1, s[72:73]""")
    r.touch = touch
    h = attn.phase_a(a, r, st, slow, hop=hop, **akw)
    attn.phase_a2(a, r, st, slow, h, attn.b_dma_ops(r, slow), **a2kw)
    c1, c2 = Cap(), Cap()
    ffn.ffn_setup1(c1, f, r.L, r.T, r.T + 1); ffn.ffn_srds(c1, f, 4, 8)
    ffn.ffn_setup2(c2, f, r.L, r.T + 2, r.T + 3); c2("v_mov_b32 v0, 1")
    def ops(l):
        o = []
        for n in l: o += [t for t, c in (ffn.wc_ops(f) if n == "wc" else ffn.slab_ops(f, n))]
        return o
    assert set(w2) <= {0, 1} and not w2b
    pre = list(w2) + list(w2b) + list(w3a) + list(w3b)
    npre = len([n for n in pre if n != "wc"])
    attn.phase_b(a, r, f, st, slow, (c1.items, c2.items), ops(w2), ops(w2b), ops(w3a), ops(w3b), **bkw)
    T = f.sT
    if hopb: a(hop_dispatch(f.sWv, "b") + "\nL_mainb:\ns_mov_b64 exec, -1")
    a(f"""s_lshl_b32 s{T}, s{f.sTB}, 2
    s_add_u32 s{T}, s{T}, s{f.sWv}
    s_lshl_b32 s{T}, s{T}, 9
    s_add_u32 s{T}, s{T}, {WS['FLAG'][0] + F_E3*128}
    v_lshlrev_b32 v1, 3, v{f.L16}
    s_mov_b32 s{T+1}, 0
    s_mov_b64 exec, 15
    {'s_barrier' if prebar else ''}
    L_e3:
    v_mov_b32 v{f.FL}, 0
    buffer_atomic_add v{f.FL}, v1, {srd(f.SW)}, s{T} offen sc0 sc1
    s_add_u32 s{T+1}, s{T+1}, 1
    s_waitcnt vmcnt(0)
    v_cmp_gt_u32 vcc, 8, v{f.FL}
    s_cmp_gt_u32 s{T+1}, 100000
    s_cbranch_scc1 L_e3ok
    s_cbranch_vccnz L_e3
    L_e3ok:
    s_mov_b64 exec, -1""")
    if e3bar: a("s_barrier")
    a(st.text("e3"))
    for s in range(kw.setdefault('nx0', 3)):
        for t, c in ffn.x_loads(f, s): a(t)
    ffn.ffn_main(a, f, st, slow, npre=npre, wcpre=("wc" in pre), sflag=r.sBT + 1, touch={k: attn.touches(r, k) for k in ('ffn', 'ffnx')}, **kw)
    ffn.ffn_tail(a, f, st, slow, 10, ost)
    if amp is not None:
        a("s_waitcnt vmcnt(0)"); a(st.text("end"))
        i, j, e = [st.base + 2 * st.names.index(n) for n in (amp[0], amp[1], "end")]
        a(f"s_waitcnt lgkmcnt(0)\ns_sub_u32 s4, s{j}, s{i}\ns_min_u32 s4, s4, 20000\ns_mul_i32 s4, s4, 10")
        a(f"L_amp:\ns_memrealtime s[6:7]\ns_waitcnt lgkmcnt(0)\ns_sub_u32 s5, s6, s{e}\ns_cmp_lt_u32 s5, s4\ns_cbranch_scc1 L_amp")
    if stamps:
        a("s_waitcnt vmcnt(0)"); a(st.text("end")); st.flush(a, f.SW, 2)
        if kw.get("fine"):
            a(f"s_lshl_b32 s4, s2, 2\ns_add_u32 s4, s4, s3\ns_lshl_b32 s4, s4, 10\ns_add_u32 s4, s4, {WS['STAMP'][0] + MB}\nbuffer_store_dwordx4 v[{f.TRA+8}:{f.TRA+11}], v{f.L16}, {srd(f.SW)}, s4 offen")
    a("L_end:\ns_endpgm")
    for s in slow: a(s)
    a("L_code_end:")
    return (name, 256, 256, 163840), kernel_text(name, a, hop=bool(hop), split='L_mainb' if hopb else None), st.names

HEAD = open("sequential_preLN__linear_kernel_hedgehog__glu_gated_bilinear__prompt.s.ref").read().split("; Override")[0] if __name__ == "__main__" else ""
def single_file(k):
    n, g, b, lds = k[0]
    return HEAD + f"; @launch grid=({g},1,1) block=({b},1,1) lds={lds}\n" + '.amdgcn_target "amdgcn-amd-amdhsa--gfx950"\n.text\n' + k[1][0] + '.section .rodata,"a"\n' + k[1][1]

if __name__ == "__main__":
    cfg = eval(sys.argv[2]) if len(sys.argv) > 2 else {}
    k = k_mega(**cfg)
    open(sys.argv[1] if len(sys.argv) > 1 else "mega.s", "w").write(single_file(k))
```

```python
import re

TRANS = ("v_exp_f32", "v_log_f32", "v_rcp_f32", "v_rsq_f32", "v_sqrt_f32", "v_sin_f32", "v_cos_f32", "v_rcp_iflag_f32")
REG_RE = re.compile(r"\b([vas])(?:(\d+)|\[(\d+):(\d+)\])")

def regs_of(tok):
    tok = tok.strip()
    out = set()
    for m in REG_RE.finditer(tok):
        k = m.group(1)
        if m.group(2) is not None:
            out.add((k, int(m.group(2))))
        else:
            for i in range(int(m.group(3)), int(m.group(4)) + 1):
                out.add((k, i))
    if re.search(r"\bvcc(_lo|_hi)?\b", tok): out.add(("x", "vcc"))
    if re.search(r"\bexec(_lo|_hi)?\b", tok): out.add(("x", "exec"))
    if re.search(r"\bm0\b", tok): out.add(("x", "m0"))
    return out

def split_ops(s):
    ops, depth, cur = [], 0, ""
    for ch in s:
        if ch in "[(": depth += 1
        if ch in "])": depth -= 1
        if ch == "," and depth == 0:
            ops.append(cur.strip()); cur = ""
        else:
            cur += ch
    if cur.strip(): ops.append(cur.strip())
    return ops

class Ins:
    __slots__ = ("text", "op", "cls", "w", "r", "ops", "srcc", "srcab", "passes", "states", "dpp", "sdwa", "lds_dma", "widestore", "data")
    def __init__(self, text):
        self.text = text
        t = text.split(";")[0].strip()
        parts = t.split(None, 1)
        self.op = op = parts[0]
        rest = parts[1] if len(parts) > 1 else ""
        ops = split_ops(rest)
        self.ops = ops
        self.w, self.r = set(), set()
        self.srcc, self.srcab, self.passes = set(), set(), 0
        self.states = 1
        self.dpp = "_dpp" in op or "row_" in rest or "quad_perm" in rest
        self.sdwa = "_sdwa" in op and "dst_sel:DWORD" not in rest
        self.lds_dma = False; self.widestore = False; self.data = set()
        R = [regs_of(o) for o in ops]
        allr = lambda i: set().union(*R[i:]) if len(R) > i else set()
        if op.startswith("v_mfma"):
            self.cls = "mfma"
            self.w = R[0]; self.srcab = R[1] | R[2]; self.srcc = R[3]; self.r = self.srcab | self.srcc
            self.passes = 8 if "32x32" in op else 4
        elif op.startswith("v_cmpx"):
            raise Exception("v_cmpx not supported by linter")
        elif op.startswith("v_cmp"):
            self.cls = "valu"; self.w = R[0]; self.r = allr(1)
        elif op.startswith("v_readfirstlane") or op.startswith("v_readlane"):
            self.cls = "valu"; self.w = R[0]; self.r = allr(1)
        elif op.startswith("v_permlane") and "swap" in op:
            self.cls = "valu"; self.w = R[0] | R[1]; self.r = R[0] | R[1]
        elif op.startswith("v_add_co") or op.startswith("v_addc_co") or op.startswith("v_sub_co") or op.startswith("v_subb_co") or op.startswith("v_div_scale") or op.startswith("v_mad_u64"):
            self.cls = "valu"; self.w = R[0] | R[1]; self.r = allr(2)
        elif op.startswith("v_nop"):
            self.cls = "valu"
        elif op.startswith("v_"):
            self.cls = "valu"; self.w = R[0]; self.r = allr(1)
            if op.startswith(("v_fmac", "v_dot2c", "v_pk_fmac", "v_writelane")) or self.dpp or self.sdwa or "d16" in op:
                self.r |= R[0]
            if op.startswith("v_div_fmas"): self.r.add(("x", "vcc"))
        elif op.startswith("ds_"):
            self.cls = "ds"
            if op.startswith(("ds_read", "ds_bpermute", "ds_permute", "ds_swizzle")) or "_rtn" in op:
                self.w = R[0]; self.r = allr(1)
                if "d16" in op: self.r |= R[0]
            else:
                self.r = allr(0)
        elif op.startswith(("buffer_", "global_")):
            self.cls = "vmem"
            if op in ("buffer_wbl2", "buffer_inv"):
                pass
            elif re.search(r"\blds\b", rest) or "load_lds" in op:
                self.lds_dma = True; self.r = allr(0) | {("x", "m0")}
            elif "_load" in op:
                self.w = R[0]; self.r = allr(1)
                if "d16" in op: self.r |= R[0]
            elif "atomic" in op:
                if op.startswith("buffer_"):
                    self.r = allr(0)
                    if re.search(r"\bsc0\b", rest): self.w = R[0]
                else:
                    if re.search(r"\bsc0\b", rest): self.w = R[0]; self.r = allr(1)
                    else: self.r = allr(0)
            else:
                self.r = allr(0)
                self.data = R[0] if op.startswith("buffer_") else R[1]
                if "x3" in op or "x4" in op: self.widestore = True
        elif op.startswith(("s_load", "s_buffer_load", "s_memtime", "s_memrealtime", "s_atomic")):
            self.cls = "smem"; self.w = R[0]; self.r = allr(1)
        elif op == "s_nop":
            self.cls = "nop"; self.states = int(ops[0], 0) + 1
        elif op.startswith(("s_waitcnt", "s_barrier", "s_endpgm", "s_setprio", "s_sleep", "s_branch", "s_cbranch")):
            self.cls = "ctl"
            if "vcc" in op: self.r = {("x", "vcc")}
            if "exec" in op: self.r = {("x", "exec")}
        elif op.startswith("s_cmp") or op.startswith("s_bitcmp"):
            self.cls = "salu"; self.r = allr(0)
        elif op.startswith("s_"):
            self.cls = "salu"; self.w = R[0] if R else set(); self.r = allr(1)
            if "saveexec" in op: self.w = self.w | {("x", "exec")}; self.r = self.r | {("x", "exec")}
            if op.startswith(("s_addk", "s_mulk", "s_cmov")): self.r |= R[0]
        else:
            raise Exception("unknown instruction: " + text)

def is_vec(rs): return {r for r in rs if r[0] in "va"}
def is_sc(rs): return {r for r in rs if r[0] == "s" or r == ("x", "vcc")}

def need(p, c):
    n = 0
    if p.cls == "valu":
        wv, ws = is_vec(p.w), is_sc(p.w)
        if wv:
            if c.cls == "mfma" and wv & c.r: n = max(n, 2)
            if c.cls == "valu":
                if c.op.startswith(("v_readlane", "v_readfirstlane")) and wv & c.r: n = max(n, 1)
                if c.dpp and wv & c.r: n = max(n, 2)
                if c.op.startswith("v_permlane") and wv & c.r: n = max(n, 2)
                if p.op.startswith(TRANS) and wv & c.r: n = max(n, 1)
                if p.sdwa and wv & (c.r | c.w): n = max(n, 1)
            if p.op.startswith("v_dot"):
                if wv & (c.r | c.w):
                    same_c = c.op == p.op and not (wv & (regs_of(c.ops[1]) | regs_of(c.ops[2])))
                    if not same_c: n = max(n, 3)
        if ws:
            if c.cls == "valu" and ws & c.r:
                n = max(n, 4 if c.op.startswith(("v_readlane", "v_writelane", "v_div_fmas")) else 2)
            if c.cls == "mfma" and ws & c.r: n = max(n, 2)
            if c.cls == "vmem" and ws & c.r: n = max(n, 5)
            if c.cls in ("salu", "smem") and ws & c.r: n = max(n, 3)
            if c.cls == "ctl" and ws & c.r: n = max(n, 3)
    if p.cls == "mfma":
        d = p.w
        big = p.passes == 8
        if c.cls == "mfma":
            if d & c.srcab: n = max(n, 12 if big else 8)
            if d & c.srcc:
                if not (c.srcc == d and c.op == p.op): n = max(n, 10 if big else 6)
            elif d & c.w:
                n = max(n, 10 if big else 6)
        elif c.cls in ("valu", "vmem", "ds"):
            if d & (c.r | c.w): n = max(n, 12 if big else 8)
        if c.cls == "valu" and p.srcc & c.w: n = max(n, 7 if big else 3)
    if p.cls == "vmem" and p.widestore:
        if p.data & c.w: n = max(n, 2 if c.cls in ("valu", "mfma") else 1)
    if p.cls == "salu" and ("x", "m0") in p.w:
        if c.lds_dma or "addtid" in c.op or c.op.startswith("s_movrel"): n = max(n, 1)
    return n

MAXD = 13

class Asm:
    def __init__(self):
        self.items = []
    def resolve_waits(self):
        out = []; vml = []; lgl = []
        total = {}
        for it in self.items:
            if isinstance(it, Ins):
                for tg in re.findall(r"@(\S+)", it.text): total[tg] = total.get(tg, 0) + 1
        vmdone = lgdone = 0
        for it in self.items:
            if isinstance(it, str) and it.startswith(("WAITVM", "WAITLG")):
                toks = it.split()
                parts = {}
                i = 0
                while i < len(toks):
                    kind, tag = toks[i], toks[i+1]; i += 2
                    q = vml if kind == "WAITVM" else lgl
                    idx = [n for n, t in enumerate(q) if tag in t]
                    assert idx, "no op tagged " + tag
                    assert len(idx) == total[tag], f"wait on {tag} placed before all its ops were issued"
                    last = idx[-1] + 1
                    done = vmdone if kind == "WAITVM" else lgdone
                    if last <= done: continue
                    n = len(q) - last
                    mx = 63 if kind == "WAITVM" else 15
                    n = min(n, mx)
                    if kind == "WAITVM": vmdone = len(q) - n; parts["vmcnt"] = n
                    else: lgdone = len(q) - n; parts["lgkmcnt"] = n
                if parts: out.append(Ins("s_waitcnt " + " ".join(f"{k}({v})" for k, v in parts.items())))
                continue
            if isinstance(it, Ins):
                tags = re.findall(r"@(\S+)", it.text)
                if it.cls == "vmem":
                    if "cond" not in tags: vml.append(tags)
                elif it.cls == "ds":
                    if "cond" not in tags: lgl.append(tags)
                elif it.op == "s_waitcnt" and "cond" not in tags:
                    m = re.search(r"vmcnt\((\d+)\)", it.text)
                    if m: vmdone = max(vmdone, len(vml) - int(m.group(1)))
                    m = re.search(r"lgkmcnt\((\d+)\)", it.text)
                    if m: lgdone = max(lgdone, len(lgl) - int(m.group(1)))
            out.append(it)
        self.items = out
    def __call__(self, s):
        for line in s.split("\n"):
            t = line.strip()
            if not t: continue
            if t.startswith((";", ".", "WAITVM", "WAITLG")) or re.match(r"^[\w.$]+:$", t):
                self.items.append(t)
            else:
                self.items.append(Ins(t))
    def raw(self, s): self.items.append(s)
    def pad(self):
        changed = True
        total = 0
        while changed:
            changed = False
            items = self.items
            labels = {it[:-1]: i for i, it in enumerate(items) if isinstance(it, str) and it.endswith(":") and not it.startswith(";")}
            brs = {}
            for i, it in enumerate(items):
                if isinstance(it, Ins) and it.op.startswith(("s_branch", "s_cbranch")):
                    brs.setdefault(it.ops[0], []).append(i)
            def back(i, dist, c, acc):
                j = i - 1
                while j >= 0 and dist < MAXD:
                    it = items[j]
                    if isinstance(it, str):
                        if it.endswith(":") and it[:-1] in brs:
                            for b in brs[it[:-1]]:
                                back(b, dist + 1, c, acc)
                        j -= 1; continue
                    if it.op in ("s_branch", "s_endpgm"): return
                    nd = need(it, c)
                    if nd > dist: acc[0] = max(acc[0], nd - dist)
                    dist += it.states
                    j -= 1
            out = []
            for i, it in enumerate(items):
                if isinstance(it, Ins) and it.cls not in ("nop",):
                    acc = [0]
                    back(i, 0, it, acc)
                    if acc[0] > 0:
                        items.insert(i, Ins(f"s_nop {acc[0]-1}"))
                        total += acc[0]
                        changed = True
                        break
        return total
    def pad_fast(self):
        total = 0
        for _ in range(50):
            items = self.items
            brs = {}
            for i, it in enumerate(items):
                if isinstance(it, Ins) and it.op.startswith(("s_branch", "s_cbranch")):
                    brs.setdefault(it.ops[0], []).append(i)
            extra = {}
            def back(i, dist, c, acc):
                j = i - 1
                while j >= 0 and dist < MAXD:
                    it = items[j]
                    if isinstance(it, str):
                        if it.endswith(":") and it[:-1] in brs:
                            for b in brs[it[:-1]]:
                                back(b, dist + 1 + extra.get(b, 0), c, acc)
                        j -= 1; continue
                    if it.op in ("s_branch", "s_endpgm"): return
                    nd = need(it, c)
                    if nd > dist: acc[0] = max(acc[0], nd - dist)
                    dist += it.states + extra.get(j, 0)
                    j -= 1
            for i, it in enumerate(items):
                if isinstance(it, Ins) and it.cls != "nop":
                    acc = [0]
                    back(i, 0, it, acc)
                    if acc[0] > 0: extra[i] = acc[0]
            if not extra: return total
            new = []
            for i, it in enumerate(items):
                if i in extra:
                    new.append(Ins(f"s_nop {extra[i]-1}")); total += extra[i]
                new.append(it)
            self.items = new
        raise Exception("pad did not converge")
    def verify_waits(self, name="", skip=False):
        items = self.items
        labels = {it[:-1]: i for i, it in enumerate(items) if isinstance(it, str) and it.endswith(":") and not it.startswith(";")}
        vm, lg = [], []
        taken = set()
        i = 0; errs = []
        while i < len(items):
            it = items[i]
            if isinstance(it, str): i += 1; continue
            if it.op == "s_endpgm":
                vm, lg = [], []; i += 1; continue
            if it.op == "s_waitcnt":
                t = it.text
                m = re.search(r"vmcnt\((\d+)\)", t)
                if m:
                    n = int(m.group(1)); assert n <= 63, t
                    while len(vm) > n: vm.pop(0)
                m = re.search(r"lgkmcnt\((\d+)\)", t)
                if m:
                    n = int(m.group(1)); assert n <= 15, t
                    if n == 0: lg = []
                    else:
                        while sum(k == "ds" for _, _, k in lg) > n:
                            lg.pop([k for _, _, k in lg].index("ds"))
                i += 1; continue
            touched = it.r | it.w
            for q in (vm, lg):
                for d, t, k in q:
                    if d & touched:
                        if not (d & it.r) and ((q is vm and it.cls == "vmem") or (q is lg and it.cls == "ds" and k == "ds")): continue
                        errs.append(f"{name}: '{it.text}' touches result of un-waited '{t}'")
            if it.cls == "vmem": vm.append((it.w, it.text, "vm"))
            elif it.cls == "ds": lg.append((it.w, it.text, "ds"))
            elif it.cls == "smem": lg.append((it.w, it.text, "smem"))
            if it.op.startswith(("s_branch", "s_cbranch")):
                if it.ops[0].startswith("L_hop"): i += 1; continue
                tgt = labels[it.ops[0]]
                if tgt < i and i not in taken:
                    taken.add(i); i = tgt; continue
                if (it.op == "s_branch" or (skip and tgt - i < 100)) and tgt > i:
                    i = tgt; continue
            i += 1
        return errs
    def text(self):
        out = []
        for it in self.items:
            out.append(it if isinstance(it, str) else "  " + it.text.split(";")[0].rstrip())
        return "\n".join(out) + "\n"
    def maxregs(self):
        mv = ma = ms = -1
        for it in self.items:
            if isinstance(it, Ins):
                for k, n in it.r | it.w:
                    if k == "v": mv = max(mv, n)
                    if k == "a": ma = max(ma, n)
                    if k == "s": ms = max(ms, n)
        return mv + 1, ma + 1, ms + 1

def insert_hops(name, a, split=None):
    import subprocess, tempfile, os
    d = tempfile.mkdtemp()
    open(d + "/k.s", "w").write('.amdgcn_target "amdgcn-amd-amdhsa--gfx950"\n.text\n' + f"{name}:\n" + a.text() + "".join(f"L_hop{x}{i}:\n" for i in range(1, 5) for x in ("", "b")))
    r = subprocess.run(["clang", "-x", "assembler", "-target", "amdgcn-amd-amdhsa", "-mcpu=gfx950", "-c", d + "/k.s", "-o", d + "/k.o"], capture_output=True, text=True)
    assert r.returncode == 0, r.stderr
    dis = subprocess.run(["llvm-objdump", "-d", "--mcpu=gfx950", d + "/k.o"], capture_output=True, text=True).stdout
    dis = dis[dis.index("<L_main>:"):]
    addrs = [int(m.group(1), 16) for m in re.finditer(r"// ([0-9A-F]{12}):", dis)]
    i0 = a.items.index("L_main:")
    base = addrs[0]; assert base % 4096 == 0
    pos = []; k = 0; page = 1; second = False; endseen = False; nslow = 0
    for i in range(i0, len(a.items)):
        it = a.items[i]
        if it == f"{split}:": second = True
        if endseen and isinstance(it, str) and it.endswith("_slow:"):
            nslow += 1
            if nslow % 3 == 1: pos.append((i + 1, second))
        if not isinstance(it, Ins): continue
        if not endseen and addrs[k] - base + 4 * len(pos) >= 4096 * page:
            pos.append((i, second)); page += 1
        if it.op == "s_endpgm": endseen = True
        k += 1
    assert k == len(addrs), (k, len(addrs))
    ins = {}
    for x, end in (("", "L_main"), ("b", "L_mainb")):
        l = [i for i, sec in pos if sec == (x == "b")]
        for n, i in enumerate(l):
            ins[i] = [f"L_hop{x}{n+1}:", Ins(f"s_cbranch_execz {'L_hop%s%d' % (x, n + 5) if n + 4 < len(l) else end}")]
        if x == "" or split:
            assert len(l) >= 4, "too few pages"
    out = []
    for i, it in enumerate(a.items):
        out += ins.get(i, []); out.append(it)
    a.items = out
    return len(pos)

def hop_dispatch(swave, x=""):
    t = "s_mov_b64 exec, 0\n"
    for w in range(3): t += f"s_cmp_eq_u32 s{swave}, {w}\ns_cbranch_scc1 L_hop{x}{w+1}\n"
    return t + f"s_branch L_hop{x}4"

def kernel_text(name, a, force_vgpr=None, hop=False, split=None):
    a.resolve_waits()
    npad = a.pad_fast()
    errs = a.verify_waits(name) + a.verify_waits(name + '(short branches taken)', True)
    if errs:
        for e in errs[:20]: print("WAIT ERROR", e)
        raise Exception("waitcnt verification failed")
    if hop: insert_hops(name, a, split)
    nv, na, ns = a.maxregs()
    acc_off = max(4, (nv + 3) // 4 * 4)
    nfv = acc_off + na if na else max(nv, 1)
    if force_vgpr: nfv = max(nfv, force_vgpr)
    assert nv <= 256 and na <= 256 and ns <= 102, (nv, na, ns)
    code = f".globl {name}\n.p2align 8\n.type {name},@function\n{name}:\n" + a.text()
    desc = f""".p2align 6
.amdhsa_kernel {name}
  .amdhsa_next_free_vgpr {nfv}
  .amdhsa_next_free_sgpr {max(ns, 8)}
  .amdhsa_accum_offset {acc_off}
  .amdhsa_group_segment_fixed_size 0
  .amdhsa_kernarg_size 88
  .amdhsa_user_sgpr_count 2
  .amdhsa_user_sgpr_kernarg_segment_ptr 1
  .amdhsa_system_sgpr_workgroup_id_x 1
  .amdhsa_float_denorm_mode_32 3
.end_amdhsa_kernel
"""
    ninst = sum(isinstance(it, Ins) for it in a.items)
    print(f"  {name}: {ninst} instr, v{nv} a{na} s{ns}, nop states inserted {npad}")
    return code, desc

def file_text(header_launches, kernels):
    out = ""
    for n, g, b, lds in header_launches:
        out += f"; @launch kernel={n} grid=({g},1,1) block=({b},1,1) lds={lds}\n"
    out += '.amdgcn_target "amdgcn-amd-amdhsa--gfx950"\n.text\n'
    for c, d in kernels: out += c
    out += '.section .rodata,"a"\n'
    for c, d in kernels: out += d
    return out


class Sched:
    def __init__(self, cap=2):
        self.mf = []; self.cap = cap
        self.streams = {}
        self.fixed = {}
        self.order = []; self.freefix = set()
    def n(self): return len(self.mf)
    def mfma(self, t): self.mf.append(t); return len(self.mf) - 1
    def fix(self, slot, t, free=False):
        self.fixed.setdefault(slot, []).append(t)
        if free: self.freefix.add(slot)
    def add(self, stream, earliest, deadline, t, cost=1):
        if stream not in self.streams: self.streams[stream] = []; self.order.append(stream)
        self.streams[stream].append([earliest, deadline, t, cost])
    def emit(self, a, prio=None, vmcost=2, twods=(), excl=True, minsp=(0, 0), rdfirst=()):
        prio = prio or self.order
        for s in self.order:
            assert s in prio, s
        pos = {s: 0 for s in self.order}
        late = 0; nextvm = 0
        N = len(self.mf)
        def adv(t, nd, text):
            for l in text.split("\n"):
                l = l.strip()
                if not l or l.endswith(":"): continue
                if l.startswith(("s_", "WAIT")): t += 1; continue
                if t == 1: t = 2
                t += vmcost if l.startswith(("buffer_", "global_")) else 2 if l.startswith(TRANS) else 1
                nd += l.startswith("ds_read")
            return t, nd
        for slot in range(N + 1):
            t, nd = 1, 0
            for x in self.fixed.get(slot, []): a(x); t, nd = adv(t, nd, x)
            for s in prio:
                q = self.streams.get(s, [])
                lastforced = -1
                for j in range(pos[s], min(len(q), pos[s] + 400)):
                    if q[j][1] is not None and q[j][1] <= slot: lastforced = j
                while pos[s] <= lastforced or (slot == N and pos[s] < len(q)):
                    e = q[pos[s]]
                    assert e[0] <= slot or slot == N, ("deadline before earliest", s, e, slot)
                    a(e[2]); t, nd = adv(t, nd, e[2]); pos[s] += 1
                    if t > 4 and slot < N: late += 1
            isvm = lambda x: "buffer_" in x or "global_" in x
            def head(s):
                q = self.streams.get(s, [])
                return q[pos[s]][2] if pos[s] < len(q) and q[pos[s]][0] <= slot else None
            if excl and t == 1 and slot < N:
                for s in prio:
                    x = head(s)
                    if x is None: continue
                    if isvm(x):
                        if slot >= nextvm or slot in twods:
                            a(x); pos[s] += 1; t = 4; nextvm = slot + (minsp[1] if "_store" in x else minsp[0])
                        break
                    if s == prio[0] and (not minsp[0] or slot in rdfirst): break
            while t < 4 and slot < N:
                best = None
                for pas in (0, 1):
                    for s in prio:
                        x = head(s)
                        if x is None or (excl and isvm(x) and slot not in twods): continue
                        tt, d = adv(t, nd, x)
                        if pas == 0 and not (t == 1 and tt == 2): continue
                        if (tt <= 4 or t == 1) and d <= (2 if slot in twods else 1): best = (s, tt, d); break
                    if best: break
                if not best: break
                s, t, nd = best
                a(self.streams[s][pos[s]][2]); pos[s] += 1
            if slot < N: a(self.mf[slot])
        return late
```

```python
from common import *
from common import _lab
MF16 = "v_mfma_f32_16x16x16_bf16"
OOB = 0x40000000
NLEAD = 10

WKV, XR, ZERO, PHI, DUMMY = 0, 92160, 157696, 158592, 161600
FK, VI = 0, 20480
WO, WO8, KVI = 0, 73728, 158592
XRES, XRES8 = 14336, 2560
QOFF = (4096, 6656, 9216, 11776, 0)

def a_regs():
    r = R()
    r.SX, r.SQ, r.SP, r.SO, r.SW, r.SDB = 12, 16, 20, 24, 28, 32
    r.sWv = 3
    r.sHP, r.sTB, r.sRot, r.sC, r.sXb, r.sWb, r.sXm, r.sWm = 36, 37, 38, 39, 40, 41, 42, 43
    r.sT = 44
    r.sU = 48
    r.sF1, r.sKVP, r.sG, r.sPS = 52, 53, 54, 55
    r.sM = 56
    r.sMX, r.sO0, r.sO1, r.sHv, r.sLd, r.sRS, r.sRP = 64, 65, 66, 76, 77, 73, 74
    r.sB, r.sTT, r.sBT = 67, 72, 68
    r.L = 1; r.J = 2; r.C = 3
    r.XD = 4; r.WD = 6; r.XRD = 9; r.TW = 11
    r.AT = 15; r.FL = 16; r.ONE = 17; r.T = 18
    r.ONES = 24
    r.WF = 28
    r.WB = 68
    r.AK = 108; r.AS = 168; r.RS = 184; r.NM = 186
    r.PK = 188; r.FQ = 208
    names = "AV AM AF AV3 AF3 PS0 PS1 PS2 BP MX C1 TQ TQM PL KW K4a TG TG1 TG2 DUM".split()
    for k, n in enumerate(names): setattr(r, n, 228 + k)
    r.U = 248
    r.K4b, r.OS0, r.OS1 = 252, 253, 254
    r.afl = ''; r.npre_w = 12; r.repf = {}
    r.touch = {}
    r.aX = 0; r.aPH = 144; r.aP = 176; r.aSEL = 240
    return r

def xa(r, p, t): return vr(r.aX + 8 * p + 4 * t, 4, "a")

def touches(r, where):
    P = dict(g=(4, 0), u=(6, 0), G=(4, 1), U=(6, 1), d=(8, 2))
    return [f"buffer_load_dword v{r.DUM}, v{r.WB+36}, {srd(r.SO)}, 0 offen" if c == "o" else
            f"global_load_dword v{r.DUM}, v{r.TG+P[c][1]}, s[{P[c][0]}:{P[c][0]+1}]" for c in r.touch.get(where, "")]

def hop_here(a, w):
    a(hop_dispatch(w)); a.raw(".p2align 12"); a("L_main:\ns_mov_b64 exec, -1\ns_nop 1")

def phase_a(a, r, st, slow, LA=2, A=2, gaps=([0, 5, 9, 14], [2, 8, 14]), exp='', hop=0, qw=180, rot=(1, 0, 1), pdelay=600, rp8=False, et=(-1, ''), rplate=False, clrat=1, pf=None, nearly=29, rpat=15, gexcl=True, finew=True, tsil=0):
    T, U, V = r.sT, r.sU, r.T; w = r.sWv; WB = r.WB
    la = A.bit_length() - 1
    assert A == 2 and rot == (1, 0, 1)
    a(f"""v_lshrrev_b32 v{V}, 6, v0
    v_bfe_u32 v{r.C}, v0, 4, 2
    v_readfirstlane_b32 s{w}, v{V}
    s_and_b32 s{U}, s2, 7
    s_lshr_b32 s{r.sTB}, s2, 4
    s_add_u32 s{T}, s{U}, s{r.sTB}
    s_mul_i32 s{T+1}, s{T}, 57
    s_lshr_b32 s{T+1}, s{T+1}, 9
    s_mul_i32 s{T+1}, s{T+1}, 9
    s_sub_u32 s{r.sRot}, s{T}, s{T+1}
    v_bfe_u32 v{V}, v0, 3, 3
    v_and_b32 v{V+1}, 7, v0
    v_xor_b32 v{V+1}, v{V+1}, v{r.C}
    v_mul_u32_u24 v{V+2}, 1152, v{V}
    v_lshl_add_u32 v{r.XD}, v{V+1}, 4, v{V+2}
    v_xor_b32 v{r.XD+1}, 64, v{r.XD}
    v_add_u32 v{r.XD+1}, {8*1152-1024}, v{r.XD+1}
    s_lshl2_add_u32 s{T}, s{r.sTB}, s{w}
    s_mul_i32 s{r.sXb}, s{T}, {32*1152}
    s_lshl_b32 s{r.sXm}, s{w}, 14
    s_add_u32 s{r.sXm}, s{r.sXm}, {XR}
    s_mov_b32 s{r.SX+2}, {SZ['x']}
    s_mov_b32 s{r.SX+3}, 0x20000
    s_mov_b32 s{r.sC}, s{r.sRot}""")
    def x_dma(n, k=0):
        m0 = f"s_add_u32 m0, s{r.sXm}, {4096*(n%4)}\n"
        o = [f"s_lshl_b32 s{T+k}, s{r.sC}, 7\ns_add_u32 s{T+k}, s{T+k}, s{r.sXb}", ("" if k else m0) + f"s_add_u32 s{T+k+1}, s{T+k}, {16*1152-2048}"]
        for i in range(4):
            o.append((m0 if k else "") + f"buffer_load_dwordx4 v{r.XD+i%2}, {srd(r.SX)}, s{T+k+i//2} offen offset:{1024*i} {r.afl} lds ; @c{n}")
        return o
    def w3(tag, m0=""):
        o = [m0 + f"buffer_load_dwordx4 v{r.WD+p}, {srd(r.SQ)}, s{T} offen offset:{1024*p} {r.afl} lds ; @{tag}" for p in range(2)]
        o.append(m0 + f"s_mov_b32 exec_hi, 0\nbuffer_load_dwordx4 v{r.WD+2}, {srd(r.SQ)}, s{T} offen offset:2048 {r.afl} lds ; @{tag}\ns_mov_b64 exec, -1")
        return o
    def w_dma(n, each=False):
        m0 = f"s_add_u32 m0, s{r.sWm}, {WKV + 10240*n}\n"
        o = [("" if each else m0) + f"s_mul_i32 s{T}, s{r.sC}, {64*3456}", f"s_add_u32 s{T}, s{T}, s{r.sWb}\ns_add_u32 s{r.sC}, s{r.sC}, 1"]
        return o + w3(f"c{n}", m0 if each else "") + [f"s_cmp_eq_u32 s{r.sC}, 9\ns_cselect_b32 s{r.sC}, 0, s{r.sC}"]
    x0 = x_dma(0)
    emit(a, x0[:2]); a("s_waitcnt lgkmcnt(0)"); a(st.text("ka")); emit(a, x0[2:])
    a(f"""s_bfe_u32 s{T+1}, s2, 0x10003
    s_lshl1_add_u32 s{r.sHP}, s{U}, s{T+1}
    s_mov_b32 s{r.SQ+2}, {SZ['wqkv']}
    s_mov_b32 s{r.SQ+3}, 0x20000
    s_and_b32 s{T}, s{w}, 2
    s_and_b32 s{T+1}, s{w}, 1
    s_lshl2_add_u32 s{T}, s{T}, s{T+1}
    s_mul_i32 s{T}, s{T}, {4*3456}
    s_mul_i32 s{T+1}, s{r.sHP}, 72
    s_and_b32 s{T+1}, s{T+1}, -16
    s_add_u32 s{T}, s{T}, s{T+1}
    s_movk_i32 s{U}, 3456
    s_movk_i32 s{U+1}, 1152
    s_add_u32 s{r.sWb}, s{T}, s{U+1}
    s_mul_i32 s{r.sWm}, s{w}, 2560
    v_and_b32 v{r.L}, 63, v0""")
    W_ = V + 3; w0 = w_dma(0)
    emit(a, w0[:2])
    for p in range(3):
        if p: a(f"v_add_u32 v{W_}, {64*p}, v{r.L}")
        src = W_ if p else r.L
        a(f"""v_mul_u32_u24 v{W_+1}, 205, v{src}
        v_lshrrev_b32 v{W_+1}, 10, v{W_+1}
        v_mad_i32_i24 v{W_}, v{W_+1}, -5, v{r.L}
        v_lshlrev_b32 v{W_}, 4, v{W_}
        v_and_b32 v{r.U+p}, 1, v{W_+1}
        v_mad_u32_u24 v{W_}, v{r.U+p}, s{U+1}, v{W_}
        v_bfe_u32 v{W_+2}, v{W_+1}, 1, 2
        v_and_or_b32 v{W_+1}, v{W_+1}, 56, v{W_+2}
        v_mad_u32_u24 v{r.WD+p}, v{W_+1}, s{U}, v{W_}""")
        a(w0[2 + p])
    a(w0[5])
    a(st.text("c0i"))
    if pf: a(pf)
    mk_srd(a, r.SO, 10, SZ['wo'])
    W8 = r.PK
    a(f"""s_lshr_b32 s{T}, s{r.sHP}, 3
    s_xor_b32 s{T}, s{T}, s{r.sHP}
    s_and_b32 s{T}, s{T}, 1
    s_andn2_b32 s{T+1}, 2, s{w}
    s_or_b32 s{T}, s{T}, s{T+1}
    s_lshr_b32 s{T+2}, s{r.sHP}, 1
    s_lshl3_add_u32 s{T+1}, s{r.sTB}, s{T+2}
    s_cmp_lg_u32 s{T}, 0
    s_cselect_b32 s{r.sG}, 72, s{T+1}
    v_and_b32 v{r.J}, 15, v0
    s_cmp_ge_u32 s{r.sG}, 72
    s_cbranch_scc1 L_wb1
    s_and_b32 s{T}, s{w}, 1
    s_lshr_b32 s{U}, s{r.sG}, 1
    s_mul_i32 s{U}, s{U}, 18
    s_and_b32 s{U+1}, s{r.sG}, 1
    s_lshl2_add_u32 s{U}, s{U+1}, s{U}
    s_lshl3_add_u32 s{U}, s{T}, s{U}
    s_sub_u32 s{U+1}, s{r.sG}, 64
    s_lshl1_add_u32 s{U+1}, s{U+1}, s{T}
    s_mul_i32 s{U+1}, s{U+1}, 36
    s_add_u32 s{U+1}, s{U+1}, 16
    s_cmp_lt_u32 s{r.sG}, 64
    s_cselect_b32 s{U}, s{U}, s{U+1}
    s_cselect_b32 s{U+1}, 0, 16
    s_mul_i32 s{U}, s{U}, 1152
    v_lshrrev_b32 v{V}, 1, v{r.C}
    v_mad_u32_u24 v{V}, v{V}, s{U+1}, v{r.C}
    v_mul_u32_u24 v{V}, 1152, v{V}
    v_lshl_add_u32 v{V+1}, v{r.J}, 4, v{V}
    v_lshl_add_u32 v{V}, v{r.J}, 3, v{V}
    v_bfe_u32 v{V+2}, v{r.L}, 1, 2
    v_bfe_u32 v{V+3}, v{r.L}, 2, 1
    v_mad_u32_u24 v{V+2}, v{V+3}, s{U+1}, v{V+2}
    v_mul_u32_u24 v{V+2}, 1152, v{V+2}
    v_lshrrev_b32 v{V+3}, 3, v{r.L}
    v_lshl_add_u32 v{V+2}, v{V+3}, 4, v{V+2}""")
    for i in range(4): a(f"buffer_load_dwordx4 {vr(WB+4*i)}, v{V+1}, {srd(r.SO)}, s{U} offen offset:{256*i} ; @cond")
    a(f"buffer_load_dwordx2 {vr(WB+16,2)}, v{V}, {srd(r.SO)}, s{U} offen offset:1024 ; @cond")
    a(f"buffer_load_dwordx4 {vr(W8)}, v{V+2}, {srd(r.SO)}, s{U} offen offset:1024 ; @cond")
    a("L_wb1:")
    mk_srd(a, r.SW, 70, 64 * MB); mk_srd(a, r.SP, 8, SZ['wphi']); mk_srd(a, r.SDB, 68, 256)
    a(f"""s_load_dwordx8 s[4:11], s[0:1], {ARG['wg']}
    s_sub_u32 s{U+1}, s{r.sTB}, 6
    s_xor_b32 s{U}, s{w}, 1
    s_or_b32 s{U}, s{U}, s{r.sHP}
    s_cselect_b32 s{r.sLd}, -1, s{U+1}
    s_lshl_b32 s{U}, s{r.sLd}, 10
    s_add_u32 s{U}, s{U}, {WS['FLAG'][0]}
    s_cmp_lt_u32 s{r.sLd}, {NLEAD}
    s_cselect_b32 s{U}, s{U}, {OOB}
    v_lshlrev_b32 v{r.OS0}, 4, v{r.L}
    v_mov_b32 v{r.AS}, 0
    v_mov_b32 v{r.AS+1}, 0
    v_mov_b32 v{r.AS+2}, 0
    v_mov_b32 v{r.AS+3}, 0
    buffer_store_dwordx4 {vr(r.AS)}, v{r.OS0}, {srd(r.SW)}, s{U} offen sc1 ; @clr
    v_lshlrev_b32 v{V}, 2, v0
    s_mul_i32 s{U}, s{r.sHP}, 1296
    buffer_load_dword v{WB+36}, v{V}, {srd(r.SP)}, s{U} offen ; @phi
    buffer_load_dword v{WB+37}, v{V}, {srd(r.SP)}, s{U} offen offset:1024 ; @phi
    v_bfe_u32 v{V}, v0, 1, 3
    v_xor_b32 v{V}, v{V}, v{r.C}
    v_lshlrev_b32 v{V+1}, 7, v{r.J}
    v_add_u32 v{V+1}, s{r.sXm}, v{V+1}
    v_lshl_add_u32 v{r.XRD}, v{V}, 4, v{V+1}
    v_xor_b32 v{r.XRD+1}, 64, v{r.XRD}
    v_lshrrev_b32 v{V}, 2, v{r.L}
    v_mul_u32_u24 v{V}, 160, v{V}
    s_and_b32 s{U}, s{r.sHP}, 1
    s_lshl_b32 s{U}, s{U}, 3
    v_add_u32 v{V}, s{U}, v{V}
    v_add_u32 v{r.TQM}, {XR + 64}, v{V}
    v_and_b32 v{V+1}, 3, v{r.L}
    v_lshl_add_u32 v{r.TW}, v{V+1}, 3, v{V}
    v_and_b32 v{V+1}, 1, v{r.L}
    v_mul_u32_u24 v{V+1}, 48, v{V+1}
    v_add3_u32 v{r.TW+1}, v{V}, v{V+1}, 64
    v_add_u32 v{r.TW+2}, 51200, v{r.TW}
    v_add_u32 v{r.TW+3}, 51200, v{r.TW+1}
    v_lshlrev_b32 v{V}, 4, v0
    v_add_u32 v{V}, {ZERO}, v{V}
    ds_write_b128 v{V}, {vr(r.AS)}""")
    for i in range(4): a(f"v_mov_b32 v{r.ONES+i}, {0 if 'z' in exp else 0x3f803f80}")
    if hop == 1: hop_here(a, w)
    for n in range(1, LA): emit(a, x_dma(n) + w_dma(n))
    if hop == 2: hop_here(a, w)
    a(st.text("pre"))
    def early(which):
        o = []
        if "q" in which:
            assert A == 2
            o += lines(f"""s_lshr_b32 s{U}, s2, 3
            s_lshl_b32 s{U}, s{U}, 2
            s_add_u32 s{U}, s{U}, s{w}
            s_mul_i32 s{U}, s{U}, 9
            v_min_u32 v{V}, 8, v{r.L}
            v_add_u32 v{V}, s{U}, v{V}
            v_lshrrev_b32 v{V+1}, 1, v{V}
            v_mul_u32_u24 v{V+1}, {3456-256}, v{V+1}
            v_lshl_add_u32 v{V}, v{V}, 7, v{V+1}
            s_and_b32 s{U}, s2, 7
            s_lshl_b32 s{U}, s{U}, 7
            buffer_load_dword v{r.DUM}, v{V}, {srd(r.SQ)}, s{U} offen""")
        if "w" in which:
            o += lines(f"""s_lshl_b32 s{U}, s2, 2
            s_add_u32 s{U}, s{U}, s{w}
            s_mul_i32 s{U}, s{U}, 648
            v_min_u32 v{V}, 5, v{r.L}
            v_lshlrev_b32 v{V}, 7, v{V}
            buffer_load_dword v{r.DUM}, v{V}, {srd(r.SO)}, s{U} offen""")
        return o
    if et[0] < 0: emit(a, early(et[1]))
    F = {}
    f = ["WAITVM phi"]
    for i in range(2):
        f += lines(f"""v_add_u32 v{V}, {256*i}, v0
        v_mul_u32_u24 v{V+1}, 7282, v{V}
        v_lshrrev_b32 v{V+1}, 16, v{V+1}
        v_add_lshl_u32 v{V+1}, v{V+1}, v{V}, 2
        v_add_u32 v{V+1}, {PHI}, v{V+1}
        v_xor_b32 v{V+2}, 0x80008000, v{WB+36+i}""")
        if i: f += lines(f"v_cmp_gt_u32 vcc, 324, v{V}\nv_mov_b32 v{V+3}, {DUMMY}\nv_mov_b32 v{r.ONE}, 1\nv_cndmask_b32 v{V+1}, v{V+3}, v{V+1}, vcc")
        f += lines(f"ds_write_b32 v{V+1}, v{WB+36+i}\nds_write_b32 v{V+1}, v{V+2} offset:1440")
    f += lines(f"v_cmp_eq_u32 vcc, 0, v{r.L}\nv_mov_b32 v{V}, {OOB}") + [f"s_cmp_lt_u32 s{r.sLd}, {NLEAD}\ns_cselect_b32 s{U}, 0, {OOB}", f"v_cndmask_b32 v{r.AT}, v{V}, 0, vcc",
          f"buffer_atomic_add v{r.ONE}, v{r.AT}, {srd(r.SDB)}, s{U} offen sc1"]
    F[1] = f
    wbt = f"s_cmp_ge_u32 s{r.sG}, 72\ns_cbranch_scc1 L_wb2\nv_mov_b32 v{V}, 0\nv_mov_b32 v{V+1}, 0\n"
    for i in range(18): wbt += f"v_dot2_f32_bf16 v{V+i%2}, v{WB+i}, v{r.ONES}, v{V+i%2}\n"
    wbt += f"""s_and_b32 s{U}, s{r.sG}, -4
    s_add_u32 s{U}, s{U}, s{r.sG}
    s_and_b32 s{U+1}, s{w}, 1
    v_add_f32 v{V}, v{V}, v{V+1}
    s_lshl2_add_u32 s{U}, s{U+1}, s{U}
    s_lshl_b32 s{U}, s{U}, 7
    v_add_f32_dpp v{V}, v{V}, v{V} quad_perm:[1,0,3,2] row_mask:0xf bank_mask:0xf
    s_add_u32 s{U}, s{U}, {WS['W8'][0]}
    v_and_b32 v{V+1}, 1, v{r.L}
    v_add_f32_dpp v{V}, v{V}, v{V} quad_perm:[2,3,0,1] row_mask:0xf bank_mask:0xf
    v_cmp_eq_u32 vcc, 1, v{V+1}
    v_and_b32 v{V+1}, 6, v{r.L}
    v_add_f32_dpp v{V}, v{V}, v{V} row_half_mirror row_mask:0xf bank_mask:0xf
    v_lshlrev_b32 v{V+1}, 5, v{V+1}
    v_lshrrev_b32 v{V+3}, 3, v{r.L}
    v_add_f32_dpp v{V}, v{V}, v{V} row_mirror row_mask:0xf bank_mask:0xf
    v_mul_f32 v{V}, 0x3ae38e39, v{V}
    v_cvt_pk_bf16_f32 v{V}, v{V}, v{V}
    ds_bpermute_b32 v{V+2}, v{V+1}, v{V} ; @cond
    v_mul_u32_u24 v{V+3}, {18432-128}, v{V+3}
    v_add_u32 v{V+3}, v{V+3}, v{r.OS0}
    s_waitcnt lgkmcnt(0) ; @cond
    """ + "".join(f"v_cndmask_b32 v{W8+k}, v{W8+k}, v{V+2}, vcc\n" for k in range(4)) + f"""
    buffer_store_dwordx4 {vr(W8)}, v{V+3}, {srd(r.SW)}, s{U} offen sc1 ; @cond
    L_wb2:"""
    F[2] = [wbt]
    PA = r.WB + 20
    phif = lines(f"""v_lshrrev_b32 v{V}, 2, v{r.L}
    v_and_b32 v{V+2}, 1, v{r.L}
    v_mul_u32_u24 v{V+2}, 1440, v{V+2}
    v_mad_u32_u24 v{V+1}, v{V}, 40, v{V+2}
    v_bfe_u32 v{V+2}, v{r.L}, 1, 1
    v_mul_u32_u24 v{V+2}, 18, v{V+2}
    v_sub_u32 v{V}, v{V}, v{V+2}
    v_mov_b32 v{V+2}, {ZERO}""")
    for hh in range(3):
        phif += lines(f"v_cmp_gt_u32 vcc, 18, v{V}\nv_add_u32 v{V+1}, {640 if hh else PHI}, v{V+1}\nv_add_u32 v{V}, 16, v{V}\nv_cndmask_b32 v{PA+hh}, v{V+2}, v{V+1}, vcc")
    phir = [f"ds_read_b64_tr_b16 {vr(r.aPH + 6*T2 + 2*hh, 2, 'a')}, v{PA+hh} offset:{8*T2}" for hh in range(3) for T2 in range(5)]
    M = r.sM
    F[4] = lines(f"""v_and_b32 v{V}, 3, v{r.J}
    v_cmp_eq_u32 s[{M}:{M+1}], 1, v{V}
    v_cmp_eq_u32 s[{M+2}:{M+3}], 2, v{V}
    v_cmp_eq_u32 s[{M+4}:{M+5}], 3, v{V}
    v_cmp_eq_u32 s[{M+6}:{M+7}], 1, v{r.C}
    v_lshrrev_b32 v{V}, 2, v{r.J}
    v_lshl_add_u32 v{V}, v{V}, 4, v{r.J}
    v_lshlrev_b32 v{r.BP}, 2, v{V}
    s_lshl_b32 s{U}, s{r.sTB}, 2
    s_add_u32 s{U}, s{U}, s{w}
    s_lshl_b32 s{U+1}, s{U}, 7
    s_add_u32 s{U+1}, s{U+1}, {WS['MUX'][0]}""") + [f"s_cmp_eq_u32 s{r.sHP}, 0\ns_cselect_b32 s{r.sMX}, s{U+1}, {OOB}"] + lines(f"""v_lshlrev_b32 v{V}, 2, v{r.J}
    v_lshl_add_u32 v{r.MX}, v{r.C}, 28, v{V}
    s_mul_i32 s{U}, s{U}, {2*18*1024}
    s_add_u32 s{U}, s{U}, {WS['O'][0]}
    s_lshl_b32 s{U+1}, s{r.sHP}, 10
    s_add_u32 s{r.sO0}, s{U+1}, s{U}
    s_lshr_b32 s{U+1}, s{r.sHP}, 3
    s_lshl_b32 s{U+1}, s{U+1}, 10
    s_add_u32 s{U}, s{U}, s{U+1}
    s_and_b32 s{U+1}, s{r.sHP}, 1
    s_lshl_b32 s{U+1}, s{U+1}, 9
    s_add_u32 s{U}, s{U}, s{U+1}
    s_bfe_u32 s{U+1}, s{r.sHP}, 0x20001
    s_lshl_b32 s{U+1}, s{U+1}, 7
    s_add_u32 s{U}, s{U}, s{U+1}
    s_add_u32 s{r.sO1}, s{U}, 16384
    v_mul_u32_u24 v{V+1}, 9216, v{r.C}
    v_lshl_add_u32 v{V+1}, v{r.J}, 3, v{V+1}
    v_and_b32 v{V}, 1, v{r.C}
    v_lshl_add_u32 v{r.OS1}, v{V}, 30, v{V+1}
    s_lshl_b32 s{U}, s{w}, 5
    v_add_u32 v{V}, s{U}, v{r.J}
    v_mul_u32_u24 v{r.AV}, 96, v{V}
    v_add_u32 v{V+1}, 3, v{r.C}
    v_and_b32 v{V+1}, 3, v{V+1}
    v_lshl_add_u32 v{r.AM}, v{V+1}, 3, v{r.AV}
    v_lshl_add_u32 v{r.AV}, v{r.C}, 3, v{r.AV}
    v_mul_u32_u24 v{r.AF}, 160, v{V}
    v_cmp_eq_u32 vcc, 2, v{r.C}
    v_mad_u32_u24 v{r.AF}, v{r.C}, 40, v{r.AF}
    v_mov_b32 v{V+1}, 0x3f80
    v_cndmask_b32 v{r.C1}, 0, v{V+1}, vcc""")
    F[5] = lines(f"""v_lshrrev_b32 v{V}, 2, v{r.L}
    v_and_b32 v{V+1}, 3, v{r.L}
    v_mul_u32_u24 v{r.AV3}, 96, v{V}
    v_lshl_add_u32 v{r.AV3}, v{V+1}, 3, v{r.AV3}
    s_min_u32 s{U}, s{w}, 2
    s_lshl_b32 s{U}, s{U}, 5
    v_add_u32 v{r.AV3}, s{U}, v{r.AV3}
    s_and_b32 s{U+1}, s{w}, 1
    s_lshl_b32 s{U}, s{U+1}, 3
    s_and_b32 s{U+2}, s{r.sHP}, 1
    s_sub_u32 s{U}, s{U}, s{U+2}
    s_lshl_b32 s{U}, s{U}, 3
    v_add_u32 v{r.AF3}, s{U}, v{r.TW}
    v_add_u32 v{r.TQ}, {XR}, v{r.TW}
    s_mul_i32 s{U+2}, s{U+1}, 1280
    v_mul_u32_u24 v{V}, 160, v{r.C}
    v_add_u32 v{V}, s{U+2}, v{V}
    s_lshl_b32 s{U+2}, s{U+1}, 1
    v_add_u32 v{V+1}, s{U+2}, v{r.J}
    v_subrev_u32 v{V+2}, s{U+2}, v{r.J}
    s_lshl_b32 s{U+3}, s{U+1}, 4
    s_xor_b32 s{U+3}, s{U+3}, 16
    v_cmp_gt_u32 vcc, 2, v{V+2}
    v_add_u32 v{V+2}, s{U+3}, v{V+2}
    v_mov_b32 v{V+3}, {OOB >> 3}
    v_cndmask_b32 v{V+2}, v{V+3}, v{V+2}, vcc
    v_subrev_u32 v{V+3}, 4, v{r.J}
    v_cmp_gt_u32 vcc, 2, v{V+3}
    v_add_u32 v{V+3}, 18, v{V+3}
    s_lshl_b32 s{U+2}, s{r.sHP}, 16
    v_cndmask_b32 v{V+2}, v{V+2}, v{V+3}, vcc""") + [f"s_cmp_lt_u32 s{w}, 2\ns_cselect_b64 vcc, -1, 0"] + lines(f"""v_cndmask_b32 v{V+1}, v{V+2}, v{V+1}, vcc
    v_lshl_add_u32 v{r.PS1}, v{V+1}, 3, v{V}
    v_lshrrev_b32 v{V+1}, 1, v{r.C}
    v_cmp_le_u32 vcc, s{U+1}, v{V+1}
    v_mov_b32 v{V+3}, {OOB}
    s_add_u32 s{r.sKVP}, s{U+2}, {WS['KVP'][0]}
    v_cndmask_b32 v{r.PS0}, v{V+3}, v{r.PS1}, vcc
    v_cmp_ge_u32 vcc, s{U+1}, v{V+1}
    s_lshl_b32 s{U+2}, s{r.sTB}, 12
    s_add_u32 s{r.sPS}, s{U+2}, s{r.sKVP}
    v_cndmask_b32 v{r.PS2}, v{V+3}, v{r.PS1}, vcc
    s_lshl_b32 s{U}, s{r.sHP}, 7
    s_add_u32 s{U}, s{U}, {WS['FLAG'][0] + F_E1*128}""") + [f"s_cmp_eq_u32 s{w}, 0\ns_cselect_b32 s{r.sF1}, s{U}, {OOB}",
          f"s_bitcmp1_b32 s{w}, 0\ns_cselect_b32 s{U}, 72, s{r.sG}\ns_cmp_ge_u32 s{U}, 72\ns_cbranch_scc1 L_wb3\nbuffer_atomic_add v{r.ONE}, v{r.AT}, {srd(r.SDB)}, 0 offen offset:128 sc1 ; @cond\nL_wb3:"]
    f = lines(f"v_and_b32 v{V}, 1, v{r.J}\nv_lshlrev_b32 v{V}, 4, v{V}\nv_mov_b32 v{V+1}, 0x3f80\nv_lshlrev_b32 v{V}, v{V}, v{V+1}\nv_bfe_u32 v{V+1}, v{r.J}, 1, 2")
    for e in range(4):
        f += lines(f"v_cmp_eq_u32 vcc, {e}, v{V+1}\nv_cndmask_b32 v{V+2}, 0, v{V}, vcc\nv_accvgpr_write_b32 a{r.aSEL+e}, v{V+2}")
    f += lines(f"""v_lshlrev_b32 v{r.PL}, 12, v{r.C}
    v_lshl_add_u32 v{r.PL}, v{r.J}, 4, v{r.PL}
    s_lshl_b32 s{U}, s{w}, 8
    s_add_u32 s{r.sKVP}, s{r.sKVP}, s{U}
    v_and_b32 v{V}, 1, v{r.C}
    v_lshlrev_b32 v{V}, 3, v{V}
    v_lshl_add_u32 v{V}, v{r.J}, 4, v{V}
    s_add_u32 s{U}, s{U}, {KVI}
    v_add_u32 v{r.KW}, s{U}, v{V}
    v_mul_u32_u24 v{V+1}, 800, v{r.C}
    v_add_u32 v{V+1}, {KVI}, v{V+1}
    v_and_b32 v{V+2}, 7, v{r.J}
    v_lshl_add_u32 v{V+2}, v{V+2}, 3, v{V+1}
    v_and_b32 v{V+3}, 3, v{r.J}
    v_lshl_add_u32 v{V+3}, v{V+3}, 3, v{V+1}
    v_lshrrev_b32 v{V+1}, 3, v{r.J}
    v_lshrrev_b32 v{V}, 1, v{r.C}
    v_cmp_eq_u32 vcc, v{V+1}, v{V}
    v_mov_b32 v{V+1}, {ZERO}
    v_mov_b32 v{r.FQ+9}, 0
    v_cndmask_b32 v{r.K4a}, v{V+1}, v{V+2}, vcc
    v_cndmask_b32 v{r.K4b}, v{V+1}, v{V+3}, vcc
    v_mov_b32 v{r.FQ+19}, 0""")
    F[6] = f
    F[7] = lines(f"""s_lshr_b32 s{U}, s2, 3
    s_lshl_b32 s{U}, s{U}, 2
    s_add_u32 s{U}, s{U}, s{w}
    s_and_b32 s{U+1}, s2, 7
    s_mul_i32 s{U+3}, s{U+1}, 1152
    s_mul_i32 s{U+2}, s{U}, 18
    v_min_u32 v{V}, 17, v{r.L}
    v_add_u32 v{V}, s{U+2}, v{V}
    v_lshrrev_b32 v{V+1}, 2, v{V}
    v_mul_u32_u24 v{V+1}, {9216-1024}, v{V+1}
    v_lshl_add_u32 v{V+1}, v{V}, 8, v{V+1}
    v_add_u32 v{r.TG}, s{U+3}, v{V+1}
    v_add_u32 v{r.TG+1}, 128, v{r.TG}
    s_mul_i32 s{U+2}, s{U}, 36
    v_min_u32 v{V}, 35, v{r.L}
    v_add_u32 v{V}, s{U+2}, v{V}
    v_lshrrev_b32 v{V+1}, 3, v{V}
    v_add_u32 v{V}, v{V}, v{V+1}
    s_mul_i32 s{U+3}, s{U+1}, {576*1152}
    v_lshlrev_b32 v{r.WB+36}, 7, v{V}
    v_lshl_add_u32 v{r.TG+2}, v{V}, 7, s{U+3}""")
    RA, RB, RD = r.WB + 26, r.WB + 27, r.WB + 28
    F[8] = lines(f"""s_lshr_b32 s{U}, s2, 3
    s_lshl_b32 s{U}, s{U}, 2
    s_add_u32 s{U}, s{U}, s{w}
    s_min_u32 s{U}, s{U}, 107
    s_mul_i32 s{U+1}, s{U}, 57
    s_lshr_b32 s{U+1}, s{U+1}, 11
    s_mul_i32 s{U+2}, s{U+1}, 36
    s_sub_u32 s{U}, s{U}, s{U+2}
    s_and_b32 s{U+2}, s2, 7
    s_mul_i32 s{U+3}, s{U+2}, {4*55296}
    s_mul_i32 s{r.sRS}, s{U+1}, 18432
    s_add_u32 s{r.sRS}, s{r.sRS}, s{U+3}
    s_lshl_b32 s{U+3}, s{U}, 9
    s_add_u32 s{r.sRS}, s{r.sRS}, s{U+3}
    s_add_u32 s{r.sRS}, s{r.sRS}, {WS['RP'][0]}
    v_mul_u32_u24 v{RB}, 55296, v{r.C}
    v_lshl_add_u32 v{RB}, v{r.J}, 4, v{RB}
    s_lshl_b32 s{U}, s{U}, 4
    v_lshrrev_b32 v{RA}, 1, v{r.J}
    v_add_u32 v{RA}, s{U}, v{RA}""") + [f"s_cmp_eq_u32 s{U+1}, 0\ns_cselect_b64 s[{r.sRP}:{r.sRP+1}], s[4:5], s[6:7]",
          f"s_cmp_eq_u32 s{U+1}, 2\ns_cselect_b64 s[{r.sRP}:{r.sRP+1}], s[8:9], s[{r.sRP}:{r.sRP+1}]\ns_cselect_b32 s{U}, 1, 8\ns_cselect_b32 s{U+3}, 576, 1"] + lines(f"""s_mul_i32 s{U+2}, s{U+2}, s{U+3}
    v_mul_u32_u24 v{RA}, s{U}, v{RA}
    v_add_u32 v{RA}, s{U+2}, v{RA}
    v_mul_u32_u24 v{RA}, 1152, v{RA}
    v_lshl_add_u32 v{RA}, v{r.C}, 5, v{RA}
    v_and_b32 v{RD}, 1, v{r.J}
    v_lshl_add_u32 v{RA}, v{RD}, 4, v{RA}
    s_mul_i32 s{U}, s{U}, {8*1152}
    global_load_dwordx4 {vr(RD)}, v{RA}, s[{r.sRP}:{r.sRP+1}] offset:1024 ; @rp
    v_add_u32 v{RA}, s{U}, v{RA}
    global_load_dwordx4 {vr(RD+4)}, v{RA}, s[{r.sRP}:{r.sRP+1}] offset:1024 ; @rp""")
    rpst = ["WAITVM rp"] + [f"buffer_store_dwordx4 {vr(RD+4*k)}, v{RB}, {srd(r.SW)}, s{r.sRS} offen offset:{256*k} sc1" for k in range(2)]
    TB = (0, 32, 80, 120)
    def wf(p, T_): return r.WF + 20 * (p % 2) + 4 * T_
    def ak(T_, t): return r.AK + 12 * T_ + 4 * t
    def reads_kv(p):
        n, ks = p // 2, p % 2
        if 'r' in exp: return []
        o = [f"ds_read_b128 {xa(r, p, t)}, v{r.XRD+ks} offset:{4096*(n%4) + 2048*t} ; @kx{p}" for t in range(2)]
        for T_ in (0, 1, 4, 2, 3):
            for h in range(2):
                off = WKV + 5120 * p + 2560 * h; pg = int(off >= 51200); off -= 51200 * pg
                ad = r.TW + 2 * pg + (T_ == 4)
                o.append(f"ds_read_b64_tr_b16 {vr(wf(p,T_)+2*h,2)}, v{ad} offset:{off + (TB[T_] if T_ < 4 else 0)} ; @kw{p}_{T_}")
        return o
    def mf_kv(p):
        o = []
        if 'm' in exp and p < 17: return ["s_nop 0"] * 19
        for g in (1, 0):
            for t in range(2):
                if 0 < p < 17 and "sg"[g] in exp: continue
                acc = vr(r.AS + 8 * g + 4 * t); x = xa(r, p, t)
                o.append(f"{MF} {acc}, {x if g else vr(r.ONES)}, {x}, {'0' if p == 0 else acc}")
        for T_ in (0, 1, 4, 2, 3):
            for t in (2, 0, 1):
                if 0 < p < 17 and t == 2 and 'c' in exp: continue
                acc = vr(ak(T_, t)); b = xa(r, p, t) if t < 2 else vr(r.ONES)
                o.append((f"WAITLG kw{p}_{ {0: 4, 2: 3}[T_] }\n" if finew and t == 2 and T_ in (0, 2) else "") + f"{MF} {acc}, {vr(wf(p,T_))}, {b}, {'0' if p == 0 else acc}")
        return o
    QA = (20, 21, 22, 23, 78)
    def q_dma(i): return [f"s_add_u32 m0, s{r.sXm}, {QOFF[i]}"] + [x.replace(f", s{T} offen", f", s{QA[i]} offen") for x in w3(f"wq{i}")]
    qsw = [f"s_movk_i32 s{T}, {4*3456-1152}"] + [f"v_mad_u32_u24 v{r.WD+p}, v{r.U+p}, s{T}, v{r.WD+p}" for p in range(3)]
    PC = Pacer(); PC.due = pdelay
    PC.add(touches(r, 'c8'), 64)
    if tsil:
        tq = early("q"); tq = [x.replace(f"v{V+1}", f"v{r.WB+24}").replace(f"v{V}", f"v{r.WB+23}").replace(f"s{U}", f"s{T+2}") for x in tq]
        PC.add(tq, tsil)
    PC.add(qsw + [x for i in range(5) for x in q_dma(i)], lambda x: qw // 2 if "exec" in x else qw)
    clr2 = lines(f"""s_mul_i32 s{U}, s2, 640
    s_add_u32 s{U}, s{U}, {WS['FLAG'][0] + F_E3*128}
    v_add_u32 v{V+1}, 24, v0
    v_lshrrev_b32 v{V+1}, 6, v{V+1}
    v_lshl_add_u32 v{V}, v{V+1}, 28, v{r.OS0}
    v_mov_b32 v{r.FQ}, 0
    v_mov_b32 v{r.FQ+1}, 0
    v_mov_b32 v{r.FQ+2}, 0
    v_mov_b32 v{r.FQ+3}, 0
    buffer_store_dwordx4 {vr(r.FQ)}, v{V}, {srd(r.SW)}, s{U} offen sc1""")
    F[6], F[7], F[8] = F[7], F[8], F[6]
    qa = lines(f"s_and_b32 s{U}, s{w}, 1\ns_mul_i32 s{U}, s{U}, {32*3456}\ns_mul_i32 s{U+1}, s{r.sHP}, 72\ns_and_b32 s{U+1}, s{U+1}, -16\ns_add_u32 s{U}, s{U}, s{U+1}\ns_lshr_b32 s{U+1}, s{w}, 1\ns_add_u32 s{U+1}, s{U+1}, s{r.sRot}")
    for k in range(5):
        qa += [f"s_add_u32 s{U+2}, s{U+1}, {2*k}" if k < 4 else f"s_add_u32 s{U+2}, s{r.sRot}, 8", f"s_sub_u32 s{U+3}, s{U+2}, 9\ns_cselect_b32 s{U+2}, s{U+2}, s{U+3}",
               f"s_mul_i32 s{U+2}, s{U+2}, {64*3456}", f"s_add_u32 s{QA[k]}, s{U+2}, s{U}"]
    sig_wb = F[5].pop()
    rp = F[7]
    FQ_ = [(1, 17, x) for x in F[4][:nearly]] + [(2, 3, x) for x in F[1] + [wbt]] + [(2, 9, x) for x in clr2] + [(2, 17, x) for x in F[4][nearly:]] + [(4, 15, x) for x in phif + F[5]]
    FQ_ += [(9, 13, sig_wb), (9, 15, poll_issue(r.FL, None, r.SDB, ("0", 0), "fclr"))] + [(4, 13 + pdelay // 304, x) for x in F[6] + qa]
    if tsil: FQ_ += [(4, 17, x) for x in rp[:-3]] + [(rpat, 17, x) for x in rp[-3:]] + [(4, 17, x) for x in F[8]]
    else: FQ_ += [(4, 17, x) for x in F[8]] + [(4, 17, x) for x in rp[:-3]] + [(rpat, 17, x) for x in rp[-3:]]
    assert LA == 2
    excl0, pack.excl = pack.excl, gexcl
    for n in range(9):
        if n + LA < 9:
            xd, wd_ = x_dma(n + LA, 2), w_dma(n + LA, True)
            prep = [wd_[0], f"s_add_u32 s{T}, s{T}, s{r.sWb}"]
            d1 = (prep if n == 0 else []) + [wd_[2], xd[0], xd[1], xd[2], lines(xd[3])[1], wd_[3]]
            d2 = [xd[4], wd_[4], f"s_add_u32 s{r.sC}, s{r.sC}, 1", wd_[5]] + prep + [xd[5]]
            g1, g2 = gaps
            if 'd' in exp: d1, d2 = [f"buffer_load_dword v{r.DUM}, off, {srd(r.SX)}, 0 ; @c{n+LA}"], []
            d1, d2 = flat(d1), flat(d2)
            q1 = lambda m, *st_, **k: pack(m, st_[0], (d1, g1), *st_[1:], **k)
            q2 = lambda m, *st_, **k: pack(m, st_[0], (d2, g2), *st_[1:], **k)
        else: q1 = q2 = PC.mfma
        def run(q, hh):
            def go(m, rd, _):
                k = 0
                while k < len(FQ_) and FQ_[k][0] <= hh: k += 1
                out = q(m, rd, [x[2] for x in FQ_[:k]], carry=True)
                del FQ_[:pack.used]
                k = max([i + 1 for i, x in enumerate(FQ_) if x[1] <= hh] + [0])
                assert all(x[0] <= hh for x in FQ_[:k])
                if pack.verbose: print("   half", hh, "took", pack.used, "forced", k)
                out += [x[2] for x in FQ_[:k]]; del FQ_[:k]
                return out
            return go
        pk1, pk2 = run(q1, 2 * n), run(q2, 2 * n + 1); f1 = f2 = None
        a(st.text(f"i{n}z")); a(f"WAITLG kx{2*n-1}" if finew and n not in (0, 2) else "s_waitcnt lgkmcnt(0)"); a(st.text(f"i{n}a"))
        if n == 8:
            emit(a, pk1(mf_kv(15), phir, f1))
            a("WAITVM c8\ns_barrier"); a(st.text("c8"))
            emit(a, reads_kv(16)); PC.t += 200
        else:
            a(f"WAITVM c{n}"); a(st.text(f"i{n}b")); a("s_barrier"); a(st.text(f"i{n}c"))
            if n == 0: a(st.text("c0"))
            if n == 4: a(st.text("c4"))
            emit(a, pk1(mf_kv(2*n-1) if n else [], reads_kv(2*n), f1))
            if n and pack.left: print("   left", n, pack.left)
        a(st.text(f"i{n}d")); a(f"WAITLG kx{2*n}" if finew else "s_waitcnt lgkmcnt(0)"); a(st.text(f"i{n}e"))
        emit(a, pk2(mf_kv(2*n), reads_kv(2*n+1), f2))
        if pack.left: print("   left", n, pack.left)
    a("WAITLG kx17" if finew else "s_waitcnt lgkmcnt(0)")
    pack.excl = excl0; assert not FQ_
    assert sum("@wq4" in x for g, _ in PC.q for x in g) == 3
    s1 = []
    for t in range(2):
        g = r.AS + 8 + 4 * t
        s1 += [f"v_cndmask_b32 v{g}, v{g}, v{g+e}, s[{M+2*e-2}:{M+2*e-1}]" for e in range(1, 4)] + [f"ds_bpermute_b32 v{g}, v{r.BP}, v{g}"]
    s1 += [f"v_mul_f32 v{r.AS+4*t}, 0x3ae38e39, v{r.AS+4*t}" for t in range(2)]
    s1 += [f"v_mov_b32 v{V+t}, 0x3727c5ac" for t in range(2)]
    s1 += [f"v_fma_f32 v{V+t}, -v{r.AS+4*t}, v{r.AS+4*t}, v{V+t}" for t in range(2)]
    s1 += ["s_waitcnt lgkmcnt(0)"]
    for op in (lambda t: f"v_fmac_f32 v{V+t}, 0x3ae38e39, v{r.AS+8+4*t}", lambda t: f"v_max_f32 v{V+t}, 0x3727c5ac, v{V+t}",
               lambda t: f"v_rsq_f32 v{r.RS+t}, v{V+t}", lambda t: f"v_mul_f32 v{r.NM+t}, -v{r.AS+4*t}, v{r.RS+t}"):
        s1 += [op(t) for t in range(2)]
    m = mf_kv(17)
    emit(a, PC.mfma(m[:5], []) + pack(m[5:], s1)); PC.t += 16 * 14
    late = [f"buffer_store_dword v{r.AS+4*t}, v{r.MX}, {srd(r.SW)}, s{r.sMX} offen offset:{64*t} sc1" for t in range(2)]
    a(st.text("kvg"))
    def pk(t, T_): return r.PK + 10 * t + 2 * T_
    def normalize(tiles, accf, t, packed=True):
        o = []
        for T_, dst in tiles:
            g, cs = accf(T_, t), accf(T_, 2)
            if not packed:
                for e in range(4): o += [f"v_mul_f32 v{g+e}, v{g+e}, v{r.RS+t}", f"v_fmac_f32 v{g+e}, v{cs+e}, v{r.NM+t}"]
                for e in (0, 2): o.append(f"v_cvt_pk_bf16_f32 v{pk(t,dst)+e//2}, v{g+e}, v{g+e+1}")
                continue
            for e in (0, 2): o.append(f"v_pk_mul_f32 {vr(g+e,2)}, {vr(g+e,2)}, {vr(r.RS,2)} op_sel:[0,{t}] op_sel_hi:[1,{t}]")
            for e in (0, 2): o.append(f"v_pk_fma_f32 {vr(g+e,2)}, {vr(cs+e,2)}, {vr(r.NM,2)}, {vr(g+e,2)} op_sel:[0,{t},0] op_sel_hi:[1,{t},1]")
            for e in (0, 2): o.append(f"v_cvt_pk_bf16_f32 v{pk(t,dst)+e//2}, v{g+e}, v{g+e+1}")
        return o
    P = r.WF
    def stage2():
        o = [f"{MF16} {vr(P+20*t+4*T2)}, {vr(r.aPH+6*T2+4,2,'a')}, {vr(pk(t,2),2)}, 0" for t in range(2) for T2 in range(5)]
        return o + [f"{MF} {vr(P+20*t+4*T2)}, {vr(r.aPH+6*T2,4,'a')}, {vr(pk(t,0))}, {vr(P+20*t+4*T2)}" for t in range(2) for T2 in range(5)]
    def softmax(t, wr=None):
        p = P + 20 * t; m = (V, r.U)[t]; f = r.FQ + 10 * t
        o = lines(f"v_max3_f32 v{m}, v{p}, v{p+1}, v{p+2}\nv_max3_f32 v{m+1}, v{p+3}, v{p+4}, v{p+5}")
        for i in range(3): o += lines(f"v_max3_f32 v{m}, v{m}, v{p+6+4*i}, v{p+7+4*i}\nv_max3_f32 v{m+1}, v{m+1}, v{p+8+4*i}, v{p+9+4*i}")
        o += lines(f"v_max_f32 v{m}, v{m}, v{m+1}\nv_mov_b32 v{m+1}, 0x3fb8aa3b\nv_mul_f32 v{m}, 0xbfb8aa3b, v{m}")
        for i in range(9): o.append(f"v_pk_fma_f32 {vr(p+2*i,2)}, {vr(p+2*i,2)}, {vr(m,2)}, {vr(m,2)} op_sel:[0,1,0] op_sel_hi:[1,1,0]")
        o += [f"v_exp_f32 v{p+i}, v{p+i}" for i in range(18)]
        o += lines(f"v_pk_add_f32 {vr(m,2)}, {vr(p,2)}, {vr(p+2,2)}\nv_pk_add_f32 {vr(m+2,2)}, {vr(p+4,2)}, {vr(p+6,2)}")
        for i in range(4, 9): o.append(f"v_pk_add_f32 {vr(m+2*(i%2),2)}, {vr(m+2*(i%2),2)}, {vr(p+2*i,2)}")
        o += lines(f"v_pk_add_f32 {vr(m,2)}, {vr(m,2)}, {vr(m+2,2)}\nv_add_f32 v{m}, v{m}, v{m+1}\nv_rcp_f32 v{m}, v{m}")
        for i in range(9):
            o += [f"v_pk_mul_f32 {vr(p+2*i,2)}, {vr(p+2*i,2)}, {vr(m,2)} op_sel_hi:[1,0]", f"v_cvt_pk_bf16_f32 v{f+i}, v{p+2*i}, v{p+2*i+1}"]
            if wr and (i % 2 or i == 8): o.append(wr[i // 2])
        return o
    KT = [(0, 0), (1, 1), (4, 2)]; VT = [(2, 3), (3, 4)]
    def vimg(t):
        return lines(f"""ds_write_b64 v{r.AV}, {vr(pk(t,3),2)} offset:{VI + 16*96*t}
        ds_write_b64 v{r.AV}, {vr(pk(t,4),2)} offset:{VI + 16*96*t + 32}
        v_cndmask_b32 v{r.AS+8+2*t}, v{r.C1}, v{pk(t,2)}, s[{M+6}:{M+7}]
        v_cndmask_b32 v{r.AS+9+2*t}, 0, v{pk(t,2)+1}, s[{M+6}:{M+7}]
        ds_write_b64 v{r.AM}, {vr(r.AS+8+2*t,2)} offset:{VI + 16*96*t + 64}""")
    fw = lambda t: [f"ds_write_b64 v{r.AF}, {vr(r.FQ+10*t+2*i,2)} offset:{FK + 16*160*t + 8*i}" for i in range(5)]
    emit(a, PC.valu(normalize(KT, ak, 0) + normalize(KT, ak, 1)))
    emit(a, PC.mfma(stage2(), normalize(VT, ak, 0, False) + normalize(VT, ak, 1, False)))
    a(st.text("ks2"))
    emit(a, PC.valu(spread(softmax(0), vimg(0) + vimg(1), touches(r, 'kvg'))))
    a(st.text("ksm0"))
    sm = softmax(1, fw(1))
    emit(a, PC.valu(spread(sm[:48], fw(0), [] if rplate else ["", ""] + rpst) + sm[48:]) + PC.flush("@wq1"))
    c1, c2 = poll_check(r.FL, None, r.SDB, r.sU + 2, ("0", 0), NLEAD, "fclr", slow)
    a(st.text("smk")); a("WAITVM wq1\ns_waitcnt lgkmcnt(0)\ns_barrier")
    F3 = r.WF; A3 = r.AK
    for ks in range(4):
        for h in range(2):
            a(f"ds_read_b64_tr_b16 {vr(F3+16*ks+2*h,2)}, v{r.AV3} offset:{VI + (32*ks+16*h)*96} ; @s3{ks}")
        for i in range(3):
            for h in range(2):
                a(f"ds_read_b64_tr_b16 {vr(F3+16*ks+4+4*i+2*h,2)}, v{r.AF3} offset:{FK + (32*ks+16*h)*160 + 32*i} ; @s3{ks}")
        if ks:
            a(f"WAITLG s3{ks-1}")
            for i in range(3):
                acc = vr(A3 + 4 * i); k = ks - 1
                a(f"{MF} {acc}, {vr(F3+16*k+4+4*i)}, {vr(F3+16*k)}, {'0' if k == 0 else acc}")
    a("WAITLG s33")
    for i in range(3): a(f"{MF} {vr(A3+4*i)}, {vr(F3+52+4*i)}, {vr(F3+48)}, {vr(A3+4*i)}")
    return dict(normalize=normalize, stage2=stage2, softmax=softmax, pk=pk, PC=PC, clrchk=[c1, c2], first=[x + (' ; @kvp' if 'buffer' in x else '') for x in rpst] if rplate else [], late=late)

def phase_a2(a, r, st, slow, h, wo_ops=(), sigat=3, pollat=6, chkat=8, wow=70, ppw=50, exp=0):
    T, V = r.sT, r.T; w = r.sWv
    def qf(n, ks, T_): return r.WF + 24 * (n % 2) + 12 * ks + 4 * T_
    def aq(T_, t): return r.AK + 12 * (T_ + 1) + 4 * t
    def reads_q(n):
        o = []
        for T_ in range(3):
            for ks in range(2):
                p = 2 * n + ks
                base = 16384 * (p % 4) + QOFF[p // 4]
                for hh in range(2):
                    o.append(f"ds_read_b64_tr_b16 {vr(qf(n,ks,T_)+2*hh,2)}, v{r.TQ if T_ < 2 else r.TQM} offset:{base + 80*hh + (32*T_ if T_ < 2 else 0)} ; @q{n}_{T_}")
        return o
    def mf_q(n):
        o = []
        for T_ in range(3):
            for t in (2, 0, 1):
                for ks in range(2):
                    acc = vr(aq(T_, t)); b = xa(r, 2*n+ks, t) if t < 2 else vr(r.ONES)
                    o.append((f"WAITLG q{n}_2\n" if (T_, t, ks) == (1, 2, 0) else "") + f"{MF} {acc}, {vr(qf(n,ks,T_))}, {b}, {'0' if n+ks == 0 else acc}")
        return o
    rq = reads_q(0)
    emit(a, rq[:8])
    for i in range(3):
        g = r.AK + 4 * i
        a(f"v_cvt_pk_bf16_f32 v{g}, v{g}, v{g+1}\nv_cvt_pk_bf16_f32 v{g+1}, v{g+2}, v{g+3}")
        a(f"buffer_store_dwordx2 {vr(g,2)}, v{r.PS0+i}, {srd(r.SW)}, s{r.sPS} offen offset:{640*i} sc1 ; @kvp")
    emit(a, touches(r, 'kvp'))
    a(st.text("kvp"))
    emit(a, rq[8:])
    a("s_barrier")
    wo_ops = list(wo_ops); has_b = bool(wo_ops)
    f1 = (f"s{r.sF1}", 0)
    def pp_loads():
        o = [f"s_mov_b32 s{T}, s{r.sKVP}", f"v_lshrrev_b32 v{r.XRD}, 3, v{r.J}", f"v_lshl_add_u32 v{r.XRD}, v{r.XRD}, 28, v{r.PL}"]
        for m in range(4):
            for i in range(4):
                pre = f"s_cmp_eq_u32 s{w}, 0\ns_cselect_b32 s{T+1}, s{T}, {OOB}\n" if i == 3 else ""
                o.append(pre + f"buffer_load_dwordx4 {vr(r.aP+16*i+4*m,4,'a')}, v{r.PL if i < 3 else r.XRD}, {srd(r.SW)}, s{T + (i == 3)} offen offset:{1024*i} sc1 ; @pp{m}")
            if m < 3: o.append(f"s_add_u32 s{T}, s{T}, 16384")
        return o
    def check():
        a(f"s_cmp_eq_u32 s{w}, 0\ns_cselect_b32 s{T+1}, 16, 0")
        a(poll_inline(r.U, r.AT, r.SW, T + 2, f1, f"s{T+1}", "f1"))
        a("WAITVM wq4\ns_barrier"); a(st.text("e1"))
    PC = h["PC"]; PC.t += 600
    k = max(n for n, x in enumerate(wo_ops) if "buffer_" in x) + 1 if has_b else 0
    rest, PC.q = PC.q, []
    PC.add(h["first"], 40); PC.q += rest
    PC.add(wo_ops[:k], wow); PC.add(h["late"], 20); post = flat(wo_ops[k:])
    def go():
        check(); rest, PC.q = PC.q, []; PC.due = PC.t
        if pack.verbose: print("   groups left at check:", len(rest))
        PC.add(pp_loads(), ppw); PC.q += rest; PC.add(touches(r, 'pp'), 0)
    for n in range(9):
        a(f"WAITLG q{n}_0"); a(st.text(f"q{n}"))
        rd = reads_q(n + 1) if n < 8 else []
        if n == 3 < sigat: emit(a, PC.flush("@wq3")); a("WAITVM wq3\ns_barrier")
        if n == sigat:
            emit(a, PC.flush("@wq3") + h["clrchk"])
            a("WAITVM kvp WAITVM wq3\ns_barrier")
            a(f"buffer_atomic_add v{r.ONE}, v{r.AT}, {srd(r.SW)}, s{r.sF1} offen sc1")
        if n == pollat: a(poll_issue(r.U, r.AT, r.SW, f1, "f1"))
        if n == chkat: go()
        elif n == 7 < chkat: a("WAITVM wq4\ns_barrier")
        emit(a, PC.mfma(mf_q(n), rd))
        if pack.left: print("   qleft", n, pack.left)
    QT = [(0, 0), (1, 1), (2, 2)]
    a(st.text("qg"))
    if chkat == 9: go()
    emit(a, PC.valu(h["normalize"](QT, aq, 0) + h["normalize"](QT, aq, 1)))
    if PC.q and pack.verbose: print("   pacer groups left at stage2:", len(PC.q))
    if chkat == 10: go()
    emit(a, PC.mfma(h["stage2"](), []))
    if chkat == 11: go()
    a(st.text("qs2"))
    emit(a, PC.valu(h["softmax"](0)) + PC.flush() + touches(r, 'sm1') + h["softmax"](1) + touches(r, 'smq'))
    a(st.text("smq"))
    A4 = r.AK
    for m in range(4):
        a(f"WAITVM pp{m}")
        mf = [f"{MF} {vr(A4+4*i)}, {vr(r.aSEL,4,'a')}, {vr(r.aP+16*i+4*m,4,'a')}, {'0' if m == 0 else vr(A4+4*i)}" for i in range(4)]
        k = 8 if m < 3 else len(post)
        emit(a, pack(mf, post[:k])); post = post[k:]
    for i in range(4):
        g = A4 + 4 * i
        a(f"v_cvt_pk_bf16_f32 v{g}, v{g}, v{g+1}\nv_cvt_pk_bf16_f32 v{g+1}, v{g+2}, v{g+3}\nds_write_b64 v{r.KW}, {vr(g,2)} offset:{1024*i}")
    a(("WAITVM wo\n" if has_b else "") + "s_waitcnt lgkmcnt(0)\ns_barrier")
    a(st.text("kvi"))
    K4 = r.WF; O4 = r.WF + 32
    for T_ in (2, 0, 1):
        for gg in range(5):
            a(f"ds_read_b64 {vr(K4+10*T_+2*gg,2)}, v{r.K4a if T_ < 2 else r.K4b} offset:{160*gg + 64*T_} ; @k4{T_}")
    accf = lambda t, T_: vr(O4 + 12 * t + 4 * T_)
    for T_ in (2, 0, 1):
        a(f"WAITLG k4{T_}")
        for t in range(2): a(f"{MF16} {accf(t,T_)}, {vr(K4+10*T_+8,2)}, {vr(r.FQ+10*t+8,2)}, 0")
    mf = []
    for T_ in (2, 0, 1):
        for t in range(2):
            acc = accf(t, T_); f = r.FQ + 10 * t; k = K4 + 10 * T_
            mf += [f"{MF} {acc}, {vr(k)}, {vr(f)}, {acc}", f"{MF} {acc}, {vr(k+4)}, {vr(f+4)}, {acc}"]
    emit(a, pack(mf, b_reads(r)[:r.npre_w] if has_b else []))
    for t in range(2): a(f"v_add_f32 v{O4+12*t+10}, 0x358637bd, v{O4+12*t+10}")
    for t in range(2): a(f"v_rcp_f32 v{O4+12*t+10}, v{O4+12*t+10}")
    pm = lambda o, i: f"v_pk_mul_f32 {vr(o+2*i,2)}, {vr(o+2*i,2)}, {vr(o+10,2)} op_sel_hi:[1,0]"
    for t in range(2): a(pm(O4 + 12 * t, 4))
    for t in range(2): a(f"v_cvt_pk_bf16_f32 v{O4+8+t}, v{O4+12*t+8}, v{O4+12*t+9}")
    for t in range(2):
        o = O4 + 12 * t
        a(pm(o, 0)); a(pm(o, 1))
        if t == 0:
            a(f"v_permlane32_swap_b32 v{O4+8}, v{O4+9}")
            a(f"buffer_store_dwordx2 {vr(O4+8,2)}, v{r.OS1}, {srd(r.SW)}, s{r.sO1} offen sc1 ; @ost")
        a(f"v_cvt_pk_bf16_f32 v{o}, v{o}, v{o+1}\nv_cvt_pk_bf16_f32 v{o+1}, v{o+2}, v{o+3}")
    for t in range(2):
        o = O4 + 12 * t
        a(pm(o, 2)); a(pm(o, 3))
        a(f"v_cvt_pk_bf16_f32 v{o+2}, v{o+4}, v{o+5}\nv_cvt_pk_bf16_f32 v{o+3}, v{o+6}, v{o+7}")
        a(f"buffer_store_dwordx4 {vr(o)}, v{r.OS0}, {srd(r.SW)}, s{r.sO0} offen sc1 ; @ost")
        if t == 0: a(f"s_add_u32 s{r.sO0}, s{r.sO0}, {18*1024}")
    emit(a, touches(r, 'o'))
    a(st.text("o"))

def b_dma_ops(r, slow):
    T = r.sBT; w = r.sWv
    D0, D1 = r.WD, r.WD + 1; V = r.WB + 26
    o = []
    o.append(poll_issue(V + 5, None, r.SDB, ("0", 128), "fwb"))
    o.append(f"s_lshr_b32 s{r.sB}, s2, 5\ns_and_b32 s{T}, s2, 7\ns_lshl_b32 s{T}, s{T}, 4")
    o.append(f"s_bfe_u32 s{T+1}, s2, 0x20003\ns_lshl_b32 s{T+1}, s{T+1}, 2\ns_add_u32 s{T}, s{T}, s{T+1}\ns_add_u32 s{r.sTT}, s{T}, s{w}")
    o.append(f"v_bfe_u32 v{V}, v{r.L}, 1, 2\nv_xor_b32 v{V}, v{V}, v{r.C}")
    o.append(f"v_and_b32 v{V+1}, 1, v{r.L}\nv_lshlrev_b32 v{V+1}, 4, v{V+1}")
    o.append(f"v_lshl_add_u32 v{V}, v{V}, 5, v{V+1}\nv_lshrrev_b32 v{V+1}, 3, v{r.L}")
    o.append(f"v_mul_u32_u24 v{V+2}, 1152, v{V+1}\nv_add_u32 v{D0}, v{V+2}, v{V}")
    o.append(f"s_and_b32 s{T}, s{w}, 1\ns_lshr_b32 s{T+1}, s{w}, 1\ns_mul_i32 s{T+2}, s{T}, 18")
    o.append(f"s_lshl_b32 s{T+3}, s{T+1}, 3\ns_add_u32 s{T+2}, s{T+2}, s{T+3}\ns_mul_i32 s73, s{T+2}, 1152")
    o.append(f"s_mul_i32 s{T}, s{T}, 144\ns_mul_i32 s{T+1}, s{T+1}, 36\ns_add_u32 s{T}, s{T}, s{T+1}")
    o.append(f"s_add_u32 s{T}, s{T}, 16\ns_mul_i32 s74, s{T}, 1152\ns_lshl_b32 s{T}, s{r.sB}, 7")
    o.append(f"s_add_u32 s{T+2}, s73, s{T}\ns_add_u32 s{T+3}, s74, s{T}\ns_mul_i32 s75, s{w}, 18432")
    tail = lambda src, d: [f"v_lshrrev_b32 v{d}, 2, v{src}\nv_mul_u32_u24 v{d}, 72, v{d}", f"v_bfe_u32 v{V+3}, v{src}, 1, 1\nv_mul_u32_u24 v{V+3}, 18, v{V+3}",
                           f"v_add_u32 v{d}, v{d}, v{V+3}\nv_and_b32 v{V+3}, 1, v{src}", f"v_add_u32 v{d}, v{d}, v{V+3}"]
    for s_ in range(18):
        if s_ % 4 == 0: o.append(f"s_add_u32 m0, s75, {WO + 1024*s_}")
        if s_ == 16:
            o += tail(V + 1, D1); o.append(f"v_mul_u32_u24 v{D1}, 1152, v{D1}\nv_add_u32 v{D1}, v{D1}, v{V}")
        imm = 1024 * (s_ % 4)
        c = (36 * s_ if s_ < 16 else 288 * (s_ - 16)) * 1152 - imm
        o.append(f"s_add_u32 s{T}, s{T+2 if s_ < 16 else T+3}, {c}\nbuffer_load_dwordx4 v{D0 if s_ < 16 else D1}, {srd(r.SO)}, s{T} offen offset:{imm} lds ; @wo")
    o.append(f"v_and_b32 v{V}, 7, v{r.L}\ns_lshl_b32 s{T}, s{r.sB}, 4\ns_add_u32 s{T}, s{T}, 1024")
    o.append(f"v_lshl_add_u32 v{D0}, v{V}, 4, v{V+2}\nv_mul_u32_u24 v{D1}, 1152, v{r.J}")
    o.append(f"v_lshl_add_u32 v{D1}, v{r.C}, 28, v{D1}\ns_mul_i32 s{T+1}, s{r.sTT}, {16*1152}")
    o.append(f"s_add_u32 s{T+3}, s{T+1}, s{T}\ns_lshl_b32 s{T}, s{r.sB}, 7\ns_add_u32 s{T+1}, s{T+1}, s{T}")
    o.append(f"s_add_u32 m0, s{r.sXm}, {XRES}\ns_add_u32 s{T+2}, s{T+1}, {8*1152-1024}")
    o.append(f"buffer_load_dwordx4 v{D0}, {srd(r.SX)}, s{T+1} offen lds ; @wo")
    o.append(f"buffer_load_dwordx4 v{D0}, {srd(r.SX)}, s{T+2} offen offset:1024 lds ; @wo")
    o.append(f"s_add_u32 m0, s{r.sXm}, {XRES8}")
    o.append(f"buffer_load_dwordx4 v{D1}, {srd(r.SX)}, s{T+3} offen lds ; @wo")
    c1, c2 = poll_check(V + 5, None, r.SDB, T + 2, ("0", 128), 72, "fwb", slow)
    o += [c1, f"s_mul_i32 s{T}, s{w}, 5120\ns_min_u32 s{T}, s{T}, {13*1024}\ns_mul_i32 s{T+1}, s{r.sB}, 18432", c2]
    o.append(f"s_add_u32 m0, s{T}, {WO8}\ns_add_u32 s{T+1}, s{T+1}, s{T}\ns_add_u32 s{T+1}, s{T+1}, {WS['W8'][0]}")
    for k in range(5):
        if k == 4: o.append(f"s_add_u32 m0, s{T}, {WO8 + 4096}\ns_add_u32 s{T+1}, s{T+1}, 4096")
        o.append(f"buffer_load_dwordx4 v{r.OS0}, {srd(r.SW)}, s{T+1} offen offset:{1024*(k%4)} sc1 lds ; @wo")
    TA, T4, TB = r.TW, r.XD, r.XD + 1
    o.append(f"""v_lshlrev_b32 v{V}, 7, v{r.J}
    v_lshl_add_u32 v{V}, v{r.C}, 3, v{V}
    v_add_u32 v{D0}, s{r.sXm}, v{V}
    v_and_b32 v{V+2}, 1, v{r.C}
    v_lshlrev_b32 v{V+1}, 4, v{r.J}
    v_lshl_add_u32 v{V+1}, v{V+2}, 3, v{V+1}
    v_add_u32 v{D1}, s{r.sXm}, v{V+1}
    v_bfe_u32 v{V}, v{r.L}, 2, 3
    v_and_b32 v{V+1}, 3, v{r.L}
    v_lshlrev_b32 v{V+1}, 3, v{V+1}
    v_lshl_add_u32 v{V+1}, v{V}, 7, v{V+1}
    v_lshrrev_b32 v{V+2}, 5, v{r.L}
    v_mul_u32_u24 v{V+3}, 18432, v{V+2}
    v_add_u32 v{V+1}, v{V+1}, v{V+3}
    v_lshrrev_b32 v{V+3}, 1, v{V}""")
    for tc in range(4): o.append(f"v_xor_b32 v{V+4}, {tc}, v{V+3}\nv_lshl_add_u32 v{TA+tc}, v{V+4}, 5, v{V+1}")
    o.append(f"v_lshlrev_b32 v{T4}, 3, v{r.L}\nv_add_u32 v{T4}, {WO8}, v{T4}")
    return o

def b_wfr(s_, T_):
    i = 5 * s_ + T_
    return (4 * i, "a") if i < 64 else (24 + 4 * (i - 64), "v")
def b_reads(r):
    o = []
    for s_ in range(18):
        for T_ in range(5):
            b, k = b_wfr(s_, T_)
            for h in range(2):
                off = WO + 1024 * s_ + 36864 * h if T_ < 4 else 1024 * s_ + 512 * h
                o.append(f"ds_read_b64_tr_b16 {vr(b+2*h,2,k)}, v{r.TW+T_ if T_ < 4 else r.XD} offset:{off}")
    return o

def phase_b(a, r, f, st, slow, setup, w2_ops=(), w2b_ops=(), w3a_ops=(), w3b_ops=(), sig2=40, poll2=70, chk2=110, nr1=80, nr2=30, w2gap=3, npre_o=10):
    T = r.sBT; w = r.sWv; V = r.T
    WFV, OF, AC, XR_ = 24, 128, 200, 220
    def wfr(s_, T_):
        i = 5 * s_ + T_
        return (4 * i, "a") if i < 64 else (WFV + 4 * (i - 64), "v")
    sF2s, sF2, sOb = 76, 77, 78
    TA = r.TW
    T4, TB = r.XD, r.XD + 1
    for T_ in range(4): a(f"ds_read_b64 {vr(XR_+2*T_,2)}, v{r.WD} offset:{XRES + 32*T_} ; @xr")
    a(f"ds_read_b64 {vr(XR_+8,2)}, v{r.WD+1} offset:{XRES8} ; @xr")
    reads = b_reads(r)[r.npre_w:]
    own = lines(f"""s_lshl_b32 s{T}, s{r.sTB}, 2
    s_add_u32 s{T}, s{T}, s{w}
    s_lshl_b32 s{T}, s{T}, 7
    s_add_u32 s{sF2s}, s{T}, {WS['FLAG'][0] + F_E2*128}""")
    own2 = lines(f"""s_lshr_b32 s{T}, s{r.sTT}, 1
    s_lshl_b32 s{T}, s{T}, 7
    s_add_u32 s{sF2}, s{T}, {WS['FLAG'][0] + F_E2*128}
    s_mul_i32 s{T}, s{r.sTT}, {18*1024}
    s_add_u32 s{sOb}, s{T}, {WS['O'][0]}
    s_lshl_b32 s{T}, s{r.sTT}, 6
    s_add_u32 s{T}, s{T}, {WS['MUX'][0]}""")
    unp = [x for i in range(10) for x in (f"v_lshlrev_b32 v{AC+2*i}, 16, v{XR_+i}", f"v_and_b32 v{AC+2*i+1}, 0xffff0000, v{XR_+i}")]
    dm = flat(w2_ops); mixed = []; side = own2 + unp
    for x in dm:
        mixed.append(x)
        if "buffer" in x:
            for _ in range(w2gap): mixed.append(side.pop(0) if side else "")
    fill = own + list(setup[0]) + ["WAITLG xr\ns_barrier"] + mixed + side + list(setup[1]) + [f"v_lshlrev_b32 v{V}, 2, v{r.J}"]
    need = len(fill) - len(setup[1]) + 1
    reads = [x + f" ; @bw{(k + r.npre_w) // 10}" for k, x in enumerate(reads)]
    k = 0
    while k < chk2 or need > 0:
        if k < nr1: a(reads.pop(0))
        if k == sig2: a(f"WAITVM ost\nbuffer_atomic_add v{r.ONE}, v{r.AT}, {srd(r.SW)}, s{sF2s} offen sc1\n" + st.text("s2"))
        if k == poll2: a(poll_issue(r.FL, r.AT, r.SW, (f"s{sF2}", 0), "f2"))
        for _ in range(1 if k < nr1 else 2):
            if fill: a(fill.pop(0)); need -= 1
        k += 1
    a(f"v_lshlrev_b32 v{V}, 2, v{r.J}")
    a(st.text("brd"))
    a(poll_inline(r.FL, r.AT, r.SW, T + 2, (f"s{sF2}", 0), 16, "f2"))
    a(st.text("e2"))
    a(f"s_mov_b32 exec_lo, 0\nbuffer_load_dword v{AC+16}, v{V}, {srd(r.SW)}, s{T} offen sc1 ; @o0\ns_mov_b64 exec, -1")
    ol = []
    for s_ in range(18):
        pre = f"s_add_u32 s{sOb}, s{sOb}, 4096\n" if s_ % 4 == 0 and s_ else ""
        if s_ < 16:
            ol.append(pre + f"buffer_load_dwordx4 {vr(OF+4*s_)}, v{f.L16}, {srd(r.SW)}, s{sOb} offen offset:{1024*(s_%4)} sc1 ; @o{s_}")
        else:
            ol.append(pre + "\n".join(f"buffer_load_dwordx2 {vr(OF+4*s_+2*h,2)}, v{f.L8}, {srd(r.SW)}, s{sOb} offen offset:{1024*(s_%4)+512*h} sc1 ; @o{s_}" for h in range(2)))
    emit(a, ol[:npre_o] + touches(r, 'ol'))
    sHa, sHb, sSS = sF2s, sF2, 79
    c3 = Cap()
    c3(f"""s_lshr_b32 s{T}, s{r.sTT}, 2
    s_mul_i32 s{T}, s{T}, {72*1024}
    s_lshl_b32 s{T+1}, s{w}, 10
    s_add_u32 s{T}, s{T}, s{T+1}
    s_add_u32 s{T}, s{T}, {WS['HC'][0]}
    s_lshl_b32 s{T+1}, s{r.sB}, 13
    s_add_u32 s{sHa}, s{T}, s{T+1}
    s_lshr_b32 s{T+1}, s{r.sB}, 2
    s_lshl_b32 s{T+1}, s{T+1}, 12
    s_add_u32 s{T}, s{T}, s{T+1}
    s_and_b32 s{T+1}, s{r.sB}, 3
    s_lshl_b32 s{T+1}, s{T+1}, 8
    s_add_u32 s{T}, s{T}, s{T+1}
    s_add_u32 s{sHb}, s{T}, {16*4096}
    s_lshl_b32 s{T}, s{r.sTT}, 10
    s_lshl_b32 s{T+1}, s{r.sB}, 7
    s_add_u32 s{T}, s{T}, s{T+1}
    s_add_u32 s{sSS}, s{T}, {WS['SS'][0]}
    s_lshl_b32 s{T}, s{r.sTT}, 6
    s_add_u32 s{T}, s{T}, {WS['MU'][0]}
    s_cmp_eq_u32 s{r.sB}, 0
    s_cselect_b32 s{T}, s{T}, {OOB}
    s_lshl_b32 s{T+1}, s{r.sTT}, 7
    s_add_u32 s{T+1}, s{T+1}, {WS['FLAG'][0] + F_E3*128}
    s_add_u32 s{T+2}, s{sHa}, 4096
    v_lshl_add_u32 v{V}, v{r.C}, 28, v{V}
    v_cmp_gt_u32 vcc, 32, v{r.L}""")
    shadow = fill[:-1] + c3.items
    n2 = min(nr2, len(reads))
    emit(a, spread(reads[:n2], shadow[:n2])); reads, shadow = reads[n2:], shadow[n2:]
    fill = flat(w2b_ops); rest = ol[npre_o:]
    for s_ in range(18):
        while reads and f"@bw{s_} " in reads[0] + " ": a(reads.pop(0))
        a(f"WAITVM o{s_}" + (f" WAITLG bw{s_}" if s_ else " WAITLG bw1"))
        mf = []
        for T_ in ((0, 1, 2, 3, 4) if s_ < 17 else (4, 0, 1, 2, 3)):
            b, k = wfr(s_, T_); acc = vr(AC + 4 * T_)
            mf.append(f"{MF} {acc}, {vr(b,4,k)}, {vr(OF+4*s_)}, {acc}")
        ex = []
        if rest: ex = flat([rest.pop(0)])
        else:
            while fill:
                ex.append(fill.pop(0))
                if "buffer" in ex[-1]: break
        k = -(-len(shadow) // (17 - s_)) if s_ < 17 else 0
        emit(a, pack(mf, reads[:5], ex, shadow[:k])); shadow = shadow[k:]; reads = reads[5:]
        if pack.left: print("   bleft", s_, pack.left)
    assert not fill and not w3a_ops and not reads
    M, Q = V + 2, V + 4
    a(f"""v_mov_b32 v{M+1}, v{AC+16}
    v_mov_b32 v{M}, v{AC+16}
    v_permlane32_swap_b32 v{M+1}, v{M}""")
    for i in (8, 9, 0, 1, 2, 3, 4, 5, 6, 7):
        a(f"v_pk_add_f32 {vr(AC+2*i,2)}, {vr(AC+2*i,2)}, {vr(M,2)} op_sel_hi:[1,0] neg_lo:[0,1] neg_hi:[0,1]")
    for i in range(10): a(f"v_cvt_pk_bf16_f32 v{XR_+i}, v{AC+2*i}, v{AC+2*i+1}")
    a(f"""buffer_store_dwordx4 {vr(XR_)}, v{f.L16}, {srd(r.SW)}, s{sHa} offen sc1 ; @hst
    buffer_store_dwordx4 {vr(XR_+4)}, v{f.L16}, {srd(r.SW)}, s{T+2} offen sc1 ; @hst
    s_mov_b32 exec_hi, 0
    buffer_store_dwordx2 {vr(XR_+8,2)}, v{f.L8}, {srd(r.SW)}, s{sHb} offen sc1 ; @hst
    s_mov_b64 exec, -1
    v_pk_mul_f32 {vr(Q,2)}, {vr(AC+16,2)}, {vr(AC+16,2)}
    v_pk_fma_f32 {vr(Q,2)}, {vr(AC+18,2)}, {vr(AC+18,2)}, {vr(Q,2)}
    v_cndmask_b32 v{Q}, 0, v{Q}, vcc
    v_cndmask_b32 v{Q+1}, 0, v{Q+1}, vcc""")
    for i in range(8): a(f"v_pk_fma_f32 {vr(Q,2)}, {vr(AC+2*i,2)}, {vr(AC+2*i,2)}, {vr(Q,2)}")
    a(f"""v_add_f32 v{Q}, v{Q}, v{Q+1}
    v_mov_b32 v{Q+1}, v{Q}
    v_permlane32_swap_b32 v{Q}, v{Q+1}
    v_add_f32 v{Q}, v{Q}, v{Q+1}
    v_mov_b32 v{Q+1}, v{Q}
    v_permlane16_swap_b32 v{Q}, v{Q+1}
    v_add_f32 v{Q}, v{Q}, v{Q+1}
    buffer_store_dword v{M}, v{V}, {srd(r.SW)}, s{T} offen sc1 ; @sst
    v_lshrrev_b32 v{V+1}, 1, v{f.L8}
    s_mov_b32 exec_hi, 0
    buffer_store_dword v{Q}, v{V+1}, {srd(r.SW)}, s{sSS} offen sc1 ; @sst
    s_mov_b64 exec, -1""")
    a(st.text("hc"))
    emit(a, touches(r, 'hc'))
    a(f"WAITVM hst\nbuffer_atomic_add v{r.ONE}, v{r.AT}, {srd(r.SW)}, s{T+1} offen sc1")
    a(st.text("s3"))
    if w3b_ops: a(("WAITVM slab1\n" if any("@slab1" in x for x in w2_ops) else "") + "s_barrier")
    emit(a, w3b_ops)

def k_attn_a(name="attna_kernel", stamps=False, akw={}, **kw):
    a = Asm(); r = a_regs(); slow = []
    st = Stamps(stamps, kid=0)
    a(f"s_cmp_ge_u32 s2, 256\ns_cbranch_scc1 {name}_end")
    a(st.text("start"))
    h = phase_a(a, r, st, slow, **akw)
    phase_a2(a, r, st, slow, h, b_dma_ops(r, slow), **kw)
    if stamps:
        a("s_waitcnt vmcnt(0)"); st.flush(a, r.SW, 2)
    a(f"{name}_end:\ns_endpgm")
    for s in slow: a(s)
    return (name, 256, 256, 163840), kernel_text(name, a, force_vgpr=512), st.names

if __name__ == "__main__":
    k = k_attn_a(stamps=True)
    open("attna.s", "w").write(file_text([k[0]], [k[1]]))
```

```python
from asmlib import *
MB = 1 << 20
ARG = dict(x=0, wqkv=8, wphi=16, wo=24, wg=40, wu=48, wd=56, out=64, dbg=72, ws=80)
SZ = dict(x=2359296, wqkv=576*1728*2, wphi=32*18*18*2, wo=576*576*2, wg=576*4608*2, wu=576*4608*2, wd=576*4608*2, out=2359296, dbg=256)
WS = dict(HC=(0, 2359296), HH=(4*MB, 2048*4608*2), PART=(24*MB, 128*64*2560), SS=(47*MB, 128*1024),
          O=(48*MB, 2359296), MU=(51*MB, 8192), MUX=(51*MB + 65536, 8192), WBAR=(51*MB + 131072, 2048), KVP=(52*MB, 256*8192),
          FLAG=(56*MB, 262144), RP=(57*MB, 32*55296), W8=(59*MB, 8*18432), STAMP=(60*MB, 1*MB))
F_E1, F_E2, F_E3, F_E4, F_E5, F_END = 0, 16, 80, 208, 976, 1360
MF = "v_mfma_f32_16x16x32_bf16"

def mk_srd(a, s, ptr, size, off=0):
    if off:
        a(f"s_add_u32 s{s}, s{ptr}, {off}\ns_addc_u32 s{s+1}, s{ptr+1}, 0\ns_and_b32 s{s+1}, s{s+1}, 0xffff")
    else:
        a(f"s_mov_b32 s{s}, s{ptr}\ns_and_b32 s{s+1}, s{ptr+1}, 0xffff")
    a(f"s_mov_b32 s{s+2}, {size}\ns_mov_b32 s{s+3}, 0x20000")

def vr(b, n=4, k="v"): return f"{k}[{b}:{b+n-1}]" if n > 1 else f"{k}{b}"

class Stamps:
    clk = False
    def __init__(self, on, base=80, kid=0, only=None):
        self.on, self.base, self.n, self.kid, self.only = on, base, 0, kid, only
        self.names = []
    def text(self, name=""):
        if not self.on or (self.only is not None and name not in self.only): return ""
        b = self.base + 2 * self.n; self.n += 1; self.names.append(name)
        assert b + 1 <= 101
        return f"{'s_memtime' if Stamps.clk else 's_memrealtime'} s[{b}:{b+1}]"
    def flush(self, a, srd, vtmp, swave=3):
        if not self.on: return
        a("s_waitcnt lgkmcnt(0)")
        t = self.base + 1
        a(f"s_lshl_b32 s{t}, s2, 2\ns_add_u32 s{t}, s{t}, s{swave}\ns_lshl_b32 s{t}, s{t}, 6\ns_add_u32 s{t}, s{t}, {WS['STAMP'][0] + self.kid*65536}")
        for i in range(self.n):
            a(f"v_mov_b32 v{vtmp}, s{self.base + 2*i}\nbuffer_store_dword v{vtmp}, off, s[{srd}:{srd+3}], s{t} offset:{4*i}\ns_waitcnt vmcnt(0)")

def k_stamp(name="stamp_kernel", kid=7):
    a = Asm(); st = Stamps(True, kid=kid)
    a(st.text())
    a(f"s_cmp_ge_u32 s2, 256\ns_cbranch_scc1 {name}_end")
    a(f"s_load_dwordx2 s[4:5], s[0:1], {ARG['ws']}\nv_lshrrev_b32 v1, 6, v0\nv_readfirstlane_b32 s3, v1")
    a("s_waitcnt lgkmcnt(0)"); mk_srd(a, 12, 4, 64 * MB)
    st.flush(a, 12, 2)
    a(f"{name}_end:\ns_endpgm")
    return (name, 256, 256, 0), kernel_text(name, a)

def srd(s): return f"s[{s}:{s+3}]"
class R: pass
_lab = [0]
def poll_issue(vfl, vat, sw, sflag, tag=None, val=0):
    if vat is None:
        return f"buffer_load_dword v{vfl}, off, {srd(sw)}, {sflag[0]} offset:{sflag[1]} sc1" + (f" ; @{tag} @flag" if tag else "")
    return f"v_mov_b32 v{vfl}, {val}\nbuffer_atomic_add v{vfl}, v{vat}, {srd(sw)}, {sflag[0]} offen offset:{sflag[1]} sc0 sc1" + (f" ; @{tag} @flag" if tag else "")
def poll_check(vfl, vat, sw, stmp, sflag, count, tag, slow):
    _lab[0] += 1; L = f"Lp{_lab[0]}"; T = stmp
    slow.append(f"""{L}_slow:
    s_mov_b32 s{T+1}, 0
    {L}_spin:
    {poll_issue(vfl, vat, sw, sflag)}
    s_add_u32 s{T+1}, s{T+1}, 1
    s_waitcnt vmcnt(0)
    v_readfirstlane_b32 s{T}, v{vfl}
    s_cmp_gt_u32 s{T+1}, 100000
    s_cbranch_scc1 {L}_ok
    s_cmp_ge_u32 s{T}, {count}
    s_cbranch_scc1 {L}_ok
    s_branch {L}_spin""")
    return [f"WAITVM {tag}\nv_readfirstlane_b32 s{T}, v{vfl}", f"s_cmp_ge_u32 s{T}, {count}\ns_cbranch_scc0 {L}_slow\n{L}_ok:"]

def poll_inline(vfl, vat, sw, stmp, sflag, count, tag, bias=0):
    _lab[0] += 1; L = f"Lw{_lab[0]}"; T = stmp
    return f"""s_mov_b32 s{T+1}, 0
    WAITVM {tag}
    v_readfirstlane_b32 s{T}, v{vfl}
    v_mov_b32 v{vfl}, 0
    s_cmp_ge_u32 s{T}, {count - bias if bias else count}
    s_cbranch_scc1 {L}_ok
    {L}:
    buffer_atomic_add v{vfl}, v{vat}, {srd(sw)}, {sflag[0]} offen offset:{sflag[1]} sc0 sc1 ; @cond
    s_add_u32 s{T+1}, s{T+1}, 1
    s_cmp_gt_u32 s{T+1}, 100000
    s_waitcnt vmcnt(0) ; @cond
    v_readfirstlane_b32 s{T}, v{vfl}
    v_mov_b32 v{vfl}, 0
    s_cbranch_scc1 {L}_ok
    s_cmp_ge_u32 s{T}, {count}
    s_cbranch_scc0 {L}
    {L}_ok:"""

def lines(text):
    return [l.strip() for l in text.split("\n") if l.strip()]
def spread(main, *fills):
    n = len(main); out = []
    pos = [0] * len(fills)
    for i, m in enumerate(main):
        out.append(m)
        for k, f in enumerate(fills):
            want = (len(f) * (i + 1) + n - 1) // n
            while pos[k] < want: out.append(f[pos[k]]); pos[k] += 1
    if n == 0:
        for f in fills: out += f
    return out
def emit(a, items):
    for t in items: a(t)

def k_flush(name="flush_kernel", data=True, code=True):
    a = Asm()
    a(f"s_cmp_ge_u32 s2, 256\ns_cbranch_scc1 {name}_end")
    if data:
        a("s_load_dwordx2 s[4:5], s[0:1], 32\ns_waitcnt lgkmcnt(0)")
        mk_srd(a, 8, 4, 512 * MB)
        a(f"v_lshlrev_b32 v1, 4, v0\ns_lshl_b32 s3, s2, 15\ns_mov_b32 s6, 64\n{name}_l:")
        for i in range(8):
            a(f"buffer_load_dwordx4 v[{4+4*i}:{7+4*i}], v1, s[8:11], s3 offen\ns_add_u32 s3, s3, 4096")
        a(f"s_add_u32 s3, s3, {255*32768}\ns_waitcnt vmcnt(0)\ns_sub_u32 s6, s6, 1\ns_cmp_lg_u32 s6, 0\ns_cbranch_scc1 {name}_l")
    if code:
        a.raw(".rept 10240\n  v_add3_u32 v1, v2, v3, v0\n.endr")
    else:
        a(f"s_mov_b32 s6, 20\n{name}_d:\ns_sleep 100\ns_sub_u32 s6, s6, 1\ns_cmp_lg_u32 s6, 0\ns_cbranch_scc1 {name}_d")
    a(f"v_mov_b32 v40, 0\n{name}_end:\ns_endpgm")
    return (name, 256, 256, 0), kernel_text(name, a)

def _cls(line):
    if line.endswith(":") or not line: return None
    if line.startswith(("s_", "WAIT")): return "s"
    if line.startswith("ds_read"): return "d"
    if line.startswith(("v_exp", "v_rcp", "v_rsq")): return "t"
    return "v"
def pack(mf, *streams, carry=False):
    S = []
    for s in streams:
        items, at = (s[0], s[1:]) if isinstance(s, tuple) else (s, None)
        it = [lines(x) for x in items if x.strip()]
        vm = [k for k, x in enumerate(it) if any(l.startswith(("buffer_", "global_")) for l in x)]
        when = {}
        if at:
            gl = at[0] if len(at) == 1 else [at[0] + (at[1] - at[0]) * k // max(1, len(vm)) for k in range(len(vm))]
            when = dict(zip(vm, gl))
        S.append(dict(it=it, pos=0, when=when))
    out = []
    def eligible(s, g):
        if s["pos"] >= len(s["it"]): return False
        return g >= s["when"].get(s["pos"], 0)
    mf = list(mf)
    for g in range(len(mf)):
        out.append(mf[g])
        t = 1; nd = 0
        if g + 1 < len(mf) and mf[g + 1].startswith("WAIT"):
            w_, mf[g + 1] = mf[g + 1].split("\n"); out.append(w_); t = 2
        isvm = lambda it: any(l.startswith(("buffer_", "global_")) for l in it)
        if pack.excl and t == 1:
            hit = [s for s in S if eligible(s, g) and isvm(s["it"][s["pos"]])]
            if hit:
                s = hit[0]; out += s["it"][s["pos"]]; s["pos"] += 1; continue
        while True:
            best = None
            for pas in (0, 1):
                for s in S:
                    if not eligible(s, g): continue
                    if pack.excl and isvm(s["it"][s["pos"]]): continue
                    c = [x for x in map(_cls, s["it"][s["pos"]]) if x]
                    if pas == 0 and not (t == 1 and c[0] == "s"): continue
                    tt = t; d = nd
                    for x in c:
                        if x != "s" and tt == 1: tt = 2
                        tt += 2 if x == "t" else 1
                        d += x == "d"
                    if (tt <= 4 and d <= 1) or (t == 1 and len(c) > 2):
                        best = (s, tt, d); break
                if best: break
            if not best: break
            s, t, nd = best
            out += s["it"][s["pos"]]; s["pos"] += 1
            if t >= 4: break
    left = 0
    if carry: pack.used = S.pop()["pos"]
    for s in S:
        for it in s["it"][s["pos"]:]: out += it; left += len(it)
    pack.left = left if pack.verbose else 0
    return out
pack.verbose = False; pack.excl = True
def flat(items):
    out = []
    for x in items:
        if any(k in x for k in ("cselect", "cbranch", "exec", "WAIT", "s_addc")): out.append(x)
        else: out += lines(x)
    return out

class Cap:
    def __init__(self): self.items = []
    def __call__(self, t):
        ls = lines(t); i = 0
        while i < len(ls):
            if ls[i].startswith("s_cmp") or (i + 1 < len(ls) and ls[i+1].startswith("s_addc")):
                j = i + 1
                while j < len(ls) and ls[j].startswith(("s_cselect", "s_addc", "s_cbranch")): j += 1
                self.items.append("\n".join(ls[i:j])); i = j
            else:
                self.items.append(ls[i]); i += 1

class Pacer:
    def __init__(self): self.q = []; self.t = 0; self.due = 0
    def add(self, items, w):
        g = []
        for x in flat(items):
            g.append(x)
            if "buffer_" in x or "global_" in x:
                self.q.append((g, w(x) if callable(w) else w)); g = []
        if g: self.q.append((g, 0))
    def _pop(self):
        g, w = self.q.pop(0); self.due = max(self.due, self.t) + w; return g
    def valu(self, main):
        out = []
        for m in main:
            while self.q and self.t >= self.due:
                g = self._pop(); out += g; self.t += 4 * sum(len(lines(x)) for x in g)
            out.append(m)
            self.t += sum(8 if _cls(l) in "td" else 4 for l in lines(m) if _cls(l))
        return out
    def mfma(self, mf, *streams, carry=False):
        items, gaps = [], []; t0 = self.t
        for g in range(len(mf) - 1):
            self.t = t0 + 16 * g
            while self.q and self.t >= self.due:
                grp = self._pop(); items += grp
                if "buffer_" in grp[-1] or "global_" in grp[-1]: gaps.append(g)
        self.t = t0 + 16 * len(mf)
        return pack(mf, *streams[:1], (items, gaps), *streams[1:], carry=carry)
    def flush(self, pred=None):
        n = len(self.q) if pred is None else max([k + 1 for k, (g, w) in enumerate(self.q) if any(pred in x for x in g)] + [0])
        out = []
        for _ in range(n): out += self._pop()
        return out
```

```python
from common import *

def ffn_regs():
    r = R()
    r.ACC = 4; r.FR = 164; r.XV = 188; r.STG = 220; r.TRA = 236; r.TRC = 248
    r.DVW = 249; r.DVD = 250; r.DC = 251; r.L16 = 252; r.L8 = 253; r.AT = 254; r.FL = 255
    r.SG, r.SU, r.SD, r.SC, r.SW = 12, 16, 20, 24, 28
    r.SO = 12
    r.sWv = 3
    r.sW, r.sWC, r.sMC, r.sM0, r.sX, r.sH, r.sHC, r.sHL, r.sD, r.sDC, r.sF4, r.sF5, r.sP = 32, 33, 34, 35, 36, 37, 38, 39, 40, 41, 42, 43, 44
    r.sRD, r.sRH, r.sRC = 45, 49, 53
    r.sT = 57
    r.sKG, r.sJ, r.sTB = 64, 65, 66
    r.sXt = 24; r.sPt = 67; r.sUo, r.sUs, r.sUc = 71, 72, 73; r.sQ, r.sF6, r.sTok, r.sU1 = 76, 77, 78, 79
    r.DVS = r.DC; r.wfl = ''
    r.SLOT = 24576; r.NS = 5; r.XB = 0; r.SB = 36864; r.S0 = 3
    return r

def ffn_setup1(a, r, v1=1, v2=2, v3=3):
    a(f"""v_bfe_u32 v{v2}, v{v1}, 1, 2
    v_bfe_u32 v{v3}, v{v1}, 4, 2
    v_xor_b32 v{v2}, v{v2}, v{v3}
    v_and_b32 v{v3}, 1, v{v1}
    v_lshlrev_b32 v{v3}, 4, v{v3}
    v_lshl_add_u32 v{v2}, v{v2}, 5, v{v3}
    v_lshrrev_b32 v{r.FL}, 3, v{v1}
    v_mul_u32_u24 v{r.DVW}, 9216, v{r.FL}
    v_add_u32 v{r.DVW}, v{r.DVW}, v{v2}
    v_mul_u32_u24 v{r.DVD}, 1152, v{r.FL}
    v_add_u32 v{r.DVD}, v{r.DVD}, v{v2}""")
    T = r.sT; w = r.sWv
    a(f"""s_and_b32 s{r.sKG}, s2, 7
    s_bfe_u32 s{r.sJ}, s2, 0x20003
    s_lshr_b32 s{r.sTB}, s2, 5
    s_mul_i32 s{T}, s{r.sKG}, 1152
    s_lshl_b32 s{T+1}, s{r.sJ}, 8
    s_add_u32 s{r.sW}, s{T}, s{T+1}
    s_mul_i32 s{T+2}, s{w}, {8*9216}
    s_add_u32 s{r.sW}, s{r.sW}, s{T+2}
    s_mul_i32 s{r.sM0}, s{w}, 3072""")

def ffn_setup2(a, r, v1=1, v2=2, v3=3):
    T = r.sT; w = r.sWv
    a(f"""v_lshlrev_b32 v{r.L16}, 4, v{v1}
    v_lshlrev_b32 v{r.L8}, 3, v{v1}
    v_cmp_eq_u32 vcc, 0, v{v1}
    v_lshrrev_b32 v{v2}, 2, v{v1}
    v_and_b32 v{v3}, 3, v{v1}
    v_lshlrev_b32 v{v3}, 3, v{v3}
    v_mov_b32 v{r.FL}, 0x40000000
    v_cndmask_b32 v{r.AT}, v{r.FL}, 0, vcc
    v_lshl_add_u32 v{r.TRC}, v{v2}, 5, v{v3}
    v_and_b32 v{r.FL}, 7, v{v2}
    v_lshl_add_u32 v{v3}, v{r.FL}, 7, v{v3}
    v_lshrrev_b32 v{r.FL}, 3, v{v2}
    v_mul_u32_u24 v{r.FL}, 3072, v{r.FL}
    v_add_u32 v{v3}, v{v3}, v{r.FL}
    v_add_u32 v{v3}, {r.SB}, v{v3}
    v_bfe_u32 v{v2}, v{v2}, 1, 2""")
    for tc in range(4):
        a(f"v_xor_b32 v{r.FL}, {tc}, v{v2}\nv_lshl_add_u32 v{r.TRA+tc}, v{r.FL}, 5, v{v3}\nv_add_u32 v{r.TRA+4+tc}, 61440, v{r.TRA+tc}")
    a(f"""s_lshl_b32 s{T+1}, s{r.sJ}, 8
    s_lshl_b32 s{T+3}, s{r.sKG}, 2
    s_add_u32 s{T+3}, s{T+3}, s{r.sJ}
    s_mul_i32 s{T+3}, s{T+3}, 55296
    s_add_u32 s{T+3}, s{T+3}, {WS['RP'][0]}
    s_add_u32 s{r.sDC}, s{T+3}, 36864
    s_mul_i32 s{r.sMC}, s{w}, 9216
    s_add_u32 s{r.sWC}, s{T+3}, s{r.sMC}
    s_mul_i32 s{T}, s{r.sKG}, {576*1152}
    s_mul_i32 s{T+2}, s{w}, {8*1152}
    s_add_u32 s{r.sD}, s{T}, s{T+1}
    s_add_u32 s{r.sD}, s{r.sD}, s{T+2}
    s_lshl_b32 s{T+4}, s{r.sTB}, 2
    s_add_u32 s{T+4}, s{T+4}, s{w}
    s_mul_i32 s{T+5}, s{T+4}, {72*1024}
    s_add_u32 s{r.sX}, s{T+5}, {WS['HC'][0]}
    s_mul_i32 s{T}, s{r.sKG}, {32*72*1024}
    s_add_u32 s{T}, s{T}, s{T+5}
    s_add_u32 s{r.sHL}, s{T}, {WS['HH'][0]}
    s_lshl_b32 s{T+1}, s{r.sJ}, 14
    s_add_u32 s{r.sH}, s{r.sHL}, s{T+1}
    s_lshr_b32 s{T+1}, s{r.sJ}, 1
    s_lshl_b32 s{T+1}, s{T+1}, 12
    s_and_b32 s{T+2}, s{r.sJ}, 1
    s_lshl_b32 s{T+2}, s{T+2}, 9
    s_add_u32 s{T+1}, s{T+1}, s{T+2}
    s_add_u32 s{T+1}, s{T+1}, {16*4096}
    s_add_u32 s{r.sHC}, s{r.sHL}, s{T+1}
    s_lshl_b32 s{T}, s{r.sKG}, 5
    s_add_u32 s{T}, s{T}, s{T+4}
    s_mul_i32 s{T}, s{T}, 384
    s_add_u32 s{r.sF4}, s{T}, {WS['FLAG'][0] + F_E4*128}
    s_lshl_b32 s{T}, s{r.sTB}, 2
    s_add_u32 s{T}, s{T}, s{r.sJ}
    s_lshl_b32 s{T+1}, s{T}, 2
    s_add_u32 s{T+1}, s{T+1}, s{w}
    s_mul_i32 s{T+1}, s{T+1}, 384
    s_add_u32 s{r.sF5}, s{T+1}, {WS['FLAG'][0] + F_E5*128}""")
    a(f"""s_lshr_b32 s{T}, s{r.sKG}, 2
    s_lshl_b32 s{T}, s{T}, 7
    v_add_u32 v{r.DVS}, s{T}, v{r.DVD}
    s_xor_b32 s{T}, s{T}, 128
    v_add_u32 v{r.DVD}, s{T}, v{r.DVD}
    s_and_b32 s{T+1}, s{r.sKG}, 3""")
    for t in range(4):
        a(f"s_xor_b32 s{T}, s{T+1}, {3 ^ t}\ns_lshl_b32 s{T}, s{T}, 10\ns_add_u32 s{r.sXt+t}, s{T}, s{r.sX}")
    for i in range(4):
        a(f"""s_add_u32 s{T}, s{r.sJ}, {i}
        s_and_b32 s{T}, s{T}, 3
        s_mul_i32 s{r.sRD+i}, s{T}, {4*32*1152}
        s_add_u32 s{r.sRD+i}, s{r.sRD+i}, s{r.sD}
        s_lshl_b32 s{r.sRH+i}, s{T}, 14
        s_add_u32 s{r.sRH+i}, s{r.sRH+i}, s{r.sHL}
        s_lshl_b32 s{r.sRC+i}, s{T}, 12""")

def ffn_srds(a, r, pW, pD, pWS=None):
    mk_srd(a, r.SG, pW, SZ['wg']); mk_srd(a, r.SU, pW + 2, SZ['wu']); mk_srd(a, r.SD, pD, SZ['wd'])
    if pWS: mk_srd(a, r.SW, pWS, 64 * MB)

def kq(q):
    if q < 8: return None, 4 * (q // 2) + q % 2
    if q < 10: return None, 16 + q - 8
    if q < 12: return 0, 2 + q - 10
    if q < 15: return q - 11, 2
    return q - 14, 3

def slab_ops(r, n):
    ops = []; T = r.sT
    slot = (n + r.S0) % r.NS
    if n < 12:
        col = 0 if n < 6 else 128
        for ks in range(3):
            ops.append((f"s_add_u32 s{T+ks}, s{r.sW}, {(3*(n%6)+ks)*32*9216 + col - 1024*ks}", 1))
        for m, S in enumerate((r.SG, r.SU)):
            ops.append((f"s_add_u32 m0, s{r.sM0}, {r.SB + slot*r.SLOT + m*12288}", 1))
            for ks in range(3):
                ops.append((f"buffer_load_dwordx4 v{r.DVW}, {srd(S)}, s{T+ks} offen offset:{1024*ks} {r.wfl} lds ; @slab{n}", 2))
    else:
        col = 0; dv = r.DVS if n % 2 else r.DVD
        for m in range(2):
            ops.append((f"s_add_u32 m0, s{r.sM0}, {r.SB + slot*r.SLOT + m*12288}", 1))
            for ks in range(3):
                q = 6 * ((n - 12) // 2) + 3 * m + ks
                rot, s = kq(q)
                b = r.sD if rot is None else r.sRD + rot
                c = s * 32 * 1152 + col - 1024 * ks
                assert c >= 0
                ops.append((f"s_add_u32 s{T}, s{b}, {c}", 1))
                ops.append((f"buffer_load_dwordx4 v{dv}, {srd(r.SD)}, s{T} offen offset:{1024*ks} {r.wfl} lds ; @slab{n}", 2))
    return ops

def lin_ops(r, sg, sm, n, tag):
    ops = []
    for i in range(n):
        if i % 4 == 0:
            ops.append((f"s_add_u32 m0, s{sm}, {1024*i}", 1)); ops.append((f"s_add_u32 s{r.sT}, s{sg}, {1024*i}", 1))
        ops.append((f"buffer_load_dwordx4 v{r.L16}, {srd(r.SW)}, s{r.sT} offen offset:{1024*(i%4)} sc1 lds ; @{tag}", 2))
    return ops
def wc_ops(r): return lin_ops(r, r.sWC, r.sMC, 9, "wc")
def dc_ops(r):
    T = r.sT
    return [(f"s_mul_i32 s{T}, s{r.sWv}, 5120\ns_min_u32 s{T}, s{T}, {13*1024}", 2), (f"s_add_u32 s{r.sDC}, s{r.sDC}, s{T}\ns_add_u32 s{r.sMC}, s{T}, {r.XB}", 2)] + lin_ops(r, r.sDC, r.sMC, 5, "dc")

def xreg(r, s, t):
    return vr(r.XV + 16 * s + 4 * t) if s < 2 else vr(16 * (s - 2) + 4 * t, 4, "a")
def hreg(r, q, t):
    if q in (10, 11): return vr(r.XV + 16 * (q - 10) + 4 * t)
    return vr(16 * (q if q < 10 else q - 2) + 4 * t, 4, "a")
def preg(k): return vr(16 * (k // 3) + 4 * (k % 3), 4, 'a')
def half(reg, h):
    m = re.match(r"([va])\[(\d+):", reg); b = int(m.group(2)) + 2 * h
    return f"{m.group(1)}[{b}:{b+1}]"
def x_loads(r, s):
    ops = []; tmp = r.sT + 3
    for t in range(4):
        so = f"s{r.sXt+t}"
        if s: ops.append((f"s_add_u32 s{tmp}, s{r.sXt+t}, {4096*s}", 1)); so = f"s{tmp}"
        if s < 16: ops.append((f"buffer_load_dwordx4 {xreg(r,s,t)}, v{r.L16}, {srd(r.SW)}, {so} offen sc1 ; @x{s}", 2))
        else:
            for h in range(2): ops.append((f"buffer_load_dwordx2 {half(xreg(r,s,t), h)}, v{r.L8}, {srd(r.SW)}, {so} offen offset:{512*h} sc1 ; @x{s} @half", 2))
    return ops
def frag_loads(r, regf, sbase, s, tag, fl, tmp):
    ops = [(f"s_add_u32 s{tmp}, s{sbase}, {4096*s}", 1)]
    for t in range(4):
        if s < 16 or s is None:
            ops.append((f"buffer_load_dwordx4 {regf(t)}, v{r.L16}, {srd(r.SW)}, s{tmp} offen offset:{1024*t} {fl} ; @{tag}", 2))
        else:
            for h in range(2):
                ops.append((f"buffer_load_dwordx2 {half(regf(t), h)}, v{r.L8}, {srd(r.SW)}, s{tmp} offen offset:{1024*t+512*h} {fl} ; @{tag} @half", 2))
    return ops

def ffn_main(a, r, st, slow, cap=2, pace=5, lat=80, chk=55, lead=50, hst='sc1', pst='sc1', hld='sc1', nochk=False, fine=False, npre=5, wcpre=True, verbose=False, touch={}, tgap=145, kfirst=True, nx0=1, merge={1: 0, 3: 2, 5: 4, 'dc': 12}, slabat={}, dcat='early', fcd=30, vmcost=2, tafter=8, tat=625, p0=(90, 30, 16), s1=35, rfd=7, sflag=None, s17late=False, xgap=100, excl=True, d1=6, e4=(10, 10), entry=lambda: None, early_entry=False, sahead=2, minsp=(4, 6), rdl=9, e4b=(45, 1)):
    S = Sched(cap)
    groups = []
    for n in range(6):
        for tc in range(4):
            for m in range(2): groups.append(("A", n, m, tc))
    for n in range(6):
        for m in range(2): groups.append(("C", n, m, 0))
    for n in range(6):
        for tc in range(4):
            for m in range(2): groups.append(("B", n, m, tc))
    for n in range(6):
        for tc in (0, 1, 2, 3, 8, 4)[:d1]: groups.append(("D", n, 0, tc))
    for tc in (4, 5, 6, 7)[d1 - 5:]:
        for n in range(6): groups.append(("D", n, 0, tc))
    gidx = {g: i for i, g in enumerate(groups)}
    def tset(kind, tc): return range(3) if kind == "D" and 4 <= tc < 8 else range(4)
    def accb(kind, m, tc):
        if kind in "AB": return r.ACC + 32 * tc + 16 * m
        if kind == "C": return r.ACC + 128 + 16 * m
        return r.ACC + (128, 144, 0, 16, 48, 64, 80, 96, 32)[tc]
    def slab_of(g):
        kind, n, m, tc = g
        if kind == "A": return n
        if kind == "B": return 6 + n
        if kind == "C": return "wc"
        return 12 + 2 * (n // 2) + tc // 4 if tc < 8 else "dc"
    def frags_of(gi):
        kind, n, m, tc = groups[gi]
        if gi < 8 and kfirst:
            return [(i % 2, (i // 2) % 4, i // 8) for i in range(3 * gi, 3 * gi + 3)]
        return [(m, tc, ks) for ks in range(3)]
    def frag_reads(gi):
        kind, n, _, _ = g = groups[gi]
        b = r.FR + 12 * (gi % 2); out = []
        sl = slab_of(g)
        for fi, (m, tc, ks) in enumerate(frags_of(gi)):
            pre = ""
            if sl == "wc": ad, off, hs = r.TRC, m * 18432 + (3 * n + ks) * 1024, 512
            elif sl == "dc":
                rot, s = kq(3 * n + ks); ad, off, hs = r.TRC, s * 1024, 512
                if rot is not None:
                    ad = 1 + ks; pre = f"v_add_u32 v{ad}, s{r.sRC+rot}, v{r.TRC}"
            else:
                hm = m if kind in "AB" else n % 2
                slot = (sl + r.S0) % r.NS
                off = slot * r.SLOT + hm * 12288; pg = int(off >= 61440)
                ad = r.TRA + 4 * pg + tc % 4; off += ks * 1024 - 61440 * pg; hs = 6144
            if pre: out.append(pre)
            for h in range(2):
                out.append(f"ds_read_b64_tr_b16 {vr(b+4*fi+2*h, 2)}, v{ad} offset:{off+h*hs} ; @fr{gi}")
        return out
    start = []; done = []
    for gi, (kind, n, _, tc0) in enumerate(groups):
        b = r.FR + 12 * (gi % 2)
        start.append(S.n())
        for t in tset(kind, tc0):
            for fi, (m, tc, ks) in enumerate(frags_of(gi)):
                acc = vr(accb(kind, m, tc) + 4 * t); s = 3 * n + ks
                breg = xreg(r, s, t) if kind in "ABC" else hreg(r, s, t)
                S.mfma(f"{MF} {acc}, {vr(b+4*fi)}, {breg}, {'0' if s == 0 else acc}")
        done.append(S.n())
    NG = len(groups); F0 = S.n()
    ffn_main.ideal = [16 * (done[g] - start[g]) for g in range(NG)]; ffn_main.start = start
    RING, NR = r.ACC, 12
    fr = [(tc, q) for tc in range(4) for q in range(18)]
    for k, (tc, q) in enumerate(fr):
        acc = vr(accb("D", 0, 4 + tc) + 12)
        S.mfma(f"{MF} {acc}, {vr(RING + 4 * (k % NR))}, {hreg(r, q, 3)}, {'0' if q == 0 else acc}")
    END = S.n()
    G = lambda *g: start[gidx[g]]
    first_use, last_use = {}, {}
    for gi, g in enumerate(groups):
        sl = slab_of(g); first_use.setdefault(sl, gi); last_use[sl] = gi
    bar_at = {}
    for sl, gi in first_use.items():
        if gi == 0: continue
        key = gi - 1
        if d1 == 5 and sl in (13, 15, 17): key = first_use[13] - 1
        elif sl in (13, 15) or (sl == 17 and not s17late): key = first_use[sl - 1] - 1
        if sl in merge: key = first_use[merge[sl]] - 1
        if key < 0: continue
        bar_at.setdefault(key, []).append(sl)
    bars = sorted(bar_at)
    def free_slot(sl):
        return min(start[b] for b in bars if b >= last_use[sl]) + 1
    def tagof(sl): return f"slab{sl}" if isinstance(sl, int) else sl
    if early_entry:
        assert all(k == 1 for k, v in merge.items() if v == 0)
        for t in frag_reads(0): a(t)
        entry()
    else:
        entry()
        a("WAITVM slab0" + "".join(f" WAITVM slab{k}" for k, v in merge.items() if v == 0) + "\ns_barrier")
        for t in frag_reads(0): a(t)
    a(st.text("C0"))
    for gi, g in enumerate(groups):
        kind, n, m, tc = g
        w = f"WAITLG fr{gi}"
        if kind == "A" and (gi < 8 or m + tc == 0): w += f" WAITVM x{3*n + max(f[2] for f in frags_of(gi))}"
        if kind == "D" and tc == 0: w += f" WAITVM h{3*n+2 if n != 3 else 9}"
        for sl in bar_at.get(gi, []): w += f" WAITVM {tagof(sl)}"
        S.fix(start[gi], w)
        if gi in bar_at: S.fix(start[gi], "s_barrier")
        if fine and gi < 155:
            if gi: S.fix(start[gi], f"v_writelane_b32 v{r.TRA+8+(gi-1)//64}, s74, {(gi-1)%64}")
            S.fix(start[gi], ("s_memrealtime" if fine == 2 else "s_memtime") + " s[74:75]")
        if gi + 1 < NG:
            k = 0
            for t in frag_reads(gi + 1):
                S.add("rd", start[gi] + 1 + k, min(start[gi] + rdl, done[gi] - 1), t)
                if t.startswith("ds_"): k += 1
    for k, (tc, q) in enumerate(fr):
        slot = (13 + 2 * (q // 6) + r.S0) % r.NS
        off = slot * r.SLOT + ((q // 3) % 2) * 12288; pg = int(off >= 61440); off += (q % 3) * 1024 - 61440 * pg
        for h in range(2):
            e = F0 + k - NR + 1 if k >= NR else F0 - 60
            S.add("rf", e, F0 + 2 * (k // 2) - rfd, f"ds_read_b64_tr_b16 {vr(RING + 4*(k % NR) + 2*h, 2)}, v{r.TRA + 4*pg + tc} offset:{off + 6144*h} ; @ff{k//2}")
        if k % 2 == 0: S.fix(F0 + k, f"WAITLG ff{k//2}", free=True)
    bslot = {sl: start[k] for k, l in bar_at.items() for sl in l}
    for sl_, nm in ((G("B", 0, 0, 0), "B"), (G("D", 0, 0, 0), "D"), (F0, "F")):
        t = st.text(nm)
        if t: S.fix(sl_, t)
    def epi_gu(kind, tc, deadline):
        e = done[gidx[(kind, 5, 1, tc)]] + 8
        h = tc % 2
        stg = r.STG if kind != "B" else r.XV + 16 * (tc // 2)
        if kind != "C" and h == 1:
            S.add("ep", e, None, f"s_add_u32 s{r.sT+4}, s{r.sH}, {4096 * (tc // 2 + (2 if kind == 'B' else 0))}")
        for t in range(4):
            g, u = accb(kind, 0, tc) + 4 * t, accb(kind, 1, tc) + 4 * t
            for i in range(4): S.add("ep", e, deadline, f"v_mul_f32 v{g+i}, v{g+i}, v{u+i}")
            d = stg + 4 * t + 2 * h
            S.add("ep", e, deadline, f"v_cvt_pk_bf16_f32 v{d}, v{g}, v{g+1}")
            S.add("ep", e, deadline, f"v_cvt_pk_bf16_f32 v{d+1}, v{g+2}, v{g+3}")
            if kind == "C":
                S.add("ep", e, None, f"buffer_store_dwordx2 {vr(d,2)}, v{r.L8}, {srd(r.SW)}, s{r.sHC} offen offset:{1024*t} {hst} ; @stC", 2)
            elif h == 1:
                S.add("ep", e, None, f"buffer_store_dwordx4 {vr(stg+4*t)}, v{r.L16}, {srd(r.SW)}, s{r.sT+4} offen offset:{1024*t} {hst} ; @st{kind}{tc//2}", 2)
        return e
    for tc in range(4): epi_gu("A", tc, G("B", 0, 0, tc) - 2)
    e = epi_gu("C", 0, G("D", 0, 0, 0) - 2); tC = e + 25 + lat
    T4 = r.sT + 4; w = r.sWv
    pre = lines(f"""s_lshl_b32 s{T4}, s{r.sTB}, 2
    s_add_u32 s{T4}, s{T4}, s{r.sJ}
    s_lshl_b32 s{T4}, s{T4}, 2
    s_add_u32 s{T4}, s{T4}, s{w}
    s_mul_i32 s{T4}, s{T4}, {64*2560}
    s_add_u32 s{r.sQ}, s{T4}, {WS['PART'][0]}
    s_mul_i32 s{T4}, s{r.sKG}, 2560
    s_add_u32 s{r.sP}, s{r.sQ}, s{T4}
    s_lshl_b32 s{T4}, s{T4}, 3
    s_add_u32 s{r.sQ}, s{r.sQ}, s{T4}
    s_lshr_b32 s{r.sU1}, s{r.sKG}, 2
    s_mul_i32 s{r.sUs}, s{r.sU1}, 81920
    s_sub_u32 s{r.sUo}, 81920, s{r.sUs}
    s_lshr_b32 s{T4}, s{w}, 1
    s_mul_i32 s{r.sUc}, s{T4}, 81920
    s_lshl_b32 s{r.sF6}, s{r.sU1}, 7
    s_add_u32 s{r.sF6}, s{r.sF6}, s{r.sF5}
    s_and_b32 s{r.sTok}, s{r.sKG}, 3""")
    for t in range(4): pre += lines(f"s_xor_b32 s{T4}, s{r.sTok}, {3 ^ t}\ns_mul_i32 s{T4}, s{T4}, 20480\ns_add_u32 s{r.sPt+t}, s{T4}, s{r.sP}")
    pre += lines(f"s_lshl_b32 s{T4}, s{r.sTB}, 4\ns_add_u32 s{r.sTok}, s{r.sTok}, s{T4}\ns_lshl_b32 s{T4}, s{w}, 2\ns_add_u32 s{r.sTok}, s{r.sTok}, s{T4}")
    for t in pre: S.add("ep", G("B", 2, 0, 0), G("B", 3, 0, 0) - 1, t)
    dls = [G("D", 0, 0, 2) - 2, G("D", 0, 0, 8) - 2, G("D", 3, 0, 0) - 4, G("D", 3, 0, 0) - 4]
    eb = [epi_gu("B", tc, dls[tc]) for tc in range(4)]
    tB0, tB1 = eb[1] + 25 + lat, eb[3] + 25 + lat
    def epi_d(tc, tag, dl=None):
        e = done[gidx[("D", 5, 0, tc)]] + 8
        h = tc % 2; su = r.sUc if tc == 8 else r.sUo if tc < 4 else r.sUs
        for t in tset("D", tc):
            g = accb("D", 0, tc) + 4 * t
            d = r.STG + 4 * t + 2 * h
            S.add("ep", e, dl, f"v_cvt_pk_bf16_f32 v{d}, v{g}, v{g+1}")
            S.add("ep", e, dl, f"v_cvt_pk_bf16_f32 v{d+1}, v{g+2}, v{g+3}")
            if tc == 8 or h == 1: S.add("ep", e, None, f"s_add_u32 s{T4}, s{r.sPt+t}, s{su}")
            if tc == 8:
                S.add("ep", e, None, f"buffer_store_dwordx2 {vr(d,2)}, v{r.L8}, {srd(r.SW)}, s{T4} offen offset:2048 {pst} ; @{tag}", 2)
            elif h == 1:
                S.add("ep", e, None, f"buffer_store_dwordx4 {vr(r.STG+4*t)}, v{r.L16}, {srd(r.SW)}, s{T4} offen offset:{1024*((tc//2)%2)} {pst} ; @{tag}", 2)
        return e
    tl = G("D", 1, 0, d1 - 1)
    for tc in (0, 1, 2, 3, 8): e = epi_d(tc, "sp0", tl - 1 if tc < 2 else F0 - 62)
    tP0 = e + 12 + p0[0]
    epi_d(4, "sp1"); epi_d(5, "sp1")
    r.vB, r.vHc, r.vSS, r.vI, r.vRs, r.vMu = r.ACC + 128, r.ACC + 60, r.ACC + 112, r.ACC + 120, r.ACC + 126, r.ACC + 127
    Q = r.vSS
    own = ["WAITVM stat"] + lines(f"v_add_f32 v{Q}, v{Q}, v{Q+1}\nv_mov_b32 v{Q+1}, v{Q}\nv_permlane32_swap_b32 v{Q}, v{Q+1}\nv_add_f32 v{Q}, v{Q}, v{Q+1}\nv_mov_b32 v{Q+1}, v{Q}\nv_permlane16_swap_b32 v{Q}, v{Q+1}\nv_add_f32 v{Q}, v{Q}, v{Q+1}")
    own += lines(f"v_mov_b32 v{r.vRs}, 0x3727c5ac\nv_fmac_f32 v{r.vRs}, 0x3ae38e39, v{r.vSS}\nv_rcp_f32 v{r.vRs}, v{r.vRs}")
    for k in range(10):
        own += lines(f"v_lshlrev_b32 v{r.vB+2*k}, 16, v{r.vHc+16*(k//4)+k%4}\nv_and_b32 v{r.vB+2*k+1}, 0xffff0000, v{r.vHc+16*(k//4)+k%4}\nv_add_f32 v{r.vB+2*k}, v{r.vB+2*k}, v{r.vMu}\nv_add_f32 v{r.vB+2*k+1}, v{r.vB+2*k+1}, v{r.vMu}")
    I = r.vI
    own += lines(f"""v_lshrrev_b32 v{I}, 6, v{r.L16}
    v_and_b32 v{I}, 12, v{I}
    v_bfe_u32 v{I+1}, v{r.L16}, 4, 4
    v_sub_u32 v{I}, v{I+1}, v{I}
    v_and_b32 v{I+1}, 16, v{r.L16}
    v_mov_b32 v{I+4}, 0x3f80
    v_lshlrev_b32 v{I+1}, v{I+1}, v{I+4}
    v_lshrrev_b32 v{I}, 1, v{I}
    v_cmp_eq_u32 vcc, 0, v{I}
    v_mov_b32 v{I+4}, 0
    v_mov_b32 v{I+5}, 0
    v_cndmask_b32 v{I+2}, 0, v{I+1}, vcc
    v_cmp_eq_u32 vcc, 1, v{I}
    v_mov_b32 v{I}, 0
    v_bfe_u32 v{r.vSS}, v{r.L16}, 4, 4
    v_cndmask_b32 v{I+3}, 0, v{I+1}, vcc
    v_mov_b32 v{I+1}, 0
    v_mul_u32_u24 v{r.vSS}, 1152, v{r.vSS}
    v_lshrrev_b32 v{r.vSS+2}, 8, v{r.L16}
    v_lshl_add_u32 v{r.vSS+1}, v{r.vSS+2}, 3, v{r.vSS}
    v_and_b32 v{r.vSS+3}, 1, v{r.vSS+2}
    v_lshl_add_u32 v{r.vSS}, v{r.vSS+3}, 5, v{r.vSS}
    v_lshrrev_b32 v{r.vSS+2}, 1, v{r.vSS+2}
    v_lshl_add_u32 v{r.vSS}, v{r.vSS+2}, 4, v{r.vSS}""")
    for t in own: S.add("e2", tl, F0 - 2, t)
    epi_d(6, "sp1"); e = epi_d(7, "sp1")
    vm = []
    def put(ops, e, d):
        for t, c in ops: vm.append([e, d, t, c])
    def xl(s): return x_loads(r, s)
    def hl(q):
        rot, s = kq(q)
        put(frag_loads(r, lambda t: hreg(r, q, t), r.sHL if rot is None else r.sRH + rot, s, f"h{q}", hld, r.sT + 3), hfree(q), hneed(q))
    def slab(n): put(slab_ops(r, n), max(slabat.get(n, 0), free_slot(n - r.NS) if n >= r.NS else 0), bslot[n])
    def sgn(stage, tag, e, sflag):
        put([(f"WAITVM {tag}\nbuffer_atomic_add v0, v{r.AT}, {srd(r.SW)}, s{sflag} offen offset:{128*stage} sc1", 2)], e, None)
    def chkflag(stage, e, tag, filler):
        put([(x, 1) for x in lines(poll_issue(r.FL, r.AT, r.SW, (f"s{r.sF4}", 128*stage), tag))], e, None)
        filler()
        c1, c2 = poll_check(r.FL, r.AT, r.SW, r.sT + 5, (f"s{r.sF4}", 128*stage), 0 if nochk else 4, tag, slow)
        vm.append([("after", tag, chk), None, c1, 2]); vm.append([("gap", 3), None, c2, 2])
    hfree = lambda q: done[gidx[("B", ((q if q < 10 else q - 2) + 2) // 3, 1, 3)]]
    hneed = lambda q: G("D", q // 3, 0, 0)
    nxt = npre
    for s in range(nx0, 3): put(xl(s), 0, start[(8 * s - 2) // 3 + (s == 2)])
    for n in range(1, 6):
        for s in range(max(3 * n, nx0), 3 * n + 3): put(xl(s), 0, G("A", n, 0, 0))
        if nxt <= min(n + sahead, 5): slab(nxt); nxt += 1
    put([(f"WAITVM sst\nbuffer_atomic_add v0, v{r.AT}, {srd(r.SW)}, s{sflag} offen offset:4 sc1", 2)], 0, None)
    def tch(k, at, gap):
        if touch.get(k):
            put([(t, 2) for t in touch[k]], at, None); vm.append([("gap", gap), None, "", 0])
    if not wcpre: put(wc_ops(r), 0, bslot["wc"])
    tch("ffnx", 0, xgap)
    for n in range(nxt, tafter + 1): slab(n)
    tch("ffn", tat, tgap)
    for n in range(tafter + 1, 11): slab(n)
    sgn(0, "stC", tC, r.sF4)
    slab(11)
    dc = dc_ops(r)
    if dcat == 'early': put(dc, free_slot("wc"), bslot["dc"])
    chkflag(0, ("after", "stC_sig", fcd), "fC", lambda: slab(12))
    for q in range(0, 4): hl(q)
    slab(13)
    for q in range(4, 7): hl(q)
    T = r.sT; fs = (f"s{r.sX}", 4)
    put([(f"s_lshl_b32 s{r.sX}, s{r.sTok}, 7\ns_add_u32 s{r.sX}, s{r.sX}, {WS['FLAG'][0] + F_E3*128}\n" + poll_issue(r.FL, None, r.SW, fs, "fS"), 2)], G("B", 3, 0, 0), None)
    slab(14)
    hl(7)
    c1, c2 = poll_check(r.FL, None, r.SW, T + 5, fs, 8, "fS", slow)
    vm.append([("after", "fS", 40), None, c1, 2]); vm.append([("gap", 3), None, c2, 2])
    for q in range(8, 10): hl(q)
    if d1 == 5: slab(15)
    if d1 == 5:
        slab(16)
        sgn(1, "stB0", tB0, r.sF4)
        chkflag(1, ("after", "stB0_sig", e4[0]), "fB0", lambda: sgn(2, "stB1", tB1, r.sF4))
        def f():
            for q in (12, 13, 14): hl(q)
        chkflag(2, ("after", "stB1_sig", e4[1]), "fB1", f)
        for q in range(15, 18): hl(q)
        slab(17)
    elif e4b:
        slab(15)
        sgn(1, "stB0", tB0, r.sF4)
        slab(16)
        def f0():
            sgn(2, "stB1", tB1, r.sF4); slab(17)
        chkflag(1, ("after", "stB0_sig", e4b[0]), "fB0", f0)
        for q in range(12, 12 + e4b[1]): hl(q)
        def f():
            for q in range(12 + e4b[1], 15): hl(q)
        chkflag(2, 0, "fB1", f)
        for q in range(15, 18): hl(q)
    else:
        slab(15); slab(16)
        if dcat == 'mid': put(dc, free_slot("wc"), bslot["dc"])
        sgn(1, "stB0", tB0, r.sF4)
        sgn(2, "stB1", tB1, r.sF4)
        chkflag(1, hneed(12) - 12 * pace - lead - chk, "fB0", (lambda: None) if s17late else (lambda: slab(17)))
        hl(12)
        def f():
            for q in (13, 14): hl(q)
            if s17late: slab(17)
        chkflag(2, hneed(15) - 12 * pace - lead - chk, "fB1", f)
        for q in range(15, 18): hl(q)
    if dcat == 'late': put(dc, free_slot("wc"), bslot["dc"])
    T = r.sT
    put([(f"v_bfe_u32 v{r.DVW}, v{r.L16}, 4, 4\ns_lshl_b32 s{T}, s{r.sTok}, 6", 2), (f"v_lshlrev_b32 v{r.DVW}, 2, v{r.DVW}\ns_add_u32 s{T+1}, s{T}, {WS['MU'][0]}", 2),
         (f"buffer_load_dword v{r.vMu}, v{r.DVW}, {srd(r.SW)}, s{T+1} offen sc1 ; @stat @half", 2),
         (f"v_and_b32 v{r.vSS+2}, 0x300, v{r.L16}\ns_lshl_b32 s{T}, s{T}, 4", 2), (f"v_add_u32 v{r.DVW}, v{r.DVW}, v{r.vSS+2}\ns_add_u32 s{T}, s{T}, {WS['SS'][0]}", 1),
         (f"buffer_load_dword v{r.vSS}, v{r.DVW}, {srd(r.SW)}, s{T} offen sc1 ; @stat @half", 2),
         (f"buffer_load_dword v{r.vSS+1}, v{r.DVW}, {srd(r.SW)}, s{T} offen offset:128 sc1 ; @stat @half", 2)], G("D", 3, 0, 0), None)
    put([(f"s_lshl_b32 s{T}, s{r.sJ}, 1\ns_add_u32 s{T}, s{T}, s{r.sU1}", 2), (f"s_lshl_b32 s{T}, s{T}, 13\ns_add_u32 s{T}, s{T}, s{r.sXt+3}", 2),
         (f"buffer_load_dwordx4 {vr(r.vHc)}, v{r.L16}, {srd(r.SW)}, s{T} offen sc1 ; @stat", 2), (f"s_add_u32 s{T}, s{T}, 4096", 1),
         (f"buffer_load_dwordx4 {vr(r.vHc+16)}, v{r.L16}, {srd(r.SW)}, s{T} offen sc1 ; @stat", 2),
         (f"s_sub_u32 s{T}, s{r.sHC}, s{r.sHL}\ns_add_u32 s{T}, s{T}, s{r.sXt+3}", 2),
         (f"buffer_load_dwordx2 {vr(r.vHc+32,2)}, v{r.L8}, {srd(r.SW)}, s{T} offen sc1 ; @stat @half", 2)], G("D", 3, 0, 0), tl - 1)
    sgn(0, "sp0", tP0, r.sF5)
    put([(x, 1) for x in lines(poll_issue(r.FL, r.AT, r.SW, (f"s{r.sF5}", 0), "f50"))], tP0 + p0[1], None)
    c1, c2 = poll_check(r.FL, r.AT, r.SW, T + 5, (f"s{r.sF5}", 0), 8, "f50", slow)
    vm.append([F0 + p0[2], None, c1, 2]); vm.append([("gap", 2), None, c2, 2])
    l0 = [f"s_lshr_b32 s{T}, s{r.sUo}, 3", f"s_add_u32 s{T}, s{T}, s{r.sQ}"]
    for k in range(4):
        for p in range(2): l0.append(f"buffer_load_dwordx4 {preg(2*k+p)}, v{r.L16}, {srd(r.SW)}, s{T} offen offset:{1024*p} sc1 ; @pa{k} @half")
        if k < 3: l0.append(f"s_add_u32 s{T}, s{T}, 2560")
    l0.append(f"s_cmp_eq_u32 s{r.sUc}, s{r.sUs}\ns_cselect_b32 s{T}, s{r.sQ}, 0x40000000\ns_cselect_b32 s{T+1}, 0, 0x40000000")
    for k in range(8):
        l0.append(f"buffer_load_dwordx2 {half(preg(14+k//2), k%2)}, v{r.L8}, {srd(r.SW)}, s{T} offen offset:2048 sc1 ; @pc @flag")
        if k < 7: l0.append(f"s_add_u32 s{T}, s{T}, 2560")
    put([(t, 1) for t in l0], 0, None)
    S.fix(F0 + s1, "WAITVM sp1\n" + poll_issue(r.STG + 12, r.AT, r.SW, (f"s{r.sF6}", 128), "f51", 1) + "\n" + st.text("s5"))
    cur = 0; tagslot = {}
    for e, d, t, c in vm:
        if isinstance(e, tuple):
            e = tagslot[e[1]] + e[2] if e[0] == "after" else cur + e[1]
        cur = max(cur, e)
        if d is not None and cur > d - 30 and "buffer" in t: print(f"   tight: {t[-30:]!r} at {cur} deadline {d}")
        if d is not None: cur = min(cur, d)
        if not t: continue
        S.add("vm", cur if any(k in t for k in ("buffer_", "global_", "WAIT", "cbranch")) else 0, d, t, c)
        for tg in re.findall(r"@(\S+)", t): tagslot[tg] = cur
        if t.startswith("WAITVM"): tagslot[t.split()[1] + ("_sig" if "atomic" in t else "_chk")] = cur
        if "buffer_load" in t:
            cur += 1 if "@flag" in t else (pace + 1) // 2 if "@half" in t else 4 * pace if "@quarter" in t else pace
    if verbose: print("  vm timeline:", "A0 C%d B%d D%d E%d end%d |" % (G("C",0,0,0), G("B",0,0,0), G("D",0,0,0), F0, END), " ".join(f"{k}:{v}" for k, v in sorted(tagslot.items(), key=lambda kv: kv[1])))
    late = S.emit(a, ["rd", "ep", "vm", "rf", "e2"], vmcost, range(F0 - 8, END), excl, minsp, {x for g in range(NG) if done[g] - start[g] < 12 for x in range(start[g], done[g])})
    if late: print("  late fillers:", late)

def ffn_tail(a, r, st, slow, pOut, ost=""):
    T = r.sT; w = r.sWv
    MF16 = "v_mfma_f32_16x16x16_bf16"
    a(st.text("E"))
    acc = [r.ACC + b + 12 for b in (48, 64, 80, 96)]; accC = r.ACC + 48
    Sa, Sb, I16 = vr(r.vI + 2), vr(r.vI), vr(r.vI + 2, 2)
    vO, vOC, F2 = r.vSS, r.vSS + 1, r.STG + 12
    f6 = (f"s{r.sF6}", 128)
    areg = preg
    mk_srd(a, r.SO, pOut, SZ['out'])
    a(f"""s_mul_i32 s{T+2}, s{r.sTok}, {16*1152}
    s_lshl_b32 s{T}, s{r.sJ}, 5
    s_add_u32 s{T+1}, s{T+1}, s{T}
    s_add_u32 s{T+1}, s{T+1}, s{T+2}
    s_lshl_b32 s{T}, s{r.sJ}, 1
    s_add_u32 s{T}, s{T}, s{r.sU1}
    s_lshl_b32 s{T}, s{T}, 7
    s_add_u32 s{T+2}, s{T+2}, s{T}""")
    for m in range(1, 4): a(f"s_xor_b32 s{T}, s{r.sKG}, {m}\ns_mul_i32 s{T}, s{T}, 2560\ns_add_u32 s{r.sPt+m}, s{T}, s{r.sQ}")
    def add(k, p):
        for h, S_ in enumerate((Sa, Sb)): a(f"{MF} {vr(acc[2*p+h])}, {S_}, {areg(2*k+p)}, {vr(acc[2*p+h])}")
    B = r.vB
    def stage0():
        a("WAITVM pc")
        for k in range(8): a(f"{MF16} {vr(accC)}, {I16}, {half(areg(14+k//2), k%2)}, {vr(accC) if k else 0}")
        for k in range(4): add(k, 0); add(k, 1)
        for e in range(4): a(f"v_fmac_f32 v{B+16+e}, v{accC+e}, v{r.vRs}")
        a(f"v_cvt_pk_bf16_f32 v{B+16}, v{B+16}, v{B+17}\nv_cvt_pk_bf16_f32 v{B+17}, v{B+18}, v{B+19}")
    a(poll_inline(F2, r.AT, r.SW, T + 5, f6, 4, "f51", 1))
    a(st.text("e5"))
    for p in range(2):
        for m in range(1, 4): a(f"buffer_load_dwordx4 {areg(6+2*m+p)}, v{r.L16}, {srd(r.SW)}, s{r.sPt+m} offen offset:{1024*p} sc1 ; @pb{p}")
    stage0()
    a(f"buffer_store_dwordx2 {vr(B+16,2)}, v{vOC}, {srd(r.SO)}, s{T+1} offen offset:1024 {ost}")
    for p in range(2):
        a(f"WAITVM pb{p}")
        for m in range(1, 4): add(3 + m, p)
    for p in range(2):
        b = B + 8 * p
        for e in range(8): a(f"v_fmac_f32 v{b+e}, v{acc[2*p+e//4]+e%4}, v{r.vRs}")
        for e in (0, 2, 1, 3): a(f"v_cvt_pk_bf16_f32 v{r.STG+4*p+e}, v{b+2*e}, v{b+2*e+1}")
        b = r.STG + 4 * p
        a(f"v_permlane16_swap_b32 v{b}, v{b+2}\nv_permlane16_swap_b32 v{b+1}, v{b+3}")
        a(f"buffer_store_dwordx4 {vr(b)}, v{vO}, {srd(r.SO)}, s{T+2} offen offset:{64*p} {ost}")

def k_ffn(name="ffn_kernel", stamps=False, **kw):
    a = Asm(); r = ffn_regs(); slow = []
    st = Stamps(stamps, kid=2)
    a(f"s_cmp_ge_u32 s2, 256\ns_cbranch_scc1 {name}_end")
    a(st.text("start"))
    a(f"s_load_dwordx4 s[4:7], s[0:1], {ARG['wg']}\ns_load_dwordx4 s[8:11], s[0:1], {ARG['wd']}\ns_load_dwordx2 s[68:69], s[0:1], {ARG['ws']}")
    a(f"v_lshrrev_b32 v1, 6, v0\nv_readfirstlane_b32 s{r.sWv}, v1")
    a("v_and_b32 v1, 63, v0")
    ffn_setup1(a, r); ffn_setup2(a, r)
    a("v_mov_b32 v0, 1\ns_waitcnt lgkmcnt(0)")
    ffn_srds(a, r, 4, 8, 68)
    for n in range(5):
        for t, c in slab_ops(r, n): a(t)
    for t, c in wc_ops(r): a(t)
    a("s_waitcnt vmcnt(0)")
    for s in range(3):
        for t, c in frag_loads(r, lambda t: xreg(r, s, t), r.sX, s, f"x{s}", "sc1", r.sT + 3): a(t)
    ffn_main(a, r, st, slow, **kw)
    ffn_tail(a, r, st, slow, 10)
    if stamps:
        a("s_waitcnt vmcnt(0)"); a(st.text("end")); st.flush(a, r.SW, 2)
        if kw.get("fine"):
            a(f"s_lshl_b32 s4, s2, 2\ns_add_u32 s4, s4, s3\ns_lshl_b32 s4, s4, 10\ns_add_u32 s4, s4, {WS['STAMP'][0] + MB}\nbuffer_store_dwordx4 v[{r.TRA+8}:{r.TRA+11}], v{r.L16}, {srd(r.SW)}, s4 offen")
    a(f"{name}_end:\ns_endpgm")
    for s in slow: a(s)
    return (name, 256, 256, 159744), kernel_text(name, a), st.names

if __name__ == "__main__":
    k = k_ffn(stamps=True, verbose=True)
    open("ffn.s", "w").write(file_text([k[0]], [k[1]]))
```

```python
from common import *
import attn, ffn, sys
NAME = "sequential_preLN__linear_kernel_hedgehog__glu_gated_bilinear__prompt_kernel"

def k_mega(name=NAME, stamps=False, w2=(0, 1), w2b=(), w3a=(), w3b=(2,), ost='', pexcl=False, prebar=False, e3bar=False, codepf=1, remap=0, perm=False, early=True, wfl='', afl='', repf_at=(), touch=dict(c8='gG', pp='uU', ffn='d'), hop=1, hopb=False, akw={}, a2kw={}, bkw={}, amp=None,
           only=("start", "c0", "kvg", "kvp", "o", "e2", "hc", "e3", "D", "E", "end"), **kw):
    a = Asm(); r = attn.a_regs(); f = ffn.ffn_regs(); slow = []
    st = Stamps(stamps or amp is not None, kid=0, only=only)
    a(st.text("start"))
    pf = f"""s_getpc_b64 s[72:73]
        L_pc:
        s_lshr_b32 s74, s2, 3
        s_lshl_b32 s74, s74, 11
        v_and_b32 v255, 15, v0
        v_lshl_add_u32 v255, v255, 7, s74
        v_min_u32 v255, L_code_end-L_pc-64, v255
        global_load_dword v255, v255, s[72:73]"""
    if codepf == 3: a(pf)
    a(f"s_load_dwordx2 s[12:13], s[0:1], 0\ns_load_dwordx2 s[16:17], s[0:1], 8\ns_load_dwordx4 s[8:11], s[0:1], 16\ns_load_dwordx4 s[68:71], s[0:1], {ARG['dbg']}")
    a(f"s_cmp_ge_u32 s2, 256\ns_cbranch_scc1 L_end")
    if remap: a(f"s_xor_b32 s2, s2, {remap}")
    if perm: a("s_brev_b32 s2, s2\ns_lshr_b32 s2, s2, 24")
    if codepf == 1: a(pf)
    def repf(tag, v, st_):
        return [f"""s_getpc_b64 s[{st_}:{st_+1}]
        L_pc{tag}:
        s_cselect_b32 s{st_+2}, s2, s2""", f"s_lshr_b32 s{st_+2}, s{st_+2}, 3", f"s_lshl_b32 s{st_+2}, s{st_+2}, 11", f"v_lshl_add_u32 v{v}, v{r.J}, 7, s{st_+2}",
                f"v_min_u32 v{v}, L_code_end-L_pc{tag}-64, v{v}", f"global_load_dword v{r.DUM}, v{v}, s[{st_}:{st_+1}]"]
    r.repf = {n: repf(n, r.T, r.sU) for n in repf_at}
    f.wfl = wfl; r.afl = afl
    r.touch = touch; pack.excl = pexcl
    h = attn.phase_a(a, r, st, slow, hop=hop, pf=pf if codepf == 2 else None, **akw)
    attn.phase_a2(a, r, st, slow, h, attn.b_dma_ops(r, slow), **a2kw)
    c1, c2 = Cap(), Cap()
    ffn.ffn_setup1(c1, f, r.L, r.T, r.T + 1); ffn.ffn_srds(c1, f, 4, 8)
    ffn.ffn_setup2(c2, f, r.L, r.T + 2, r.T + 3); c2("v_mov_b32 v0, 1")
    def ops(l):
        o = []
        for n in l: o += [t for t, c in (ffn.wc_ops(f) if n == "wc" else ffn.slab_ops(f, n))]
        return o
    assert set(w2) <= {0, 1} and not w2b
    pre = list(w2) + list(w2b) + list(w3a) + list(w3b)
    npre = len([n for n in pre if n != "wc"])
    attn.phase_b(a, r, f, st, slow, (c1.items, c2.items), ops(w2), ops(w2b), ops(w3a), ops(w3b), **bkw)
    kw.setdefault('nx0', 3)
    def entry():
        T = f.sT
        if hopb: a(hop_dispatch(f.sWv, "b") + "\nL_mainb:\ns_mov_b64 exec, -1")
        a(f"""s_lshl_b32 s{T}, s{f.sTB}, 2
        s_add_u32 s{T}, s{T}, s{f.sWv}
        s_lshl_b32 s{T}, s{T}, 9
        s_add_u32 s{T}, s{T}, {WS['FLAG'][0] + F_E3*128}
        v_lshlrev_b32 v1, 3, v{f.L16}
        s_mov_b32 s{T+1}, 0
        s_mov_b64 exec, 15
        {'s_barrier' if prebar else ''}
        L_e3:
        v_mov_b32 v{f.FL}, 0
        buffer_atomic_add v{f.FL}, v1, {srd(f.SW)}, s{T} offen sc0 sc1
        s_add_u32 s{T+1}, s{T+1}, 1
        s_waitcnt vmcnt(0)
        v_cmp_gt_u32 vcc, 8, v{f.FL}
        s_cmp_gt_u32 s{T+1}, 100000
        s_cbranch_scc1 L_e3ok
        s_cbranch_vccnz L_e3
        L_e3ok:
        s_mov_b64 exec, -1""")
        if e3bar: a("s_barrier")
        a(st.text("e3"))
        for s in range(kw.setdefault('nx0', 3)):
            for t, c in ffn.x_loads(f, s): a(t)
    early = early and set(w2) == {0, 1} and bool(w3b)
    ffn.ffn_main(a, f, st, slow, npre=npre, wcpre=("wc" in pre), entry=entry, early_entry=early, sflag=r.sBT + 1, touch={k: attn.touches(r, k) for k in ('ffn', 'ffnx')}, **kw)
    ffn.ffn_tail(a, f, st, slow, 10, ost)
    if amp is not None:
        a("s_waitcnt vmcnt(0)"); a(st.text("end"))
        i, j, e = [st.base + 2 * st.names.index(n) for n in (amp[0], amp[1], "end")]
        a(f"s_waitcnt lgkmcnt(0)\ns_sub_u32 s4, s{j}, s{i}\ns_min_u32 s4, s4, 20000\ns_mul_i32 s4, s4, 10")
        a(f"L_amp:\ns_memrealtime s[6:7]\ns_waitcnt lgkmcnt(0)\ns_sub_u32 s5, s6, s{e}\ns_cmp_lt_u32 s5, s4\ns_cbranch_scc1 L_amp")
    if stamps:
        a("s_waitcnt vmcnt(0)"); a(st.text("end")); st.flush(a, f.SW, 2)
        if kw.get("fine"):
            a(f"s_lshl_b32 s4, s2, 2\ns_add_u32 s4, s4, s3\ns_lshl_b32 s4, s4, 10\ns_add_u32 s4, s4, {WS['STAMP'][0] + MB}\nbuffer_store_dwordx4 v[{f.TRA+8}:{f.TRA+11}], v{f.L16}, {srd(f.SW)}, s4 offen")
    a("L_end:\ns_endpgm")
    for s in slow: a(s)
    a("L_code_end:")
    return (name, 256, 256, 163840), kernel_text(name, a, hop=bool(hop), split='L_mainb' if hopb else None), st.names

HEAD = open("sequential_preLN__linear_kernel_hedgehog__glu_gated_bilinear__prompt.s.ref").read().split("; Override")[0] if __name__ == "__main__" else ""
def single_file(k):
    n, g, b, lds = k[0]
    return HEAD + f"; @launch grid=({g},1,1) block=({b},1,1) lds={lds}\n" + '.amdgcn_target "amdgcn-amd-amdhsa--gfx950"\n.text\n' + k[1][0] + '.section .rodata,"a"\n' + k[1][1]

if __name__ == "__main__":
    cfg = eval(sys.argv[2]) if len(sys.argv) > 2 else {}
    k = k_mega(**cfg)
    open(sys.argv[1] if len(sys.argv) > 1 else "mega.s", "w").write(single_file(k))
```
